```python
import torch

def _softmax(x, axis=-1):
    return torch.softmax(x, dim=axis)

def _gelu(x):
    return torch.nn.functional.gelu(x, approximate='tanh')

def _silu(x):
    return torch.nn.functional.silu(x)

def _sigmoid(x):
    return torch.sigmoid(x)

def _layernorm(x, axis=-1, eps=1e-05):
    m = x.mean(dim=axis, keepdim=True)
    v = x.var(dim=axis, keepdim=True, unbiased=False)
    return (x - m) / torch.sqrt(v + eps)

def _scatter_add(tgt, idx, src, axis=0):
    return tgt.clone().index_add_(axis, idx, src)

def _segment_sum(src, seg, n):
    out = torch.zeros((n,) + src.shape[1:], dtype=src.dtype)
    return out.index_add_(0, seg, src)

def _pad(x, pw):
    flat = tuple((v for pair in reversed(pw) for v in pair))
    return torch.nn.functional.pad(x, flat)
kernel_name = 'adaLN_cond__gqa_block_cached__swiglu_ffn__decode'

def setup_inputs():

    _w = lambda a: (lambda t: t.to(torch.bfloat16) if t.is_floating_point() else t)(torch.as_tensor(a))

    def _A_setup():
        B, Sq, D = (1, 1, 512)
        Hq, Hkv, Sk, Dh = (32, 8, 32768, 128)
        assert Hq % Hkv == 0, (Hq, Hkv)
        return {'x': _w((lambda *s: torch.randn(*s, dtype=torch.bfloat16) * 0.1)(B, Sq, D)), 'k_cache': _w((lambda *s: torch.randn(*s, dtype=torch.bfloat16) * 0.8)(B, Hkv, Sk, Dh)), 'v_cache': _w((lambda *s: torch.randn(*s, dtype=torch.bfloat16) * 0.8)(B, Hkv, Sk, Dh)), 'wq': _w((lambda *s: torch.randn(*s, dtype=torch.bfloat16) * 0.8)(D, Hq * Dh) * D ** (-0.5)), 'wo': _w((lambda *s: torch.randn(*s, dtype=torch.bfloat16) * 0.8)(Hq * Dh, D) * (Hq * Dh) ** (-0.5))}
    _A_in = _A_setup()

    def _B_setup():
        B, S, D, F = (1, 1, 512, 1792)
        return {'x': _w((lambda *s: torch.randn(*s, dtype=torch.bfloat16) * 0.1)(B, S, D)), 'w_gate': _w((lambda *s: torch.randn(*s, dtype=torch.bfloat16) * 0.1)(D, F)), 'w_up': _w((lambda *s: torch.randn(*s, dtype=torch.bfloat16) * 0.1)(D, F)), 'w_down': _w((lambda *s: torch.randn(*s, dtype=torch.bfloat16) * 0.1)(F, D))}
    _B_in = _B_setup()
    return {'A_x': _A_in['x'], 'A_k_cache': _A_in['k_cache'], 'A_v_cache': _A_in['v_cache'], 'A_wq': _A_in['wq'], 'A_wo': _A_in['wo'], 'B_x': _B_in['x'], 'B_w_gate': _B_in['w_gate'], 'B_w_up': _B_in['w_up'], 'B_w_down': _B_in['w_down'], 'c': _w((lambda *s: torch.randn(*s, dtype=torch.bfloat16) * 0.4)(1, 512) * 8.0), 'w_mod': _w((lambda *s: torch.randn(*s, dtype=torch.bfloat16) * 0.4)(512, 6 * 512) * 512 ** (-0.5) * 8.0)}

def reference(A_x, A_k_cache, A_v_cache, A_wq, A_wo, B_x, B_w_gate, B_w_up, B_w_down, c, w_mod):

    def _A_ref(x, k_cache, v_cache, wq, wo):
        B, Sq, D = x.shape
        Hq, Dh = (32, 128)
        Hkv = k_cache.shape[1]
        rep = Hq // Hkv
        q = (lambda x, *d: x.permute(*d))((x @ wq).reshape(B, Sq, Hq, Dh), 0, 2, 1, 3)
        k = (lambda x, n, axis: torch.repeat_interleave(x, n, dim=axis))(k_cache, rep, axis=1)
        v = (lambda x, n, axis: torch.repeat_interleave(x, n, dim=axis))(v_cache, rep, axis=1)
        scores = torch.einsum('bhqd,bhkd->bhqk', q, k) * Dh ** (-0.5)
        p = _softmax(scores, axis=-1)
        o = torch.einsum('bhqk,bhkd->bhqd', p, v)
        return (lambda x, *d: x.permute(*d))(o, 0, 2, 1, 3).reshape(B, Sq, Hq * Dh) @ wo

    def _B_ref(x, w_gate, w_up, w_down):
        g = _silu(x @ w_gate)
        u = x @ w_up
        return g * u @ w_down
    x = A_x
    mod = (_silu(c) @ w_mod).reshape(c.shape[0], 6, 1, -1)
    sa, ca, ga, sb, cb, gb = (mod[:, 0].clone(), mod[:, 1].clone(), mod[:, 2].clone(), mod[:, 3].clone(), mod[:, 4].clone(), mod[:, 5].clone())
    h = _layernorm(x, axis=-1) * (1 + ca) + sa
    x = x + ga * _A_ref(h, A_k_cache, A_v_cache, A_wq, A_wo)
    h = _layernorm(x, axis=-1) * (1 + cb) + sb
    x = x + gb * _B_ref(h, B_w_gate, B_w_up, B_w_down)
    return x
```

```python
import re

TRANS = ('v_exp_f32', 'v_log_f32', 'v_rcp_f32', 'v_rsq_f32', 'v_sqrt_f32', 'v_sin_f32', 'v_cos_f32', 'v_rcp_iflag_f32')

def regs_of(op):
    op = op.strip()
    out = set()
    m = re.fullmatch(r'-?\|?([vsa])\[(\d+):(\d+)\]\|?', op)
    if m:
        for k in range(int(m.group(2)), int(m.group(3)) + 1):
            out.add((m.group(1), k))
        return out
    m = re.fullmatch(r'-?\|?([vsa])(\d+)\|?', op)
    if m:
        out.add((m.group(1), int(m.group(2)))); return out
    if op in ('vcc', 'vcc_lo', 'vcc_hi'): return {('x', 'vcc')}
    if op in ('exec', 'exec_lo', 'exec_hi'): return {('x', 'exec')}
    if op == 'm0': return {('x', 'm0')}
    return out

class Ins:
    def __init__(self, text):
        self.text = text
        t = text.split(';')[0].strip()
        parts = t.split(None, 1)
        self.mn = parts[0]
        rest = parts[1] if len(parts) > 1 else ''
        ops = []; depth = 0; cur = ''
        for ch in rest:
            if ch == '[': depth += 1
            if ch == ']': depth -= 1
            if ch == ',' and depth == 0:
                ops.append(cur.strip()); cur = ''
            else:
                cur += ch
        if cur.strip(): ops.append(cur.strip())
        mods = ''
        if ops:
            sp = ops[-1].split(None, 1)
            if len(sp) > 1 and not sp[0].startswith('hwreg'):
                ops[-1] = sp[0]; mods = sp[1]
        self.ops = ops; self.mods = mods
        mn = self.mn
        self.is_mfma = mn.startswith('v_mfma')
        self.is_valu = mn.startswith('v_') and not self.is_mfma
        self.is_trans = any(mn.startswith(x) for x in TRANS)
        self.is_dpp = ('_dpp' in mn) or ('quad_perm' in mods) or ('row_' in mods)
        self.is_perm = mn.startswith('v_permlane')
        self.is_vmem = mn.startswith('buffer_') or mn.startswith('global_') or mn.startswith('flat_')
        self.is_ds = mn.startswith('ds_')
        self.is_salu = mn.startswith('s_')
        self.is_branch = mn.startswith('s_branch') or mn.startswith('s_cbranch')
        self.is_uncond = mn in ('s_branch', 's_endpgm', 's_setpc_b64')
        self.target = ops[0] if self.is_branch else None
        self.nop = (int(ops[0], 0) + 1) if mn == 's_nop' else 1
        W = set(); R = set()
        allr = [regs_of(o) for o in ops]
        def rd(lst):
            for s_ in lst: R.update(s_)
        if self.is_mfma:
            W |= allr[0]; rd(allr[1:])
            self.A = allr[1]; self.B = allr[2]; self.C = allr[3] if len(allr) > 3 else set(); self.D = allr[0]
        elif self.is_valu:
            if mn.startswith('v_cmp'):
                W |= allr[0]; rd(allr[1:])
            elif self.is_perm and 'swap' in mn:
                W |= allr[0] | allr[1]; rd(allr)
            elif mn.startswith('v_add_co') or mn.startswith('v_sub_co') or mn.startswith('v_addc_co') or mn.startswith('v_subb_co'):
                W |= allr[0] | allr[1]; rd(allr[2:])
            else:
                W |= allr[0]; rd(allr[1:])
                if mn.startswith('v_fmac') or mn.startswith('v_mac') or self.is_dpp or mn.startswith('v_writelane') or mn.startswith('v_dot2c'):
                    R |= allr[0]
        elif self.is_vmem:
            lds = ' lds' in (' ' + mods) or '_lds_' in mn
            if 'store' in mn or ('atomic' in mn):
                rd(allr)
            elif lds:
                rd(allr); R.add(('x', 'm0'))
            else:
                W |= allr[0]; rd(allr[1:])
            self.is_store = 'store' in mn
            self.wide = self.is_store and ('x4' in mn or 'x3' in mn)
            self.lds = lds
        elif self.is_ds:
            if mn.startswith('ds_read') or mn.startswith('ds_bpermute') or mn.startswith('ds_swizzle') or mn.startswith('ds_permute'):
                W |= allr[0]; rd(allr[1:])
            else:
                rd(allr)
        elif self.is_salu:
            if mn.startswith('s_cmp') or mn in ('s_waitcnt', 's_barrier', 's_nop', 's_endpgm', 's_setprio', 's_sleep') or self.is_branch:
                rd(allr)
            elif mn.endswith('saveexec_b64'):
                W |= allr[0]; W.add(('x', 'exec')); rd(allr[1:]); R.add(('x', 'exec'))
            else:
                if allr: W |= allr[0]
                rd(allr[1:])
        self.W = W; self.R = R

def vonly(s): return {r for r in s if r[0] in ('v', 'a')}
def sonly(s): return {r for r in s if r[0] in ('s', 'x')}

def need(prod, cons):
    n = 0
    if prod.is_valu:
        wv = vonly(prod.W); ws = sonly(prod.W)
        if wv:
            if cons.is_valu and cons.is_dpp and (wv & cons.R): n = max(n, 2)
            if cons.is_valu and (cons.mn.startswith('v_readlane') or cons.mn.startswith('v_readfirstlane')) and (wv & cons.R): n = max(n, 1)
            if cons.is_valu and cons.is_perm and (wv & cons.R): n = max(n, 2)
            if cons.is_mfma and (wv & cons.R): n = max(n, 2)
            if prod.is_trans and cons.is_valu and not cons.is_trans and (wv & cons.R): n = max(n, 1)
            if prod.is_trans and cons.is_valu and cons.is_trans and (wv & cons.R): n = max(n, 1)
        if ws:
            if cons.is_valu and (ws & cons.R): n = max(n, 2)
            if cons.is_valu and (cons.mn.startswith('v_readlane') or cons.mn.startswith('v_writelane')) and (ws & cons.R): n = max(n, 4)
            if cons.is_vmem and (ws & cons.R): n = max(n, 5)
            if cons.is_salu and (ws & cons.R) and not cons.is_branch: n = max(n, 1)
    if prod.is_mfma:
        D = prod.D
        if cons.is_mfma:
            if D & (cons.A | cons.B): n = max(n, 8)
            if D & cons.C and cons.C != D: n = max(n, 6)
            if D & cons.D and cons.C != D and not (D & cons.C): n = max(n, 8)
        elif cons.is_valu:
            if D & (cons.R | cons.W): n = max(n, 8)
            if prod.C & vonly(cons.W): n = max(n, 3)
        elif cons.is_vmem or cons.is_ds:
            if D & (cons.R | cons.W): n = max(n, 8)
    if prod.is_salu and ('x', 'm0') in prod.W and cons.is_vmem and ('x', 'm0') in cons.R: n = max(n, 1)
    if prod.is_vmem and getattr(prod, 'wide', False):
        data = vonly(prod.ops and regs_of(prod.ops[0]) or set()) if prod.mn.startswith('buffer_') else vonly(regs_of(prod.ops[1]))
        if cons.is_valu and (data & cons.W): n = max(n, 2)
        elif (data & cons.W): n = max(n, 1)
    return n

class Asm:
    def __init__(self):
        self.items = []
    def I(self, text):
        for line in text.split('\n'):
            line = line.strip()
            if not line or line.startswith(';'): continue
            self.items.append(('i', Ins(line)))
    def __call__(self, text): self.I(text)
    def label(self, name): self.items.append(('l', name))
    def raw(self, text): self.items.append(('r', text))
    def pad(self):
        MAXD = 10
        total = 0
        def maps():
            br = {}
            for idx, it in enumerate(self.items):
                if it[0] == 'i' and it[1].is_branch:
                    br.setdefault(it[1].target, []).append(idx)
            return br
        while True:
            inserted = 0
            br = maps()
            idx = 0
            while idx < len(self.items):
                items = self.items
                it = items[idx]
                if it[0] != 'i' or it[1].mn == 's_nop':
                    idx += 1; continue
                cons = it[1]
                def preds(i):
                    out = []
                    j = i - 1
                    while j >= 0:
                        x = items[j]
                        if x[0] == 'l':
                            out += br.get(x[1], [])
                            j -= 1; continue
                        if x[0] == 'r':
                            j -= 1; continue
                        if not x[1].is_uncond: out.append(j)
                        break
                    return out
                worst = 0
                stack = [(p, 0) for p in preds(idx)]
                seen = {}
                while stack:
                    p, d = stack.pop()
                    if p in seen and seen[p] <= d: continue
                    seen[p] = d
                    prod = items[p][1]
                    n = need(prod, cons)
                    if n > d: worst = max(worst, n - d)
                    d2 = d + prod.nop
                    if d2 < MAXD:
                        for q in preds(p): stack.append((q, d2))
                if worst > 0:
                    self.items.insert(idx, ('i', Ins(f's_nop {worst - 1}')))
                    inserted += 1
                    br = maps()
                    idx += 2
                else:
                    idx += 1
            total += inserted
            if inserted == 0: break
        return total
    def text(self):
        out = []
        for it in self.items:
            if it[0] == 'i': out.append('  ' + it[1].text)
            elif it[0] == 'l': out.append(it[1] + ':')
            else: out.append(it[1])
        return '\n'.join(out) + '\n'
```

```python
import sys, struct
sys.path.insert(0, 'gen')
from asmdsl import Asm

KNAME = 'adaLN_cond__gqa_block_cached__swiglu_ffn__decode_kernel'

WS_A = 0
WS_SM = 1 << 20
WS_B = WS_SM + 0
WS_C = WS_SM + 16384
WS_E = WS_SM + 32768
WS_M = (2 << 20)
WS_Q = (2 << 20) + 16384
WS_ZF = (2 << 20) + 65536
WS_EPOCH = (3 << 20)
WS_STAMP = 4 << 20
WS_SIZE = 8 << 20
L_TILE = 0
NVL = 10
L_VL = 65536
VLS = NVL * 1024
L_ML = L_VL + 8 * VLS
L_QL = L_ML + 256
L_VEC = L_QL + 1024
L_ST = L_VEC + 4096
L_AV = L_ST + 64
L_CNT = L_AV + 64
LDS_SIZE = L_CNT + 64
assert LDS_SIZE <= 163840

LOG2E = 1.4426950408889634
def f2u(x): return struct.unpack('<I', struct.pack('<f', x))[0]
def hexf(x): return '0x%08x' % f2u(x)
DPPF = 'row_mask:0xf bank_mask:0xf'
POLL_LIMIT = 400000

class Gen:
    def __init__(self, thr=2, stamps=False, thr_deep=3, ffn_nt=False, qk_extra=True, deep_roles=('ffn',), x_notile=False, x_nopoll=False,
                 qsleep=4, x_nokv=False, depth=None, kthr=None, late_k=(), vthr=None, zfirst=()):
        self.a = Asm(); self.thr = thr; self.stamps = stamps; self.thr_deep = thr_deep; self.ffn_nt = ffn_nt
        self.qk_extra = qk_extra; self.deep_roles = deep_roles; self.x_notile = x_notile; self.x_nopoll = x_nopoll
        self.vthr = vthr; self.zfirst = zfirst; self.depth = depth or {}; self.kthr = kthr or {}; self.late_k = late_k; self.qsleep = qsleep; self.x_nokv = x_nokv
        self.nlab = 0
    def lab(self, p='L'):
        self.nlab += 1
        return f'{p}_{self.nlab}'
    def srd(self, sd, sp, size):
        a = self.a
        a(f's_mov_b32 s{sd}, s{sp}'); a(f's_and_b32 s{sd+1}, s{sp+1}, 0xffff')
        a(f's_mov_b32 s{sd+2}, {size}'); a(f's_mov_b32 s{sd+3}, 0x00020000')
    def stamp(self, k):
        if not self.stamps: return
        a = self.a
        a('s_memrealtime s[70:71]'); a('s_waitcnt lgkmcnt(0)'); a(f's_mov_b32 s{84+k}, s70')
    def stamp_init(self):
        if not self.stamps: return
        for k in range(16): self.a(f's_mov_b32 s{84+k}, 0')
    def stamp_flush(self):
        if not self.stamps: return
        a = self.a
        a('s_mov_b64 exec, 1')
        a('s_mul_i32 s70, s2, 12'); a('s_add_u32 s70, s70, s3'); a('s_lshl_b32 s70, s70, 6')
        a(f's_add_u32 s70, s70, {WS_STAMP}')
        a('v_mov_b32 v1, 0')
        for k in range(16):
            a(f'v_mov_b32 v2, s{84+k}')
            a(f'buffer_store_dword v2, v1, s[40:43], s70 offen offset:{4*k}')
        a('s_waitcnt vmcnt(0)')
    def round_pair(self, x, y, t):
        a = self.a
        a(f'v_cvt_pk_bf16_f32 v{t}, v{x}, v{y}')
        a(f'v_lshlrev_b32 v{x}, 16, v{t}')
        a(f'v_and_b32 v{y}, 0xffff0000, v{t}')
    def round_list(self, regs, t):
        for i in range(0, len(regs), 2):
            self.round_pair(regs[i], regs[i+1], t + (i // 2) % 2)
    def round1(self, x, t):
        a = self.a
        a(f'v_cvt_pk_bf16_f32 v{t}, v{x}, v{x}')
        a(f'v_lshlrev_b32 v{x}, 16, v{t}')
    def allreduce(self, regs, op, t, rows_only=False, quad=True, row=True):
        a = self.a
        if not rows_only:
            steps = []
            if quad: steps += ['quad_perm:[1,0,3,2]', 'quad_perm:[2,3,0,1]']
            if row: steps += ['row_half_mirror', 'row_mirror']
            for st in steps:
                for r in regs: a(f'{op}_dpp v{r}, v{r}, v{r} {st} {DPPF}')
        for sw in ('v_permlane16_swap_b32', 'v_permlane32_swap_b32'):
            for k, r in enumerate(regs): a(f'v_mov_b32 v{t+k}, v{r}')
            for k, r in enumerate(regs): a(f'{sw} v{r}, v{t+k}')
            for k, r in enumerate(regs): a(f'{op} v{r}, v{r}, v{t+k}')
    def poll_tail(self, loop_label, sleep=0):
        a = self.a
        if self.x_nopoll: return
        a('s_add_u32 s80, s80, 1'); a(f's_cmp_gt_u32 s80, {POLL_LIMIT}'); a('s_cbranch_scc1 L_abort')
        a('s_cmp_eq_u64 vcc, exec')
        if sleep:
            L = self.lab('L_pk')
            a(f's_cbranch_scc1 {L}'); a(f's_sleep {sleep}'); a(f's_branch {loop_label}'); a.label(L)
        else:
            a(f's_cbranch_scc0 {loop_label}')
    def valid_check(self, regs, t, loop_label, sleep=0):
        a = self.a
        regs = list(regs); cur = regs[0]; i = 1
        while i < len(regs):
            if i + 1 < len(regs):
                a(f'v_min3_u32 v{t}, v{cur}, v{regs[i]}, v{regs[i+1]}'); i += 2
            else:
                a(f'v_min_u32 v{t}, v{cur}, v{regs[i]}'); i += 1
            cur = t
        a(f'v_cmp_ne_u32 vcc, 0, v{cur}')
        self.poll_tail(loop_label, sleep)
    def tag_check(self, regs, t, loop_label, sleep=0):
        a = self.a
        regs = list(regs)
        for r in regs: a(f'v_xor_b32 v{r}, s81, v{r}')
        cur = regs[0]; i = 1
        while i < len(regs):
            if i + 1 < len(regs):
                a(f'v_or3_b32 v{t}, v{cur}, v{regs[i]}, v{regs[i+1]}'); i += 2
            else:
                a(f'v_or_b32 v{t}, v{cur}, v{regs[i]}'); i += 1
            cur = t
        a(f'v_cmp_eq_u32 vcc, 0, v{cur}')
        self.poll_tail(loop_label, sleep)
    def sentinel(self, soff, t, sleep=6):
        a = self.a
        if self.x_nopoll: return
        L = self.lab('L_sn'); L2 = self.lab('L_sn2')
        a(f'v_mov_b32 v{t}, 0'); a(f's_branch {L2}')
        a.label(L); a(f's_sleep {sleep}'); a.label(L2)
        a(f'buffer_load_dword v{t+1}, v{t}, s[40:43], s{soff} offen sc1')
        a('s_waitcnt vmcnt(0)')
        a(f'v_readfirstlane_b32 s82, v{t+1}')
        a('s_add_u32 s80, s80, 1'); a(f's_cmp_gt_u32 s80, {POLL_LIMIT}'); a('s_cbranch_scc1 L_abort')
        a('s_cmp_eq_u32 s82, s81'); a(f's_cbranch_scc0 {L}')
    def unpack8(self, src, dst):
        for k in range(4):
            self.a(f'v_lshlrev_b32 v{dst+2*k}, 16, v{src+k}')
            self.a(f'v_and_b32 v{dst+2*k+1}, 0xffff0000, v{src+k}')
    def pack8(self, src, dst):
        for k in range(4): self.a(f'v_cvt_pk_bf16_f32 v{dst+k}, v{src+2*k}, v{src+2*k+1}')
    def dma(self, srd, voff, soff, step, n, lds_s, nt=True, depth=64, first=True):
        a = self.a
        if self.x_notile: return
        ntf = ' nt' if nt else ''
        for i in range(n):
            if (i >= depth) or (not first): a(f's_waitcnt vmcnt({depth - 1})')
            a(f's_add_u32 m0, s{lds_s}, {i*1024}')
            a(f'buffer_load_dwordx4 v{voff}, s[{srd}:{srd+3}], s{soff} offen{ntf} lds')
            if i + 1 < n: a(f's_add_u32 s{soff}, s{soff}, {step}')
    def lds_sync(self, phase):
        a = self.a
        L = self.lab('L_ls')
        a(f'v_mov_b32 v38, {L_CNT}'); a('v_mov_b32 v39, 1')
        a('s_mov_b64 exec, 1'); a('ds_add_u32 v38, v39'); a('s_mov_b64 exec, -1')
        a.label(L)
        a('ds_read_b32 v39, v38'); a('s_waitcnt lgkmcnt(0)'); a('v_readfirstlane_b32 s82, v39')
        a('s_add_u32 s80, s80, 1'); a(f's_cmp_gt_u32 s80, {POLL_LIMIT}'); a('s_cbranch_scc1 L_abort')
        a(f's_cmp_lt_u32 s82, {4*phase}'); a(f's_cbranch_scc1 {L}')
    def tr_read(self, vaddr, W, n, step, half):
        a = self.a
        for i in range(n):
            a(f'ds_read_b64_tr_b16 v[{W+4*i}:{W+4*i+1}], v{vaddr} offset:{i*step}')
            a(f'ds_read_b64_tr_b16 v[{W+4*i+2}:{W+4*i+3}], v{vaddr} offset:{i*step+half}')
            if (i % 5) == 4: a('s_waitcnt lgkmcnt(4)')
        a('s_waitcnt lgkmcnt(0)')
    def gemv(self, vaddr, W, n, acc, Areg=8, nsets=8):
        a = self.a
        issued = 0
        for i in range(min(nsets, n)):
            a(f'ds_read_b128 v[{Areg+4*i}:{Areg+4*i+3}], v{vaddr} offset:{i*64}'); issued += 1
        for i in range(n):
            a(f's_waitcnt lgkmcnt({issued - i - 1})')
            A = Areg + 4 * (i % nsets); c = acc + 4 * (i % 2)
            src = f'v[{c}:{c+3}]' if i >= 2 else '0'
            a(f'v_mfma_f32_16x16x32_bf16 v[{c}:{c+3}], v[{A}:{A+3}], v[{W+4*i}:{W+4*i+3}], {src}')
            if issued < n:
                a(f'ds_read_b128 v[{A}:{A+3}], v{vaddr} offset:{issued*64}'); issued += 1
        a(f'v_add_f32 v{acc}, v{acc}, v{acc+4}')

    def attention(self):
        a = self.a; thr = self.thr
        BUF = 40; Q = 8; D = 12; T = 28; M0 = 3; M1 = 4; TMP = 36
        self.stamp(0)
        self.srd(48, 10, 0x4000000); self.srd(52, 12, 0x4000000)
        a('s_lshl_b32 s60, s36, 23'); a('s_lshl_b32 s61, s37, 18'); a('s_add_u32 s60, s60, s61')
        a('s_lshl_b32 s61, s3, 10'); a('s_add_u32 s60, s60, s61'); a('s_mov_b32 s61, s60')
        a('v_bfe_u32 v5, v0, 2, 2'); a('v_lshlrev_b32 v1, 8, v5')
        a('v_lshrrev_b32 v5, 4, v0'); a('v_lshl_add_u32 v1, v5, 6, v1')
        a('v_and_b32 v5, 3, v0'); a('v_lshl_add_u32 v1, v5, 4, v1')
        a('v_lshlrev_b32 v2, 4, v0')
        out = []
        def issue(tag, text):
            if not self.x_nokv: a(text)
            out.append(tag)
        def wait(tag):
            if tag in out:
                k = out.index(tag); n = len(out) - k - 1
                a(f's_waitcnt vmcnt({n})'); del out[:k+1]
        def waitn(n):
            if len(out) > n:
                a(f's_waitcnt vmcnt({n})'); del out[:len(out)-n]
        a(f'v_mov_b32 v{M0}, 0'); a(f'v_mov_b32 v{M1}, 0')
        a('v_mov_b32 v6, 0xffff'); a('v_mov_b32 v7, 0xffff0000')
        a('v_cmp_eq_u32 vcc, 0, v5'); a(f'v_cndmask_b32 v{M0}, v{M0}, v6, vcc')
        a('v_cmp_eq_u32 vcc, 1, v5'); a(f'v_cndmask_b32 v{M0}, v{M0}, v7, vcc')
        a('v_cmp_eq_u32 vcc, 2, v5'); a(f'v_cndmask_b32 v{M1}, v{M1}, v6, vcc')
        a('v_cmp_eq_u32 vcc, 3, v5'); a(f'v_cndmask_b32 v{M1}, v{M1}, v7, vcc')
        a('s_mov_b32 s56, 0xaaaaaaaa'); a('s_mov_b32 s57, 0xaaaaaaaa')
        a('s_mov_b32 s58, 0xcccccccc'); a('s_mov_b32 s59, 0xcccccccc')
        a(f'v_add_u32 v6, {L_QL}, v1')
        a(f's_mul_i32 s63, s3, {VLS}'); a(f's_add_u32 s63, s63, {L_VL}')
        lo_hi = {'wq': (0, 8), 'wo': (8, 16), 'mod': (16, 22), 'ffn': (22, 29), 'fin': (29, 32)}
        variants = sorted(set(self.kthr.get(r, thr) for r in lo_hi) - {thr})
        for r, (lo, hi) in lo_hi.items():
            th = self.kthr.get(r, thr)
            if th != thr:
                a(f's_sub_u32 s62, s37, {lo}'); a(f's_cmp_lt_u32 s62, {hi-lo}'); a(f's_cbranch_scc1 L_k{th}')
        def kloop(th):
            del out[:]
            a('s_barrier')
            for i in range(32):
                issue(('K', i), f'buffer_load_dwordx4 v[{BUF+4*i}:{BUF+4*i+3}], v1, s[48:51], s60 offen nt')
                if i < 31: a('s_add_u32 s60, s60, 8192')
                waitn(th)
            for j in range(NVL):
                a(f's_add_u32 m0, s63, {j*1024}')
                issue(('V', j), f'buffer_load_dwordx4 v2, s[52:55], s61 offen nt lds')
                a('s_add_u32 s61, s61, 8192')
                waitn(thr if j >= NVL - 2 else th)
        kloop(thr)
        for th in variants:
            a('s_branch L_kdone')
            a.label(f'L_k{th}')
            kloop(th)
        a.label('L_kdone')
        self.stamp(1)
        a('s_barrier')
        self.stamp(2)
        a(f'ds_read_b128 v[{Q}:{Q+3}], v6')
        a('s_waitcnt lgkmcnt(0)')
        nv = [NVL]
        vreg = lambda j: BUF + 4 * (j - NVL)
        def issueV():
            j = nv[0]
            if j >= 32: return
            issue(('V', j), f'buffer_load_dwordx4 v[{vreg(j)}:{vreg(j)+3}], v2, s[52:55], s61 offen nt')
            if j < 31: a('s_add_u32 s61, s61, 8192')
            nv[0] += 1
        for t in range(8):
            for u in range(4):
                i = 4 * t + u
                a(f'v_mfma_f32_16x16x32_bf16 v[{D+4*u}:{D+4*u+3}], v[{BUF+4*i}:{BUF+4*i+3}], v[{Q}:{Q+3}], 0')
            vth = self.vthr if self.vthr is not None else thr
            if t == 0:
                for _ in range(min(4, vth + 1)): issueV()
            if t >= 1 and nv[0] - NVL < vth + 1 + (1 if (t >= 4 and self.qk_extra) else 0): issueV()
            for x in range(4):
                d = lambda v: D + 4 * (v ^ x) + v
                a(f'v_cndmask_b32 v{TMP+0}, v{d(0)}, v{d(1)}, s[56:57]')
                a(f'v_cndmask_b32 v{TMP+1}, v{d(2)}, v{d(3)}, s[56:57]')
                if x == 0:
                    a(f'v_cndmask_b32 v{T+t}, v{TMP+0}, v{TMP+1}, s[58:59]')
                else:
                    a(f'v_cndmask_b32 v{TMP+2+(x&1)}, v{TMP+0}, v{TMP+1}, s[58:59]')
                    qp = {1: '[1,0,3,2]', 2: '[2,3,0,1]', 3: '[3,2,1,0]'}[x]
                    a(f'v_add_f32_dpp v{T+t}, v{TMP+2+(x&1)}, v{T+t} quad_perm:{qp} {DPPF}')
        self.stamp(3)
        Ts = list(range(T, T + 8))
        self.round_list(Ts, TMP)
        a(f's_mov_b32 s62, {hexf(128 ** -0.5)}')
        for r in Ts: a(f'v_mul_f32 v{r}, s62, v{r}')
        self.round_list(Ts, TMP)
        MX = 5; SUM = 6
        a(f'v_max3_f32 v{MX}, v{T}, v{T+1}, v{T+2}'); a(f'v_max3_f32 v{MX}, v{MX}, v{T+3}, v{T+4}')
        a(f'v_max3_f32 v{MX}, v{MX}, v{T+5}, v{T+6}'); a(f'v_max_f32 v{MX}, v{MX}, v{T+7}')
        self.allreduce([MX], 'v_max_f32', TMP, row=False)
        a(f's_mov_b32 s62, {hexf(LOG2E)}')
        a(f'v_mul_f32 v{MX}, s62, v{MX}')
        for r in Ts: a(f'v_fma_f32 v{r}, v{r}, s62, -v{MX}')
        for r in Ts: a(f'v_exp_f32 v{r}, v{r}')
        a(f'v_add_f32 v{SUM}, v{T}, v{T+1}')
        for r in Ts[2:]: a(f'v_add_f32 v{SUM}, v{SUM}, v{r}')
        for r in Ts: a(f'v_cvt_pk_bf16_f32 v{r}, v{r}, v{r}')
        self.allreduce([SUM], 'v_add_f32', TMP, row=False)
        self.stamp(4)
        ACC = 12; AOP = 20; VT = [24, 36]
        a('v_add_u32 v7, s63, v2')
        for j in range(NVL): wait(('V', j))
        a(f'ds_read_b128 v[{VT[0]}:{VT[0]+3}], v7')
        for i in range(32):
            t = i >> 2; u = i & 3
            A = AOP + 2 * (i & 1)
            a(f'v_and_b32_dpp v{A}, v{T+t}, v{M0} quad_perm:[{u},{u},{u},{u}] {DPPF}')
            a(f'v_and_b32_dpp v{A+1}, v{T+t}, v{M1} quad_perm:[{u},{u},{u},{u}] {DPPF}')
            if i < NVL:
                vb = VT[i & 1]
                if i + 1 < NVL:
                    nb = VT[(i + 1) & 1]
                    a(f'ds_read_b128 v[{nb}:{nb+3}], v7 offset:{(i+1)*1024}'); a('s_waitcnt lgkmcnt(1)')
                else:
                    a('s_waitcnt lgkmcnt(0)')
                if i >= NVL - thr - 1: pass
            else:
                wait(('V', i)); issueV()
                vb = vreg(i)
            c1 = f'v[{ACC}:{ACC+3}]' if i else '0'
            c2 = f'v[{ACC+4}:{ACC+7}]' if i else '0'
            a(f'v_mfma_f32_16x16x16_bf16 v[{ACC}:{ACC+3}], v[{A}:{A+1}], v[{vb}:{vb+1}], {c1}')
            a(f'v_mfma_f32_16x16x16_bf16 v[{ACC+4}:{ACC+7}], v[{A}:{A+1}], v[{vb+2}:{vb+3}], {c2}')
        self.stamp(5)
        a('v_lshlrev_b32 v7, 5, v0'); a('v_add_u32 v7, s63, v7')
        a('v_lshrrev_b32 v8, 2, v0'); a('v_lshlrev_b32 v8, 5, v8')
        a('s_lshl_b32 s62, s3, 2'); a(f's_add_u32 s62, s62, {L_ML}'); a('v_add_u32 v8, s62, v8')
        a('v_and_b32 v9, 0x33, v0'); a('v_cmp_eq_u32 vcc, 0, v9')
        a(f'ds_write_b128 v7, v[{ACC}:{ACC+3}]'); a(f'ds_write_b128 v7, v[{ACC+4}:{ACC+7}] offset:16')
        a('s_and_saveexec_b64 s[64:65], vcc')
        a(f'ds_write_b32 v8, v{MX}'); a(f'ds_write_b32 v8, v{SUM} offset:128')
        a('s_mov_b64 exec, s[64:65]')
        a('s_lshr_b32 s62, s3, 1'); a('s_lshl_b32 s62, s62, 5'); a(f's_add_u32 s62, s62, {L_ML}')
        a('v_mov_b32 v1, s62')
        a('v_lshrrev_b32 v2, 4, v0'); a('v_lshl_add_u32 v3, v2, 3, v1'); a('v_and_b32 v4, 15, v0')
        a(f's_mov_b32 s63, {2*VLS}'); a('v_mul_lo_u32 v5, v2, s63'); a('v_lshl_add_u32 v5, v4, 4, v5')
        a('s_lshl_b32 s63, s3, 8'); a(f's_add_u32 s63, s63, {L_VL}'); a('v_add_u32 v5, s63, v5')
        a('v_lshrrev_b32 v6, 2, v4'); a('v_lshlrev_b32 v6, 12, v6')
        a('v_and_b32 v7, 3, v4'); a('v_lshl_add_u32 v6, v7, 5, v6')
        a('s_lshl_b32 s62, s36, 5'); a('s_lshl_b32 s63, s3, 2'); a('s_add_u32 s62, s62, s63')
        a('s_lshl_b32 s62, s62, 5'); a('s_add_u32 s62, s62, s37'); a('s_lshl_b32 s62, s62, 7')
        a('s_waitcnt lgkmcnt(0)')
        a('s_barrier')
        self.stamp(6)
        a('ds_read_b128 v[8:11], v1'); a('ds_read_b128 v[12:15], v1 offset:16')
        a('ds_read_b64 v[24:25], v3')
        a('ds_read_b128 v[28:31], v5'); a(f'ds_read_b128 v[32:35], v5 offset:{VLS}')
        a('ds_read_b128 v[16:19], v1 offset:128'); a('ds_read_b128 v[20:23], v1 offset:144')
        a('s_waitcnt lgkmcnt(4)')
        a('v_max3_f32 v26, v8, v9, v10'); a('v_max3_f32 v26, v26, v11, v12'); a('v_max3_f32 v26, v26, v13, v14')
        a('v_max_f32 v26, v26, v15')
        a('v_sub_f32 v24, v24, v26'); a('v_sub_f32 v25, v25, v26')
        for k in range(8): a(f'v_sub_f32 v{8+k}, v{8+k}, v26')
        a('v_exp_f32 v24, v24'); a('v_exp_f32 v25, v25')
        for k in range(8): a(f'v_exp_f32 v{8+k}, v{8+k}')
        a('s_waitcnt lgkmcnt(2)')
        for k in range(4): a(f'v_mul_f32 v{28+k}, v24, v{28+k}')
        for k in range(4): a(f'v_fmac_f32 v{28+k}, v25, v{32+k}')
        a('s_waitcnt lgkmcnt(0)')
        a('v_mul_f32 v27, v8, v16')
        for k in range(1, 8): a(f'v_fmac_f32 v27, v{8+k}, v{16+k}')
        self.allreduce([28, 29, 30, 31], 'v_add_f32', 36, rows_only=True)
        a('v_rcp_f32 v8, v27'); a('v_log_f32 v9, v27')
        a('v_add_f32 v9, v9, v26'); a('v_or_b32 v9, 1, v9')
        for k in range(4): a(f'v_mul_f32 v{28+k}, v8, v{28+k}')
        a('v_or_b32 v12, 1, v28'); a('v_mov_b32 v13, v9'); a('v_or_b32 v14, 1, v29'); a('v_mov_b32 v15, v9')
        a('v_or_b32 v16, 1, v30'); a('v_mov_b32 v17, v9'); a('v_or_b32 v18, 1, v31'); a('v_mov_b32 v19, v9')
        a('s_mov_b64 exec, 0xffff')
        a('buffer_store_dwordx4 v[12:15], v6, s[40:43], s62 offen sc1')
        a('buffer_store_dwordx4 v[16:19], v6, s[40:43], s62 offen offset:16 sc1')
        self.stamp(7)
        self.stamp_flush()
        a('s_endpgm')

    def helper(self):
        a = self.a
        W1 = 40; W2 = 104; ACC = 104
        a('s_sub_u32 s38, s3, 8')
        self.stamp(0)
        a('s_mov_b32 s80, 0')
        a(f's_add_u32 s78, s34, {WS_EPOCH}'); a('s_addc_u32 s79, s35, 0')
        a('s_load_dword s83, s[78:79], 0')
        a('v_and_b32 v1, 15, v0'); a('v_lshrrev_b32 v2, 4, v0')
        Lz = self.lab('L_noinit')
        a('s_cmp_lg_u32 s38, 0'); a(f's_cbranch_scc1 {Lz}')
        a(f'v_mov_b32 v38, {L_CNT}'); a('v_mov_b32 v39, 0'); a('ds_write_b32 v38, v39')
        a.label(Lz)
        a('s_lshl_b32 s67, s38, 10'); a(f's_add_u32 s67, s67, {L_VEC}')
        a('v_lshlrev_b32 v4, 4, v2'); a('v_add_u32 v4, s67, v4')
        a('v_lshlrev_b32 v5, 4, v0'); a('v_add_u32 v5, s67, v5')
        a('s_cmp_lt_u32 s37, 8'); a('s_cbranch_scc1 L_role_wq')
        a('s_cmp_lt_u32 s37, 16'); a('s_cbranch_scc1 L_role_wo')
        a('s_cmp_lt_u32 s37, 22'); a('s_cbranch_scc1 L_role_mod')
        a('s_cmp_lt_u32 s37, 29'); a('s_cbranch_scc1 L_role_ffn')
        a('s_branch L_role_fin')

        def h0_begin():
            L = self.lab('L_h0e')
            a('s_cmp_lg_u32 s38, 0'); a(f's_cbranch_scc1 {L}')
            return L
        def barrier0():
            a('s_waitcnt lgkmcnt(0)')
            a('s_barrier')
        def get_tag():
            a('s_waitcnt lgkmcnt(0)')
            a('s_mul_i32 s81, s83, 0x9E3779B1'); a('s_add_u32 s81, s81, 0x7F4A7C15')
        def zero_stores(role):
            L = h0_begin()
            for k in range(4): a(f'v_mov_b32 v{8+k}, 0')
            a('v_lshlrev_b32 v6, 4, v0')
            a('s_lshl_b32 s60, s36, 5'); a('s_add_u32 s60, s60, s37'); a('s_lshl_b32 s60, s60, 12')
            for k in range(4): a(f'buffer_store_dwordx4 v[8:11], v6, s[40:43], s60 offen offset:{1024*k} sc1')
            if role == 'ffn':
                a('s_mul_i32 s60, s36, 7'); a('s_add_u32 s60, s60, s37'); a('s_sub_u32 s60, s60, 22'); a('s_lshl_b32 s60, s60, 11')
                a(f's_add_u32 s60, s60, {WS_E}')
                a('buffer_store_dwordx4 v[8:11], v6, s[40:43], s60 offen sc1')
                a('buffer_store_dwordx4 v[8:11], v6, s[40:43], s60 offen offset:1024 sc1')
            a('s_lshl_b32 s60, s36, 11'); a('s_lshl_b32 s61, s37, 6'); a('s_add_u32 s60, s60, s61'); a(f's_add_u32 s60, s60, {WS_B}')
            a('s_mov_b64 exec, 0xf')
            a('buffer_store_dwordx4 v[8:11], v6, s[40:43], s60 offen sc1')
            if role == 'wo':
                a('s_lshl_b32 s60, s36, 11'); a('s_sub_u32 s61, s37, 8'); a('s_lshl_b32 s61, s61, 8'); a('s_add_u32 s60, s60, s61')
                a(f's_add_u32 s60, s60, {WS_C}'); a('s_mov_b64 exec, 0xffff')
                a('buffer_store_dwordx4 v[8:11], v6, s[40:43], s60 offen sc1')
            a('s_mov_b64 exec, -1')
            a.label(L)
        def zsignal():
            L = h0_begin()
            a('s_waitcnt vmcnt(0)')
            a('s_lshl_b32 s60, s36, 7'); a('s_lshl_b32 s61, s37, 2'); a('s_add_u32 s60, s60, s61'); a(f's_add_u32 s60, s60, {WS_ZF}')
            a('s_mov_b64 exec, 1')
            a('v_mov_b32 v38, 0'); a('v_mov_b32 v39, s81')
            a('buffer_store_dword v39, v38, s[40:43], s60 offen sc1')
            a('s_mov_b64 exec, -1')
            a.label(L)
        def line_setup(ptr, size, rs, col_s):
            self.srd(48, ptr, size)
            a('v_lshrrev_b32 v158, 3, v0'); a(f's_mov_b32 s61, {rs}'); a('v_mul_lo_u32 v158, v158, s61')
            a('v_and_b32 v7, 7, v0'); a('v_lshl_add_u32 v158, v7, 4, v158')
            a(f's_mul_i32 s61, s38, {128*rs}'); a(f's_add_u32 s72, s{col_s}, s61')
            a('s_lshl_b32 s66, s38, 14'); a(f's_add_u32 s66, s66, {L_TILE}')
            def iss(role):
                if role in self.zfirst:
                    zero_stores(role); get_tag(); zsignal()
                if role not in self.late_k: barrier0()
                self.dma(48, 158, 72, 8 * rs, 16, 66, depth=self.depth.get(role, 64))
                if role in self.late_k: barrier0()
            return iss
        def line_finish():
            self.stamp(1)
            a('s_waitcnt vmcnt(0)')
            self.stamp(12)
            self.lds_sync(1)
            a('v_lshrrev_b32 v3, 2, v1'); a('v_lshl_add_u32 v3, v2, 3, v3'); a('v_lshlrev_b32 v3, 7, v3')
            a('v_and_b32 v7, 3, v0'); a('v_lshl_add_u32 v3, v7, 3, v3')
            a('s_lshl_b32 s61, s38, 5'); a(f's_add_u32 s61, s61, {L_TILE}'); a('v_add_u32 v3, s61, v3')
            self.tr_read(3, W1, 16, 4096, 512)
            self.stamp(14)
        def publish16(base_s, val, nl=0xffff):
            a(f'v_or_b32 v{val}, 1, v{val}')
            a('v_lshlrev_b32 v6, 2, v1')
            a(f's_mov_b64 exec, {nl}')
            a(f'buffer_store_dword v{val}, v6, s[40:43], s{base_s} offen sc1')
            a('s_mov_b64 exec, -1')
        def publish_tag(base_s, val):
            a(f'v_mov_b32_dpp v{val+1}, v{val} quad_perm:[1,1,3,3] {DPPF}')
            a(f'v_cvt_pk_bf16_f32 v{val}, v{val}, v{val+1}')
            a(f'v_mov_b32 v{val+1}, s81')
            a('v_lshlrev_b32 v6, 2, v1')
            a('s_mov_b64 exec, 0x5555')
            a(f'buffer_store_dwordx2 v[{val}:{val+1}], v6, s[40:43], s{base_s} offen sc1')
            a('s_mov_b64 exec, -1')
        def qgather_and_barrier1():
            L = h0_begin()
            a('s_and_b32 s61, s2, 31'); a('s_lshl_b32 s61, s61, 7'); a(f's_add_u32 s61, s61, {WS_M + 4}')
            self.sentinel(61, 8, sleep=8)
            self.stamp(2)
            a('s_lshl_b32 s60, s36, 11'); a(f's_add_u32 s60, s60, {WS_Q}')
            Lp = self.lab('L_qp')
            a('v_lshlrev_b32 v6, 5, v0'); a('v_and_b32 v7, 31, v0'); a('v_lshlrev_b32 v7, 2, v7')
            a('s_lshl_b32 s61, s36, 7'); a(f's_add_u32 s61, s61, {WS_ZF}')
            a.label(Lp)
            a('buffer_load_dwordx4 v[8:11], v6, s[40:43], s60 offen sc1')
            a('buffer_load_dwordx4 v[12:15], v6, s[40:43], s60 offen offset:16 sc1')
            a('buffer_load_dword v17, v7, s[40:43], s61 offen sc1')
            a('s_waitcnt vmcnt(0)')
            self.tag_check([9, 11, 13, 15, 17], 16, Lp, sleep=self.qsleep)
            a('v_mov_b32 v9, v10'); a('v_mov_b32 v10, v12'); a('v_mov_b32 v11, v14')
            a('v_lshlrev_b32 v6, 4, v0'); a(f'v_add_u32 v6, {L_QL}, v6')
            a('ds_write_b128 v6, v[8:11]'); a('s_waitcnt lgkmcnt(0)')
            self.stamp(3)
            a.label(L)
            a('s_barrier')
        def t1_combine():
            Lp = self.lab('L_t1')
            a('v_lshlrev_b32 v6, 7, v2'); a('v_lshl_add_u32 v6, v1, 3, v6')
            a('s_lshl_b32 s60, s36, 5'); a('s_add_u32 s60, s60, s37'); a('s_lshl_b32 s60, s60, 12')
            a('s_lshl_b32 s62, s36, 11'); a('s_lshl_b32 s61, s37, 6'); a('s_add_u32 s62, s62, s61'); a(f's_add_u32 s62, s62, {WS_B}')
            a.label(Lp)
            for i in range(8): a(f'buffer_load_dwordx2 v[{8+2*i}:{9+2*i}], v6, s[40:43], s60 offen offset:{512*i} sc1')
            a('s_waitcnt vmcnt(0)')
            self.valid_check(range(8, 24), 24, Lp)
            self.stamp(6)
            a('v_max3_f32 v24, v9, v11, v13'); a('v_max3_f32 v24, v24, v15, v17'); a('v_max3_f32 v24, v24, v19, v21')
            a('v_max_f32 v24, v24, v23')
            self.allreduce([24], 'v_max_f32', 26, rows_only=True)
            for i in range(8): a(f'v_sub_f32 v{9+2*i}, v{9+2*i}, v24')
            for i in range(8): a(f'v_exp_f32 v{9+2*i}, v{9+2*i}')
            a('v_mul_f32 v24, v9, v8'); a('v_mov_b32 v25, v9')
            for i in range(1, 8):
                a(f'v_fmac_f32 v24, v{9+2*i}, v{8+2*i}'); a(f'v_add_f32 v25, v25, v{9+2*i}')
            self.allreduce([24, 25], 'v_add_f32', 26, rows_only=True)
            a('v_rcp_f32 v25, v25'); a('v_mul_f32 v24, v24, v25')
            publish16(62, 24)
            self.stamp(7)

        a.label('L_role_wq')
        a('s_lshl_b32 s62, s36, 10'); a('s_lshl_b32 s61, s37, 7'); a('s_add_u32 s62, s62, s61')
        iss = line_setup(14, 512 * 4096 * 2, 8192, 62)
        self.srd(52, 8, 1024); a('v_lshlrev_b32 v7, 4, v0')
        a('buffer_load_dwordx4 v[12:15], v7, s[52:55], 0 offen')
        iss('wq'); line_finish(); zero_stores('wq'); get_tag()
        X = 16
        self.unpack8(12, X)
        a(f'v_add_f32 v24, v{X}, v{X+1}')
        for k in range(2, 8): a(f'v_add_f32 v24, v24, v{X+k}')
        self.allreduce([24], 'v_add_f32', 26)
        a(f'v_mul_f32 v24, {hexf(1/512)}, v24')
        for k in range(8): a(f'v_sub_f32 v{28+k}, v{X+k}, v24')
        a('v_mul_f32 v25, v28, v28')
        for k in range(1, 8): a(f'v_fmac_f32 v25, v{28+k}, v{28+k}')
        self.allreduce([25], 'v_add_f32', 26)
        a(f'v_mul_f32 v25, {hexf(1/512)}, v25')
        self.round_pair(24, 25, 26)
        a(f'v_add_f32 v25, {hexf(1e-5)}, v25'); self.round1(25, 26)
        a('v_sqrt_f32 v25, v25'); self.round1(25, 26)
        a('v_rcp_f32 v25, v25')
        for k in range(8): a(f'v_sub_f32 v{X+k}, v{X+k}, v24')
        self.round_list(list(range(X, X+8)), 26)
        for k in range(8): a(f'v_mul_f32 v{X+k}, v{X+k}, v25')
        self.round_list(list(range(X, X+8)), 26)
        zsignal()
        self.stamp(4)
        Lp = self.lab('L_mp')
        a('v_lshlrev_b32 v6, 5, v0'); a(f's_mov_b32 s60, {WS_M}')
        a.label(Lp)
        a('buffer_load_dwordx4 v[104:107], v6, s[40:43], s60 offen sc1')
        a('buffer_load_dwordx4 v[108:111], v6, s[40:43], s60 offen offset:16 sc1')
        a('buffer_load_dwordx4 v[112:115], v6, s[40:43], s60 offen offset:2048 sc1')
        a('buffer_load_dwordx4 v[116:119], v6, s[40:43], s60 offen offset:2064 sc1')
        a('s_waitcnt vmcnt(0)')
        self.tag_check([105, 107, 109, 111, 113, 115, 117, 119], 8, Lp, sleep=4)
        self.stamp(5)
        for k in range(8):
            a(f'v_lshlrev_b32 v{24+2*k}, 16, v{104+2*k}'); a(f'v_and_b32 v{25+2*k}, 0xffff0000, v{104+2*k}')
        for k in range(8): a(f'v_add_f32 v{32+k}, 1.0, v{32+k}')
        self.round_list(list(range(32, 40)), 8)
        for k in range(8): a(f'v_mul_f32 v{X+k}, v{X+k}, v{32+k}')
        self.round_list(list(range(X, X+8)), 8)
        for k in range(8): a(f'v_add_f32 v{X+k}, v{X+k}, v{24+k}')
        self.pack8(X, 8)
        a('ds_write_b128 v5, v[8:11]'); a('s_waitcnt lgkmcnt(0)')
        self.gemv(4, W1, 16, ACC)
        a('s_lshl_b32 s60, s36, 11'); a('s_lshl_b32 s61, s37, 8'); a('s_add_u32 s60, s60, s61')
        a('s_lshl_b32 s61, s38, 6'); a('s_add_u32 s60, s60, s61'); a(f's_add_u32 s60, s60, {WS_Q}')
        publish_tag(60, ACC)
        self.stamp(8)
        qgather_and_barrier1()
        a('s_branch L_tail_plain')

        a.label('L_role_wo')
        a('s_lshl_b32 s62, s36, 19'); a('s_sub_u32 s61, s37, 8'); a('s_lshl_b32 s61, s61, 7'); a('s_add_u32 s62, s62, s61')
        iss = line_setup(16, 4096 * 512 * 2, 1024, 62)
        iss('wo')
        if 'wo' not in self.zfirst: zero_stores('wo'); get_tag()
        line_finish()
        if 'wo' not in self.zfirst: zsignal()
        qgather_and_barrier1()
        a('s_barrier')
        L = h0_begin()
        t1_combine()
        Lp = self.lab('L_bp')
        a('v_lshlrev_b32 v6, 5, v0'); a('s_lshl_b32 s60, s36, 11'); a(f's_add_u32 s60, s60, {WS_B}')
        a.label(Lp)
        a('buffer_load_dwordx4 v[8:11], v6, s[40:43], s60 offen sc1')
        a('buffer_load_dwordx4 v[12:15], v6, s[40:43], s60 offen offset:16 sc1')
        a('s_waitcnt vmcnt(0)')
        self.valid_check(range(8, 16), 16, Lp)
        self.stamp(8)
        self.pack8(8, 16)
        a('v_lshlrev_b32 v6, 4, v0'); a(f'v_add_u32 v6, {L_VEC}, v6')
        a('ds_write_b128 v6, v[16:19]'); a('s_waitcnt lgkmcnt(0)')
        a.label(L)
        a('v_lshlrev_b32 v4, 4, v2'); a(f'v_add_u32 v4, {L_VEC}, v4')
        a('s_lshl_b32 s60, s36, 11'); a('s_sub_u32 s61, s37, 8'); a('s_lshl_b32 s61, s61, 8'); a('s_add_u32 s60, s60, s61')
        a('s_lshl_b32 s61, s38, 6'); a('s_add_u32 s60, s60, s61'); a(f's_add_u32 s60, s60, {WS_C}')
        a('s_barrier')
        self.gemv(4, W1, 16, ACC)
        publish16(60, ACC)
        self.stamp(9)
        a('s_branch L_hend')

        a.label('L_role_mod')
        a('s_mul_i32 s62, s36, 768'); a('s_sub_u32 s61, s37, 16'); a('s_lshl_b32 s61, s61, 7'); a('s_add_u32 s62, s62, s61')
        a('s_lshr_b32 s68, s62, 1'); a('s_lshl_b32 s61, s38, 4'); a('s_add_u32 s68, s68, s61')
        iss = line_setup(28, 512 * 3072 * 2, 6144, 62)
        self.srd(52, 26, 1024); a('v_lshlrev_b32 v7, 4, v0')
        a('buffer_load_dwordx4 v[12:15], v7, s[52:55], 0 offen')
        iss('mod'); line_finish(); zero_stores('mod'); get_tag()
        X = 16
        self.unpack8(12, X)
        a(f's_mov_b32 s61, {hexf(-LOG2E)}')
        for k in range(8): a(f'v_mul_f32 v{24+k}, s61, v{X+k}')
        for k in range(8): a(f'v_exp_f32 v{24+k}, v{24+k}')
        for k in range(8): a(f'v_add_f32 v{24+k}, 1.0, v{24+k}')
        for k in range(8): a(f'v_rcp_f32 v{24+k}, v{24+k}')
        for k in range(8): a(f'v_mul_f32 v{X+k}, v{X+k}, v{24+k}')
        self.pack8(X, 8)
        a('ds_write_b128 v5, v[8:11]'); a('s_waitcnt lgkmcnt(0)')
        self.gemv(4, W1, 16, ACC)
        a('s_lshl_b32 s60, s68, 2'); a(f's_add_u32 s60, s60, {WS_M}')
        publish_tag(60, ACC)
        self.stamp(8)
        zsignal()
        qgather_and_barrier1()
        a('s_mov_b32 s75, 3')
        a('s_cmp_eq_u32 s37, 21'); a('s_cbranch_scc1 L_fin_common')
        a('s_branch L_tail_plain')

        a.label('L_role_fin')
        if 'fin' in self.zfirst:
            zero_stores('fin'); get_tag(); zsignal(); barrier0()
        else:
            barrier0(); zero_stores('fin'); get_tag(); zsignal()
        qgather_and_barrier1()
        a('s_sub_u32 s75, s37, 29')
        a.label('L_fin_common')
        L = h0_begin()
        a('s_lshl_b32 s69, s36, 6'); a('s_lshl_b32 s61, s75, 4'); a('s_add_u32 s69, s69, s61')
        self.srd(52, 8, 1024)
        a('v_lshlrev_b32 v6, 1, v1'); a('s_lshl_b32 s60, s69, 1')
        a('buffer_load_ushort v160, v6, s[52:55], s60 offen')
        Lp = self.lab('L_gp')
        a('v_and_b32 v6, 14, v1'); a('v_lshlrev_b32 v6, 2, v6'); a('s_lshl_b32 s60, s69, 2'); a(f's_add_u32 s60, s60, {WS_M}')
        a(f's_add_u32 s61, s60, {1024*4}'); a(f's_add_u32 s60, s60, {2560*4}')
        a('v_lshrrev_b32 v7, 3, v0'); a('v_lshlrev_b32 v7, 7, v7'); a('v_and_b32 v8, 7, v0')
        a('v_min_u32 v9, 6, v8'); a('v_lshl_add_u32 v15, v9, 2, v7'); a('v_lshl_add_u32 v7, v8, 2, v7')
        a(f's_mov_b32 s62, {WS_ZF + 32}')
        a.label(Lp)
        a('buffer_load_dwordx2 v[8:9], v6, s[40:43], s61 offen sc1')
        a('buffer_load_dwordx2 v[10:11], v6, s[40:43], s60 offen sc1')
        a('buffer_load_dword v13, v7, s[40:43], s62 offen sc1')
        a('buffer_load_dword v14, v15, s[40:43], s62 offen offset:56 sc1')
        a('s_waitcnt vmcnt(0)')
        self.tag_check([9, 11, 13, 14], 12, Lp, sleep=8)
        a('v_lshlrev_b32 v160, 16, v160')
        a('v_and_b32 v12, 1, v0'); a('v_cmp_eq_u32 vcc, 1, v12')
        a('v_lshlrev_b32 v161, 16, v8'); a('v_and_b32 v8, 0xffff0000, v8'); a('v_cndmask_b32 v161, v161, v8, vcc')
        a('v_lshlrev_b32 v162, 16, v10'); a('v_and_b32 v10, 0xffff0000, v10'); a('v_cndmask_b32 v162, v162, v10, vcc')
        a.label(L)
        a('s_barrier')
        a('s_cmp_lg_u32 s38, 0'); a('s_cbranch_scc1 L_hend')
        t1_combine()
        Lp = self.lab('L_cp')
        a('v_lshlrev_b32 v6, 2, v1'); a('s_lshl_b32 s60, s69, 2'); a(f's_add_u32 s60, s60, {WS_C}')
        a(f's_add_u32 s61, s60, 4096'); a(f's_add_u32 s62, s60, 8192'); a(f's_add_u32 s63, s60, 12288')
        a.label(Lp)
        for gp in range(8): a(f'buffer_load_dword v{8+gp}, v6, s[40:43], s{60+gp//2} offen offset:{2048*(gp&1)} sc1')
        a('s_waitcnt vmcnt(0)')
        self.valid_check(range(8, 16), 16, Lp, sleep=2)
        a('v_add_f32 v8, v8, v9'); a('v_add_f32 v10, v10, v11'); a('v_add_f32 v12, v12, v13'); a('v_add_f32 v14, v14, v15')
        a('v_add_f32 v8, v8, v10'); a('v_add_f32 v12, v12, v14'); a('v_add_f32 v8, v8, v12')
        a('v_fmac_f32 v160, v161, v8')
        self.stamp(8)
        self.srd(52, 30, 1024)
        a('v_lshlrev_b32 v6, 11, v2'); a('v_lshl_add_u32 v6, v1, 2, v6')
        a('s_lshl_b32 s76, s69, 1')
        a('s_lshl_b32 s60, s69, 2'); a(f's_add_u32 s60, s60, {WS_E}')
        soffs = [60 + i if i < 10 else 72 + (i - 10) for i in range(14)]
        for i in range(1, 14): a(f's_add_u32 s{soffs[i]}, s60, {8192*i}')
        Lp = self.lab('L_ep')
        a.label(Lp)
        for i in range(14): a(f'buffer_load_dword v{8+i}, v6, s[40:43], s{soffs[i]} offen sc1')
        a('s_waitcnt vmcnt(0)')
        self.valid_check(range(8, 22), 24, Lp)
        self.stamp(9)
        for st in ((8, 9), (10, 11), (12, 13), (14, 15), (16, 17), (18, 19), (20, 21), (8, 10), (12, 14), (16, 18), (8, 12), (16, 20), (8, 16)):
            a(f'v_add_f32 v{st[0]}, v{st[0]}, v{st[1]}')
        self.allreduce([8], 'v_add_f32', 24, rows_only=True)
        self.round1(8, 9)
        a('v_fmac_f32 v160, v162, v8')
        a('v_cvt_pk_bf16_f32 v8, v160, v160')
        a('v_lshlrev_b32 v6, 1, v1')
        a('s_mov_b64 exec, 0xffff')
        a('buffer_store_short v8, v6, s[52:55], s76 offen')
        a('s_cmp_lg_u32 s2, 232'); a('s_cbranch_scc1 L_hend')
        a('s_add_u32 s83, s83, 1'); a('v_mov_b32 v8, s83'); a('v_mov_b32 v6, 0'); a(f's_mov_b32 s60, {WS_EPOCH}')
        a('s_mov_b64 exec, 1')
        a('buffer_store_dword v8, v6, s[40:43], s60 offen')
        self.stamp(10)
        a('s_branch L_hend')

        WD = 104
        a.label('L_role_ffn')
        self.srd(48, 20, 512 * 1792 * 2); self.srd(52, 22, 512 * 1792 * 2)
        a('v_lshrrev_b32 v158, 2, v0'); a(f's_mov_b32 s61, 3584'); a('v_mul_lo_u32 v158, v158, s61')
        a('v_and_b32 v7, 3, v0'); a('v_lshl_add_u32 v158, v7, 4, v158')
        a('s_mul_i32 s72, s36, 448'); a('s_sub_u32 s61, s37, 22'); a('s_lshl_b32 s61, s61, 6'); a('s_add_u32 s72, s72, s61')
        a('s_lshr_b32 s68, s72, 1')
        a(f's_mul_i32 s61, s38, {128*3584}'); a('s_add_u32 s72, s72, s61'); a('s_mov_b32 s73, s72')
        a('s_lshl_b32 s66, s38, 13'); a(f's_add_u32 s66, s66, {L_TILE}'); a('s_add_u32 s74, s66, 32768')
        if 'ffn' in self.zfirst:
            zero_stores('ffn'); get_tag(); zsignal()
        if 'ffn' not in self.late_k: barrier0()
        dff = self.depth.get('ffn', 64)
        self.dma(48, 158, 72, 16 * 3584, 8, 66, nt=self.ffn_nt, depth=dff)
        self.dma(52, 158, 73, 16 * 3584, 8, 74, nt=self.ffn_nt, depth=dff, first=(dff >= 16))
        if 'ffn' in self.late_k: barrier0()
        if 'ffn' not in self.zfirst: zero_stores('ffn'); get_tag()
        self.stamp(1)
        a('s_waitcnt vmcnt(0)')
        self.stamp(12)
        self.lds_sync(1)
        a('v_lshrrev_b32 v6, 2, v1'); a('v_lshl_add_u32 v6, v2, 3, v6'); a('v_lshlrev_b32 v6, 6, v6')
        a('v_and_b32 v7, 1, v0'); a('v_lshl_add_u32 v6, v7, 3, v6')
        a('v_bfe_u32 v7, v0, 1, 1'); a('v_lshl_add_u32 v6, v7, 15, v6')
        a('s_lshl_b32 s61, s38, 4'); a(f's_add_u32 s61, s61, {L_TILE}'); a('v_add_u32 v6, s61, v6')
        self.tr_read(6, W1, 16, 2048, 256)
        self.stamp(14)
        if 'ffn' not in self.zfirst: zsignal()
        self.lds_sync(2)
        self.srd(48, 24, 1792 * 512 * 2)
        a('v_lshlrev_b32 v158, 4, v0')
        a('s_lshl_b32 s61, s38, 3'); a('s_add_u32 s72, s68, s61'); a('s_lshl_b32 s72, s72, 10')
        a('s_lshl_b32 s66, s38, 13'); a(f's_add_u32 s66, s66, {L_TILE}')
        self.dma(48, 158, 72, 1024, 8, 66, depth=self.depth.get('ffn', 64))
        qgather_and_barrier1()
        a('s_waitcnt vmcnt(0)')
        self.lds_sync(3)
        a('v_lshrrev_b32 v6, 2, v1'); a('v_lshl_add_u32 v6, v2, 3, v6'); a('v_lshlrev_b32 v6, 10, v6')
        a('v_and_b32 v7, 3, v0'); a('v_lshl_add_u32 v6, v7, 3, v6')
        a('s_lshl_b32 s61, s38, 8'); a(f's_add_u32 s61, s61, {L_TILE}'); a('v_add_u32 v6, s61, v6')
        self.tr_read(6, WD, 8, 32, 4096)
        self.srd(52, 8, 1024)
        a('v_lshlrev_b32 v7, 2, v0'); a('s_lshl_b32 s60, s38, 8')
        a('buffer_load_dword v142, v7, s[52:55], s60 offen')
        Lp = self.lab('L_gp2')
        a('v_lshlrev_b32 v6, 3, v0'); a('s_lshl_b32 s60, s38, 9'); a(f's_add_u32 s60, s60, {WS_M + 1024*4}'); a('s_add_u32 s61, s60, 4096')
        a('v_lshrrev_b32 v7, 3, v0'); a('v_lshlrev_b32 v7, 7, v7'); a('v_and_b32 v8, 7, v0'); a('v_lshl_add_u32 v7, v8, 2, v7')
        a(f's_mov_b32 s62, {WS_ZF + 32}')
        a.label(Lp)
        a('buffer_load_dwordx2 v[8:9], v6, s[40:43], s60 offen sc1')
        a('buffer_load_dwordx2 v[10:11], v6, s[40:43], s60 offen offset:2048 sc1')
        a('buffer_load_dwordx2 v[12:13], v6, s[40:43], s61 offen sc1')
        a('buffer_load_dword v14, v7, s[40:43], s62 offen sc1')
        a('s_waitcnt vmcnt(0)')
        self.tag_check([9, 11, 13, 14], 16, Lp, sleep=8)
        for k, r in enumerate((8, 10, 12, 142)):
            a(f'v_and_b32 v{137+2*k}, 0xffff0000, v{r}'); a(f'v_lshlrev_b32 v{136+2*k}, 16, v{r}')
        a('v_add_f32 v140, 1.0, v140'); a('v_add_f32 v141, 1.0, v141'); self.round_pair(140, 141, 16)
        a('v_lshlrev_b32 v144, 3, v0'); a('s_lshl_b32 s72, s38, 9'); a(f's_add_u32 s72, s72, {WS_C}')
        a('s_add_u32 s73, s72, 4096'); a('s_add_u32 s74, s72, 8192'); a('s_add_u32 s75, s72, 12288')
        a('v_lshlrev_b32 v145, 2, v0'); a('s_lshl_b32 s61, s38, 8'); a(f's_add_u32 s61, s61, {L_VEC}'); a('v_add_u32 v145, s61, v145')
        a('v_lshlrev_b32 v4, 4, v2'); a(f'v_add_u32 v4, {L_VEC}, v4')
        a(f'v_mov_b32 v146, {L_ST}'); a('s_lshl_b32 s61, s38, 3'); a('v_add_u32 v147, s61, v146')
        a('s_barrier')
        L = h0_begin()
        t1_combine()
        a.label(L)
        Lp = self.lab('L_cp2')
        a.label(Lp)
        for gp in range(8): a(f'buffer_load_dwordx2 v[{8+2*gp}:{9+2*gp}], v144, s[40:43], s{72+gp//2} offen offset:{2048*(gp&1)} sc1')
        a('s_waitcnt vmcnt(0)')
        self.valid_check(range(8, 24), 24, Lp)
        self.stamp(8)
        for (x_, y_) in ((8, 10), (12, 14), (16, 18), (20, 22), (8, 12), (16, 20), (8, 16)):
            a(f'v_add_f32 v{x_}, v{x_}, v{y_}'); a(f'v_add_f32 v{x_+1}, v{x_+1}, v{y_+1}')
        a('v_fmac_f32 v142, v136, v8'); a('v_fmac_f32 v143, v137, v9')
        a('v_add_f32 v10, v142, v143'); a('v_mul_f32 v11, v142, v142'); a('v_fmac_f32 v11, v143, v143')
        self.allreduce([10, 11], 'v_add_f32', 12)
        a('s_mov_b64 exec, 1'); a('ds_write_b64 v147, v[10:11]'); a('s_mov_b64 exec, -1')
        a('s_waitcnt lgkmcnt(0)')
        a('s_barrier')
        a('ds_read_b128 v[12:15], v146'); a('ds_read_b128 v[16:19], v146 offset:16')
        a('s_waitcnt lgkmcnt(0)')
        a('v_add_f32 v12, v12, v14'); a('v_add_f32 v13, v13, v15'); a('v_add_f32 v16, v16, v18'); a('v_add_f32 v17, v17, v19')
        a('v_add_f32 v12, v12, v16'); a('v_add_f32 v13, v13, v17')
        a(f'v_mul_f32 v12, {hexf(1/512)}, v12'); a(f'v_mul_f32 v13, {hexf(1/512)}, v13')
        a('v_fma_f32 v13, -v12, v12, v13'); a(f'v_add_f32 v13, {hexf(1e-5)}, v13'); a('v_rsq_f32 v13, v13')
        a('v_sub_f32 v142, v142, v12'); a('v_sub_f32 v143, v143, v12')
        a('v_mul_f32 v142, v142, v13'); a('v_mul_f32 v143, v143, v13')
        a('v_fma_f32 v142, v142, v140, v138'); a('v_fma_f32 v143, v143, v141, v139')
        a('v_cvt_pk_bf16_f32 v8, v142, v143')
        a('ds_write_b32 v145, v8'); a('s_waitcnt lgkmcnt(0)')
        a('s_barrier')
        self.stamp(9)
        ACC2 = 136
        self.gemv(4, W1, 16, ACC2)
        self.round1(ACC2, ACC2 + 1)
        a(f's_mov_b32 s61, {hexf(-LOG2E)}')
        a(f'v_mul_f32 v8, s61, v{ACC2}'); a('v_exp_f32 v8, v8'); a('v_add_f32 v8, 1.0, v8'); a('v_rcp_f32 v8, v8')
        a(f'v_mul_f32 v8, v{ACC2}, v8'); self.round1(8, 9)
        a(f'v_mov_b32_dpp v9, v{ACC2} row_ror:8 {DPPF}')
        a('v_mul_f32 v8, v8, v9')
        a('v_cvt_pk_bf16_f32 v8, v8, v8')
        a('v_lshlrev_b32 v6, 1, v1'); a('s_lshl_b32 s61, s38, 4'); a(f's_add_u32 s61, s61, {L_AV}'); a('v_add_u32 v6, s61, v6')
        a('s_mov_b64 exec, 0xff'); a('ds_write_b16 v6, v8'); a('s_mov_b64 exec, -1')
        a('v_lshlrev_b32 v7, 4, v2'); a(f'v_add_u32 v7, {L_AV}, v7')
        a('s_mul_i32 s60, s36, 7'); a('s_add_u32 s60, s60, s37'); a('s_sub_u32 s60, s60, 22'); a('s_lshl_b32 s60, s60, 11')
        a('s_lshl_b32 s61, s38, 9'); a('s_add_u32 s60, s60, s61'); a(f's_add_u32 s60, s60, {WS_E}')
        a('s_mov_b32 s62, 0xffff0000'); a('s_mov_b32 s63, 0xffff0000'); a('s_mov_b32 s64, 0'); a('s_mov_b32 s65, -1')
        a('s_waitcnt lgkmcnt(0)')
        a('s_barrier')
        a('ds_read_b128 v[136:139], v7'); a('s_waitcnt lgkmcnt(0)')
        for jj in range(8):
            a(f'v_mfma_f32_16x16x32_bf16 v[{8+4*jj}:{11+4*jj}], v[136:139], v[{WD+4*jj}:{WD+4*jj+3}], 0')
        self.stamp(10)
        for half in range(2):
            b = 8 + 16 * half
            a(f'v_cndmask_b32 v{140+2*half}, v{b}, v{b+4}, s[62:63]'); a(f'v_cndmask_b32 v{141+2*half}, v{b+8}, v{b+12}, s[62:63]')
            a(f'v_cndmask_b32 v{140+2*half}, v{140+2*half}, v{141+2*half}, s[64:65]')
            a(f'v_or_b32 v{140+2*half}, 1, v{140+2*half}')
        a('v_lshlrev_b32 v6, 2, v0')
        a('buffer_store_dword v140, v6, s[40:43], s60 offen sc1')
        a('buffer_store_dword v142, v6, s[40:43], s60 offen offset:256 sc1')
        a('s_branch L_hend')

        a.label('L_tail_plain')
        a('s_barrier')
        a('s_cmp_lg_u32 s38, 0'); a('s_cbranch_scc1 L_hend')
        t1_combine()
        a.label('L_hend')
        self.stamp(11)
        self.stamp_flush()
        a('s_endpgm')

    def build(self):
        a = self.a
        hdr = open('cdna_kernels/' + KNAME.replace('_kernel', '') + '.s.ref').read().split('\n')
        head = [l for l in hdr if l.startswith(';') and '@launch' not in l and 'Override' not in l and 'grid=ceil' not in l]
        a.raw('\n'.join(head))
        a.raw(f'; @launch grid=(256,1,1) block=(768,1,1) lds={LDS_SIZE}')
        a.raw('.amdgcn_target "amdgcn-amd-amdhsa--gfx950"\n.text')
        a.raw(f'.globl {KNAME}\n.p2align 8\n.type {KNAME},@function\n{KNAME}:')
        a('s_cmp_ge_u32 s2, 256'); a('s_cbranch_scc1 L_abort')
        a('s_load_dwordx16 s[8:23], s[0:1], 0'); a('s_load_dwordx8 s[24:31], s[0:1], 64'); a('s_load_dwordx4 s[32:35], s[0:1], 96')
        a('v_lshrrev_b32 v1, 6, v0'); a('v_readfirstlane_b32 s3, v1'); a('v_and_b32 v0, 63, v0')
        a('s_and_b32 s36, s2, 7'); a('s_lshr_b32 s37, s2, 3')
        self.stamp_init()
        a('s_waitcnt lgkmcnt(0)')
        self.srd(40, 34, WS_SIZE)
        a('s_cmp_ge_u32 s3, 8'); a('s_cbranch_scc1 L_helper')
        self.attention()
        a.label('L_helper')
        self.helper()
        a.label('L_abort')
        a('s_endpgm')
        n = a.pad()
        a.raw('.section .rodata,"a"\n.p2align 6')
        a.raw(f'.amdhsa_kernel {KNAME}\n  .amdhsa_next_free_vgpr 168\n  .amdhsa_next_free_sgpr 102\n  .amdhsa_accum_offset 168\n'
              '  .amdhsa_group_segment_fixed_size 0\n  .amdhsa_kernarg_size 112\n  .amdhsa_user_sgpr_count 2\n'
              '  .amdhsa_user_sgpr_kernarg_segment_ptr 1\n  .amdhsa_system_sgpr_workgroup_id_x 1\n'
              '  .amdhsa_float_denorm_mode_32 3\n.end_amdhsa_kernel')
        return a.text(), n

if __name__ == '__main__':
    import argparse
    p = argparse.ArgumentParser()
    p.add_argument('-o', default='cdna_kernels/' + KNAME.replace('_kernel', '') + '.s')
    p.add_argument('--thr', type=int, default=2); p.add_argument('--thr-deep', type=int, default=3)
    p.add_argument('--stamps', action='store_true'); p.add_argument('--ffn-nt', action='store_true')
    p.add_argument('--deep', default='ffn'); p.add_argument('--x-notile', action='store_true'); p.add_argument('--x-nopoll', action='store_true')
    p.add_argument('--qsleep', type=int, default=4); p.add_argument('--x-nokv', action='store_true')
    p.add_argument('--depth', default=''); p.add_argument('--kthr', default=''); p.add_argument('--late', default=''); p.add_argument('--vthr', type=int, default=None); p.add_argument('--zfirst', default='')
    args = p.parse_args()
    kv = lambda t: {x.split('=')[0]: int(x.split('=')[1]) for x in t.split(',') if x}
    g = Gen(thr=args.thr, stamps=args.stamps, thr_deep=args.thr_deep, ffn_nt=args.ffn_nt, deep_roles=tuple(x for x in args.deep.split(',') if x),
            x_notile=args.x_notile, x_nopoll=args.x_nopoll, qsleep=args.qsleep, x_nokv=args.x_nokv, depth=kv(args.depth), kthr=kv(args.kthr), late_k=tuple(x for x in args.late.split(',') if x), vthr=args.vthr, zfirst=tuple(x for x in args.zfirst.split(',') if x))
    t, n = g.build()
    open(args.o, 'w').write(t)
    print('wrote', args.o, 'lines', t.count('\n'), 'nops inserted', n)
```

```python
import sys, struct
sys.path.insert(0, 'gen')
from asmdsl import Asm

KNAME = 'adaLN_cond__gqa_block_cached__swiglu_ffn__decode_kernel'

WS_A = 0
WS_SM = 1 << 20
WS_B = WS_SM + 0
WS_C = WS_SM + 16384
WS_E = WS_SM + 32768
WS_M = (2 << 20)
WS_Q = (2 << 20) + 16384
WS_ZF = (2 << 20) + 65536
WS_EPOCH = (3 << 20)
WS_STAMP = 4 << 20
WS_SIZE = 8 << 20
L_TILE = 0
NVL = 10
L_VL = 65536
VLS = NVL * 1024
L_ML = L_VL + 8 * VLS
L_QL = L_ML + 256
L_VEC = L_QL + 1024
L_ST = L_VEC + 4096
L_AV = L_ST + 64
L_CNT = L_AV + 64
LDS_SIZE = L_CNT + 64
assert LDS_SIZE <= 163840

LOG2E = 1.4426950408889634
def f2u(x): return struct.unpack('<I', struct.pack('<f', x))[0]
def hexf(x): return '0x%08x' % f2u(x)
DPPF = 'row_mask:0xf bank_mask:0xf'
POLL_LIMIT = 400000

class Gen:
    def __init__(self, thr=2, stamps=False, thr_deep=3, ffn_nt=False, qk_extra=True, deep_roles=('ffn',), x_notile=False, x_nopoll=False,
                 qsleep=4, x_nokv=False, depth=None, kthr=None, late_k=(), vthr=None, zfirst=()):
        self.a = Asm(); self.thr = thr; self.stamps = stamps; self.thr_deep = thr_deep; self.ffn_nt = ffn_nt
        self.qk_extra = qk_extra; self.deep_roles = deep_roles; self.x_notile = x_notile; self.x_nopoll = x_nopoll
        self.vthr = vthr; self.zfirst = zfirst; self.depth = depth or {}; self.kthr = kthr or {}; self.late_k = late_k; self.qsleep = qsleep; self.x_nokv = x_nokv
        self.nlab = 0; self.dbgmode = False
    def lab(self, p='L'):
        self.nlab += 1
        return f'{p}_{self.nlab}'
    def srd(self, sd, sp, size):
        a = self.a
        a(f's_mov_b32 s{sd}, s{sp}'); a(f's_and_b32 s{sd+1}, s{sp+1}, 0xffff')
        a(f's_mov_b32 s{sd+2}, {size}'); a(f's_mov_b32 s{sd+3}, 0x00020000')
    def stamp(self, k):
        if not self.stamps: return
        a = self.a
        a('s_memrealtime s[70:71]'); a('s_waitcnt lgkmcnt(0)'); a(f's_mov_b32 s{84+k}, s70')
    def stamp_init(self):
        if not self.stamps: return
        for k in range(16): self.a(f's_mov_b32 s{84+k}, 0')
    def stamp_flush(self, helper=False):
        if not self.stamps: return
        a = self.a
        if self.dbgmode:
            self.srd(44, 32, 256)
            a('s_mov_b64 exec, 1'); a('v_mov_b32 v1, 0')
            a('s_not_b32 s70, s84'); a('v_mov_b32 v2, s70')
            a('buffer_atomic_umax v2, v1, s[44:47], 0 offen')
            lst = [(k, 8 + i) for i, k in enumerate((12, 5, 3, 7, 8, 9, 10, 11))] if helper else [(k, k) for k in range(1, 8)]
            for k, slot in lst:
                a(f'v_mov_b32 v2, s{84+k}')
                a(f'buffer_atomic_umax v2, v1, s[44:47], 0 offen offset:{4*slot}')
            a('s_waitcnt vmcnt(0)')
            return
        a('s_mov_b64 exec, 1')
        a('s_mul_i32 s70, s2, 12'); a('s_add_u32 s70, s70, s3'); a('s_lshl_b32 s70, s70, 6')
        a(f's_add_u32 s70, s70, {WS_STAMP}')
        a('v_mov_b32 v1, 0')
        for k in range(16):
            a(f'v_mov_b32 v2, s{84+k}')
            a(f'buffer_store_dword v2, v1, s[40:43], s70 offen offset:{4*k}')
        a('s_waitcnt vmcnt(0)')
    def round_pair(self, x, y, t):
        a = self.a
        a(f'v_cvt_pk_bf16_f32 v{t}, v{x}, v{y}')
        a(f'v_lshlrev_b32 v{x}, 16, v{t}')
        a(f'v_and_b32 v{y}, 0xffff0000, v{t}')
    def round_list(self, regs, t):
        for i in range(0, len(regs), 2):
            self.round_pair(regs[i], regs[i+1], t + (i // 2) % 2)
    def round1(self, x, t):
        a = self.a
        a(f'v_cvt_pk_bf16_f32 v{t}, v{x}, v{x}')
        a(f'v_lshlrev_b32 v{x}, 16, v{t}')
    def allreduce(self, regs, op, t, rows_only=False, quad=True, row=True):
        a = self.a
        if not rows_only:
            steps = []
            if quad: steps += ['quad_perm:[1,0,3,2]', 'quad_perm:[2,3,0,1]']
            if row: steps += ['row_half_mirror', 'row_mirror']
            for st in steps:
                for r in regs: a(f'{op}_dpp v{r}, v{r}, v{r} {st} {DPPF}')
        for sw in ('v_permlane16_swap_b32', 'v_permlane32_swap_b32'):
            for k, r in enumerate(regs): a(f'v_mov_b32 v{t+k}, v{r}')
            for k, r in enumerate(regs): a(f'{sw} v{r}, v{t+k}')
            for k, r in enumerate(regs): a(f'{op} v{r}, v{r}, v{t+k}')
    def poll_tail(self, loop_label, sleep=0):
        a = self.a
        if self.x_nopoll: return
        a('s_add_u32 s80, s80, 1'); a(f's_cmp_gt_u32 s80, {POLL_LIMIT}'); a('s_cbranch_scc1 L_abort')
        a('s_cmp_eq_u64 vcc, exec')
        if sleep:
            L = self.lab('L_pk')
            a(f's_cbranch_scc1 {L}'); a(f's_sleep {sleep}'); a(f's_branch {loop_label}'); a.label(L)
        else:
            a(f's_cbranch_scc0 {loop_label}')
    def valid_check(self, regs, t, loop_label, sleep=0):
        a = self.a
        regs = list(regs); cur = regs[0]; i = 1
        while i < len(regs):
            if i + 1 < len(regs):
                a(f'v_min3_u32 v{t}, v{cur}, v{regs[i]}, v{regs[i+1]}'); i += 2
            else:
                a(f'v_min_u32 v{t}, v{cur}, v{regs[i]}'); i += 1
            cur = t
        a(f'v_cmp_ne_u32 vcc, 0, v{cur}')
        self.poll_tail(loop_label, sleep)
    def tag_check(self, regs, t, loop_label, sleep=0):
        a = self.a
        regs = list(regs)
        for r in regs: a(f'v_xor_b32 v{r}, s81, v{r}')
        cur = regs[0]; i = 1
        while i < len(regs):
            if i + 1 < len(regs):
                a(f'v_or3_b32 v{t}, v{cur}, v{regs[i]}, v{regs[i+1]}'); i += 2
            else:
                a(f'v_or_b32 v{t}, v{cur}, v{regs[i]}'); i += 1
            cur = t
        a(f'v_cmp_eq_u32 vcc, 0, v{cur}')
        self.poll_tail(loop_label, sleep)
    def sentinel(self, soff, t, sleep=6):
        a = self.a
        if self.x_nopoll: return
        L = self.lab('L_sn'); L2 = self.lab('L_sn2')
        a(f'v_mov_b32 v{t}, 0'); a(f's_branch {L2}')
        a.label(L); a(f's_sleep {sleep}'); a.label(L2)
        a(f'buffer_load_dword v{t+1}, v{t}, s[40:43], s{soff} offen sc1')
        a('s_waitcnt vmcnt(0)')
        a(f'v_readfirstlane_b32 s82, v{t+1}')
        a('s_add_u32 s80, s80, 1'); a(f's_cmp_gt_u32 s80, {POLL_LIMIT}'); a('s_cbranch_scc1 L_abort')
        a('s_cmp_eq_u32 s82, s81'); a(f's_cbranch_scc0 {L}')
    def unpack8(self, src, dst):
        for k in range(4):
            self.a(f'v_lshlrev_b32 v{dst+2*k}, 16, v{src+k}')
            self.a(f'v_and_b32 v{dst+2*k+1}, 0xffff0000, v{src+k}')
    def pack8(self, src, dst):
        for k in range(4): self.a(f'v_cvt_pk_bf16_f32 v{dst+k}, v{src+2*k}, v{src+2*k+1}')
    def dma(self, srd, voff, soff, step, n, lds_s, nt=True, depth=64, first=True):
        a = self.a
        if self.x_notile: return
        ntf = ' nt' if nt else ''
        for i in range(n):
            if (i >= depth) or (not first): a(f's_waitcnt vmcnt({depth - 1})')
            a(f's_add_u32 m0, s{lds_s}, {i*1024}')
            a(f'buffer_load_dwordx4 v{voff}, s[{srd}:{srd+3}], s{soff} offen{ntf} lds')
            if i + 1 < n: a(f's_add_u32 s{soff}, s{soff}, {step}')
    def lds_sync(self, phase):
        a = self.a
        L = self.lab('L_ls')
        a(f'v_mov_b32 v38, {L_CNT}'); a('v_mov_b32 v39, 1')
        a('s_mov_b64 exec, 1'); a('ds_add_u32 v38, v39'); a('s_mov_b64 exec, -1')
        a.label(L)
        a('ds_read_b32 v39, v38'); a('s_waitcnt lgkmcnt(0)'); a('v_readfirstlane_b32 s82, v39')
        a('s_add_u32 s80, s80, 1'); a(f's_cmp_gt_u32 s80, {POLL_LIMIT}'); a('s_cbranch_scc1 L_abort')
        a(f's_cmp_lt_u32 s82, {4*phase}'); a(f's_cbranch_scc1 {L}')
    def tr_read(self, vaddr, W, n, step, half):
        a = self.a
        for i in range(n):
            a(f'ds_read_b64_tr_b16 v[{W+4*i}:{W+4*i+1}], v{vaddr} offset:{i*step}')
            a(f'ds_read_b64_tr_b16 v[{W+4*i+2}:{W+4*i+3}], v{vaddr} offset:{i*step+half}')
            if (i % 5) == 4: a('s_waitcnt lgkmcnt(4)')
        a('s_waitcnt lgkmcnt(0)')
    def gemv(self, vaddr, W, n, acc, Areg=8, nsets=8):
        a = self.a
        issued = 0
        for i in range(min(nsets, n)):
            a(f'ds_read_b128 v[{Areg+4*i}:{Areg+4*i+3}], v{vaddr} offset:{i*64}'); issued += 1
        for i in range(n):
            a(f's_waitcnt lgkmcnt({issued - i - 1})')
            A = Areg + 4 * (i % nsets); c = acc + 4 * (i % 2)
            src = f'v[{c}:{c+3}]' if i >= 2 else '0'
            a(f'v_mfma_f32_16x16x32_bf16 v[{c}:{c+3}], v[{A}:{A+3}], v[{W+4*i}:{W+4*i+3}], {src}')
            if issued < n:
                a(f'ds_read_b128 v[{A}:{A+3}], v{vaddr} offset:{issued*64}'); issued += 1
        a(f'v_add_f32 v{acc}, v{acc}, v{acc+4}')

    def attention(self):
        a = self.a; thr = self.thr
        BUF = 40; Q = 8; D = 12; T = 28; M0 = 3; M1 = 4; TMP = 36
        self.stamp(0)
        self.srd(48, 10, 0x4000000); self.srd(52, 12, 0x4000000)
        a('s_lshl_b32 s60, s36, 23'); a('s_lshl_b32 s61, s37, 18'); a('s_add_u32 s60, s60, s61')
        a('s_lshl_b32 s61, s3, 10'); a('s_add_u32 s60, s60, s61'); a('s_mov_b32 s61, s60')
        a('v_bfe_u32 v5, v0, 2, 2'); a('v_lshlrev_b32 v1, 8, v5')
        a('v_lshrrev_b32 v5, 4, v0'); a('v_lshl_add_u32 v1, v5, 6, v1')
        a('v_and_b32 v5, 3, v0'); a('v_lshl_add_u32 v1, v5, 4, v1')
        a('v_lshlrev_b32 v2, 4, v0')
        out = []
        def issue(tag, text):
            if not self.x_nokv: a(text)
            out.append(tag)
        def wait(tag):
            if tag in out:
                k = out.index(tag); n = len(out) - k - 1
                a(f's_waitcnt vmcnt({n})'); del out[:k+1]
        def waitn(n):
            if len(out) > n:
                a(f's_waitcnt vmcnt({n})'); del out[:len(out)-n]
        a(f'v_mov_b32 v{M0}, 0'); a(f'v_mov_b32 v{M1}, 0')
        a('v_mov_b32 v6, 0xffff'); a('v_mov_b32 v7, 0xffff0000')
        a('v_cmp_eq_u32 vcc, 0, v5'); a(f'v_cndmask_b32 v{M0}, v{M0}, v6, vcc')
        a('v_cmp_eq_u32 vcc, 1, v5'); a(f'v_cndmask_b32 v{M0}, v{M0}, v7, vcc')
        a('v_cmp_eq_u32 vcc, 2, v5'); a(f'v_cndmask_b32 v{M1}, v{M1}, v6, vcc')
        a('v_cmp_eq_u32 vcc, 3, v5'); a(f'v_cndmask_b32 v{M1}, v{M1}, v7, vcc')
        a('s_mov_b32 s56, 0xaaaaaaaa'); a('s_mov_b32 s57, 0xaaaaaaaa')
        a('s_mov_b32 s58, 0xcccccccc'); a('s_mov_b32 s59, 0xcccccccc')
        a(f'v_add_u32 v6, {L_QL}, v1')
        a(f's_mul_i32 s63, s3, {VLS}'); a(f's_add_u32 s63, s63, {L_VL}')
        lo_hi = {'wq': (0, 8), 'wo': (8, 16), 'mod': (16, 22), 'ffn': (22, 29), 'fin': (29, 32)}
        variants = sorted(set(self.kthr.get(r, thr) for r in lo_hi) - {thr})
        for r, (lo, hi) in lo_hi.items():
            th = self.kthr.get(r, thr)
            if th != thr:
                a(f's_sub_u32 s62, s37, {lo}'); a(f's_cmp_lt_u32 s62, {hi-lo}'); a(f's_cbranch_scc1 L_k{th}')
        def kloop(th):
            del out[:]
            a('s_barrier')
            for i in range(32):
                issue(('K', i), f'buffer_load_dwordx4 v[{BUF+4*i}:{BUF+4*i+3}], v1, s[48:51], s60 offen nt')
                if i < 31: a('s_add_u32 s60, s60, 8192')
                waitn(th)
            for j in range(NVL):
                a(f's_add_u32 m0, s63, {j*1024}')
                issue(('V', j), f'buffer_load_dwordx4 v2, s[52:55], s61 offen nt lds')
                a('s_add_u32 s61, s61, 8192')
                waitn(thr if j >= NVL - 2 else th)
        kloop(thr)
        for th in variants:
            a('s_branch L_kdone')
            a.label(f'L_k{th}')
            kloop(th)
        a.label('L_kdone')
        self.stamp(1)
        a('s_barrier')
        self.stamp(2)
        a(f'ds_read_b128 v[{Q}:{Q+3}], v6')
        a('s_waitcnt lgkmcnt(0)')
        nv = [NVL]
        vreg = lambda j: BUF + 4 * (j - NVL)
        def issueV():
            j = nv[0]
            if j >= 32: return
            issue(('V', j), f'buffer_load_dwordx4 v[{vreg(j)}:{vreg(j)+3}], v2, s[52:55], s61 offen nt')
            if j < 31: a('s_add_u32 s61, s61, 8192')
            nv[0] += 1
        for t in range(8):
            for u in range(4):
                i = 4 * t + u
                a(f'v_mfma_f32_16x16x32_bf16 v[{D+4*u}:{D+4*u+3}], v[{BUF+4*i}:{BUF+4*i+3}], v[{Q}:{Q+3}], 0')
            vth = self.vthr if self.vthr is not None else thr
            if t == 0:
                for _ in range(min(4, vth + 1)): issueV()
            if t >= 1 and nv[0] - NVL < vth + 1 + (1 if (t >= 4 and self.qk_extra) else 0): issueV()
            for x in range(4):
                d = lambda v: D + 4 * (v ^ x) + v
                a(f'v_cndmask_b32 v{TMP+0}, v{d(0)}, v{d(1)}, s[56:57]')
                a(f'v_cndmask_b32 v{TMP+1}, v{d(2)}, v{d(3)}, s[56:57]')
                if x == 0:
                    a(f'v_cndmask_b32 v{T+t}, v{TMP+0}, v{TMP+1}, s[58:59]')
                else:
                    a(f'v_cndmask_b32 v{TMP+2+(x&1)}, v{TMP+0}, v{TMP+1}, s[58:59]')
                    qp = {1: '[1,0,3,2]', 2: '[2,3,0,1]', 3: '[3,2,1,0]'}[x]
                    a(f'v_add_f32_dpp v{T+t}, v{TMP+2+(x&1)}, v{T+t} quad_perm:{qp} {DPPF}')
        self.stamp(3)
        Ts = list(range(T, T + 8))
        self.round_list(Ts, TMP)
        a(f's_mov_b32 s62, {hexf(128 ** -0.5)}')
        for r in Ts: a(f'v_mul_f32 v{r}, s62, v{r}')
        self.round_list(Ts, TMP)
        MX = 5; SUM = 6
        a(f'v_max3_f32 v{MX}, v{T}, v{T+1}, v{T+2}'); a(f'v_max3_f32 v{MX}, v{MX}, v{T+3}, v{T+4}')
        a(f'v_max3_f32 v{MX}, v{MX}, v{T+5}, v{T+6}'); a(f'v_max_f32 v{MX}, v{MX}, v{T+7}')
        self.allreduce([MX], 'v_max_f32', TMP, row=False)
        a(f's_mov_b32 s62, {hexf(LOG2E)}')
        a(f'v_mul_f32 v{MX}, s62, v{MX}')
        for r in Ts: a(f'v_fma_f32 v{r}, v{r}, s62, -v{MX}')
        for r in Ts: a(f'v_exp_f32 v{r}, v{r}')
        a(f'v_add_f32 v{SUM}, v{T}, v{T+1}')
        for r in Ts[2:]: a(f'v_add_f32 v{SUM}, v{SUM}, v{r}')
        for r in Ts: a(f'v_cvt_pk_bf16_f32 v{r}, v{r}, v{r}')
        self.allreduce([SUM], 'v_add_f32', TMP, row=False)
        self.stamp(4)
        ACC = 12; AOP = 20; VT = [24, 36]
        a('v_add_u32 v7, s63, v2')
        for j in range(NVL): wait(('V', j))
        a(f'ds_read_b128 v[{VT[0]}:{VT[0]+3}], v7')
        for i in range(32):
            t = i >> 2; u = i & 3
            A = AOP + 2 * (i & 1)
            a(f'v_and_b32_dpp v{A}, v{T+t}, v{M0} quad_perm:[{u},{u},{u},{u}] {DPPF}')
            a(f'v_and_b32_dpp v{A+1}, v{T+t}, v{M1} quad_perm:[{u},{u},{u},{u}] {DPPF}')
            if i < NVL:
                vb = VT[i & 1]
                if i + 1 < NVL:
                    nb = VT[(i + 1) & 1]
                    a(f'ds_read_b128 v[{nb}:{nb+3}], v7 offset:{(i+1)*1024}'); a('s_waitcnt lgkmcnt(1)')
                else:
                    a('s_waitcnt lgkmcnt(0)')
                if i >= NVL - thr - 1: pass
            else:
                wait(('V', i)); issueV()
                vb = vreg(i)
            c1 = f'v[{ACC}:{ACC+3}]' if i else '0'
            c2 = f'v[{ACC+4}:{ACC+7}]' if i else '0'
            a(f'v_mfma_f32_16x16x16_bf16 v[{ACC}:{ACC+3}], v[{A}:{A+1}], v[{vb}:{vb+1}], {c1}')
            a(f'v_mfma_f32_16x16x16_bf16 v[{ACC+4}:{ACC+7}], v[{A}:{A+1}], v[{vb+2}:{vb+3}], {c2}')
        self.stamp(5)
        a('v_lshlrev_b32 v7, 5, v0'); a('v_add_u32 v7, s63, v7')
        a('v_lshrrev_b32 v8, 2, v0'); a('v_lshlrev_b32 v8, 5, v8')
        a('s_lshl_b32 s62, s3, 2'); a(f's_add_u32 s62, s62, {L_ML}'); a('v_add_u32 v8, s62, v8')
        a('v_and_b32 v9, 0x33, v0'); a('v_cmp_eq_u32 vcc, 0, v9')
        a(f'ds_write_b128 v7, v[{ACC}:{ACC+3}]'); a(f'ds_write_b128 v7, v[{ACC+4}:{ACC+7}] offset:16')
        a('s_and_saveexec_b64 s[64:65], vcc')
        a(f'ds_write_b32 v8, v{MX}'); a(f'ds_write_b32 v8, v{SUM} offset:128')
        a('s_mov_b64 exec, s[64:65]')
        a('s_lshr_b32 s62, s3, 1'); a('s_lshl_b32 s62, s62, 5'); a(f's_add_u32 s62, s62, {L_ML}')
        a('v_mov_b32 v1, s62')
        a('v_lshrrev_b32 v2, 4, v0'); a('v_lshl_add_u32 v3, v2, 3, v1'); a('v_and_b32 v4, 15, v0')
        a(f's_mov_b32 s63, {2*VLS}'); a('v_mul_lo_u32 v5, v2, s63'); a('v_lshl_add_u32 v5, v4, 4, v5')
        a('s_lshl_b32 s63, s3, 8'); a(f's_add_u32 s63, s63, {L_VL}'); a('v_add_u32 v5, s63, v5')
        a('v_lshrrev_b32 v6, 2, v4'); a('v_lshlrev_b32 v6, 12, v6')
        a('v_and_b32 v7, 3, v4'); a('v_lshl_add_u32 v6, v7, 5, v6')
        a('s_lshl_b32 s62, s36, 5'); a('s_lshl_b32 s63, s3, 2'); a('s_add_u32 s62, s62, s63')
        a('s_lshl_b32 s62, s62, 5'); a('s_add_u32 s62, s62, s37'); a('s_lshl_b32 s62, s62, 7')
        a('s_waitcnt lgkmcnt(0)')
        a('s_barrier')
        self.stamp(6)
        a('ds_read_b128 v[8:11], v1'); a('ds_read_b128 v[12:15], v1 offset:16')
        a('ds_read_b64 v[24:25], v3')
        a('ds_read_b128 v[28:31], v5'); a(f'ds_read_b128 v[32:35], v5 offset:{VLS}')
        a('ds_read_b128 v[16:19], v1 offset:128'); a('ds_read_b128 v[20:23], v1 offset:144')
        a('s_waitcnt lgkmcnt(4)')
        a('v_max3_f32 v26, v8, v9, v10'); a('v_max3_f32 v26, v26, v11, v12'); a('v_max3_f32 v26, v26, v13, v14')
        a('v_max_f32 v26, v26, v15')
        a('v_sub_f32 v24, v24, v26'); a('v_sub_f32 v25, v25, v26')
        for k in range(8): a(f'v_sub_f32 v{8+k}, v{8+k}, v26')
        a('v_exp_f32 v24, v24'); a('v_exp_f32 v25, v25')
        for k in range(8): a(f'v_exp_f32 v{8+k}, v{8+k}')
        a('s_waitcnt lgkmcnt(2)')
        for k in range(4): a(f'v_mul_f32 v{28+k}, v24, v{28+k}')
        for k in range(4): a(f'v_fmac_f32 v{28+k}, v25, v{32+k}')
        a('s_waitcnt lgkmcnt(0)')
        a('v_mul_f32 v27, v8, v16')
        for k in range(1, 8): a(f'v_fmac_f32 v27, v{8+k}, v{16+k}')
        self.allreduce([28, 29, 30, 31], 'v_add_f32', 36, rows_only=True)
        a('v_rcp_f32 v8, v27'); a('v_log_f32 v9, v27')
        a('v_add_f32 v9, v9, v26'); a('v_or_b32 v9, 1, v9')
        for k in range(4): a(f'v_mul_f32 v{28+k}, v8, v{28+k}')
        a('v_or_b32 v12, 1, v28'); a('v_mov_b32 v13, v9'); a('v_or_b32 v14, 1, v29'); a('v_mov_b32 v15, v9')
        a('v_or_b32 v16, 1, v30'); a('v_mov_b32 v17, v9'); a('v_or_b32 v18, 1, v31'); a('v_mov_b32 v19, v9')
        a('s_mov_b64 exec, 0xffff')
        a('buffer_store_dwordx4 v[12:15], v6, s[40:43], s62 offen sc1')
        a('buffer_store_dwordx4 v[16:19], v6, s[40:43], s62 offen offset:16 sc1')
        self.stamp(7)
        self.stamp_flush()
        a('s_endpgm')

    def helper(self):
        a = self.a
        W1 = 40; W2 = 104; ACC = 104
        a('s_sub_u32 s38, s3, 8')
        self.stamp(0)
        a('s_mov_b32 s80, 0')
        a(f's_add_u32 s78, s34, {WS_EPOCH}'); a('s_addc_u32 s79, s35, 0')
        a('s_load_dword s83, s[78:79], 0')
        a('v_and_b32 v1, 15, v0'); a('v_lshrrev_b32 v2, 4, v0')
        Lz = self.lab('L_noinit')
        a('s_cmp_lg_u32 s38, 0'); a(f's_cbranch_scc1 {Lz}')
        a(f'v_mov_b32 v38, {L_CNT}'); a('v_mov_b32 v39, 0'); a('ds_write_b32 v38, v39')
        a.label(Lz)
        a('s_lshl_b32 s67, s38, 10'); a(f's_add_u32 s67, s67, {L_VEC}')
        a('v_lshlrev_b32 v4, 4, v2'); a('v_add_u32 v4, s67, v4')
        a('v_lshlrev_b32 v5, 4, v0'); a('v_add_u32 v5, s67, v5')
        a('s_cmp_lt_u32 s37, 8'); a('s_cbranch_scc1 L_role_wq')
        a('s_cmp_lt_u32 s37, 16'); a('s_cbranch_scc1 L_role_wo')
        a('s_cmp_lt_u32 s37, 22'); a('s_cbranch_scc1 L_role_mod')
        a('s_cmp_lt_u32 s37, 29'); a('s_cbranch_scc1 L_role_ffn')
        a('s_branch L_role_fin')

        def h0_begin():
            L = self.lab('L_h0e')
            a('s_cmp_lg_u32 s38, 0'); a(f's_cbranch_scc1 {L}')
            return L
        def barrier0():
            a('s_waitcnt lgkmcnt(0)')
            a('s_barrier')
        def get_tag():
            a('s_waitcnt lgkmcnt(0)')
            a('s_mul_i32 s81, s83, 0x9E3779B1'); a('s_add_u32 s81, s81, 0x7F4A7C15')
        def zero_stores(role):
            L = h0_begin()
            for k in range(4): a(f'v_mov_b32 v{8+k}, 0')
            a('v_lshlrev_b32 v6, 4, v0')
            a('s_lshl_b32 s60, s36, 5'); a('s_add_u32 s60, s60, s37'); a('s_lshl_b32 s60, s60, 12')
            for k in range(4): a(f'buffer_store_dwordx4 v[8:11], v6, s[40:43], s60 offen offset:{1024*k} sc1')
            if role == 'ffn':
                a('s_mul_i32 s60, s36, 7'); a('s_add_u32 s60, s60, s37'); a('s_sub_u32 s60, s60, 22'); a('s_lshl_b32 s60, s60, 11')
                a(f's_add_u32 s60, s60, {WS_E}')
                a('buffer_store_dwordx4 v[8:11], v6, s[40:43], s60 offen sc1')
                a('buffer_store_dwordx4 v[8:11], v6, s[40:43], s60 offen offset:1024 sc1')
            a('s_lshl_b32 s60, s36, 11'); a('s_lshl_b32 s61, s37, 6'); a('s_add_u32 s60, s60, s61'); a(f's_add_u32 s60, s60, {WS_B}')
            a('s_mov_b64 exec, 0xf')
            a('buffer_store_dwordx4 v[8:11], v6, s[40:43], s60 offen sc1')
            if role == 'wo':
                a('s_lshl_b32 s60, s36, 11'); a('s_sub_u32 s61, s37, 8'); a('s_lshl_b32 s61, s61, 8'); a('s_add_u32 s60, s60, s61')
                a(f's_add_u32 s60, s60, {WS_C}'); a('s_mov_b64 exec, 0xffff')
                a('buffer_store_dwordx4 v[8:11], v6, s[40:43], s60 offen sc1')
            a('s_mov_b64 exec, -1')
            a.label(L)
        def zsignal():
            L = h0_begin()
            a('s_waitcnt vmcnt(0)')
            a('s_lshl_b32 s60, s36, 7'); a('s_lshl_b32 s61, s37, 2'); a('s_add_u32 s60, s60, s61'); a(f's_add_u32 s60, s60, {WS_ZF}')
            a('s_mov_b64 exec, 1')
            a('v_mov_b32 v38, 0'); a('v_mov_b32 v39, s81')
            a('buffer_store_dword v39, v38, s[40:43], s60 offen sc1')
            a('s_mov_b64 exec, -1')
            a.label(L)
        def line_setup(ptr, size, rs, col_s):
            self.srd(48, ptr, size)
            a('v_lshrrev_b32 v158, 3, v0'); a(f's_mov_b32 s61, {rs}'); a('v_mul_lo_u32 v158, v158, s61')
            a('v_and_b32 v7, 7, v0'); a('v_lshl_add_u32 v158, v7, 4, v158')
            a(f's_mul_i32 s61, s38, {128*rs}'); a(f's_add_u32 s72, s{col_s}, s61')
            a('s_lshl_b32 s66, s38, 14'); a(f's_add_u32 s66, s66, {L_TILE}')
            def iss(role):
                if role in self.zfirst:
                    zero_stores(role); get_tag(); zsignal()
                if role not in self.late_k: barrier0()
                self.dma(48, 158, 72, 8 * rs, 16, 66, depth=self.depth.get(role, 64))
                if role in self.late_k: barrier0()
            return iss
        def line_finish():
            self.stamp(1)
            a('s_waitcnt vmcnt(0)')
            self.stamp(12)
            self.lds_sync(1)
            a('v_lshrrev_b32 v3, 2, v1'); a('v_lshl_add_u32 v3, v2, 3, v3'); a('v_lshlrev_b32 v3, 7, v3')
            a('v_and_b32 v7, 3, v0'); a('v_lshl_add_u32 v3, v7, 3, v3')
            a('s_lshl_b32 s61, s38, 5'); a(f's_add_u32 s61, s61, {L_TILE}'); a('v_add_u32 v3, s61, v3')
            self.tr_read(3, W1, 16, 4096, 512)
            self.stamp(14)
        def publish16(base_s, val, nl=0xffff):
            a(f'v_or_b32 v{val}, 1, v{val}')
            a('v_lshlrev_b32 v6, 2, v1')
            a(f's_mov_b64 exec, {nl}')
            a(f'buffer_store_dword v{val}, v6, s[40:43], s{base_s} offen sc1')
            a('s_mov_b64 exec, -1')
        def publish_tag(base_s, val):
            a(f'v_mov_b32_dpp v{val+1}, v{val} quad_perm:[1,1,3,3] {DPPF}')
            a(f'v_cvt_pk_bf16_f32 v{val}, v{val}, v{val+1}')
            a(f'v_mov_b32 v{val+1}, s81')
            a('v_lshlrev_b32 v6, 2, v1')
            a('s_mov_b64 exec, 0x5555')
            a(f'buffer_store_dwordx2 v[{val}:{val+1}], v6, s[40:43], s{base_s} offen sc1')
            a('s_mov_b64 exec, -1')
        def qgather_and_barrier1():
            L = h0_begin()
            a('s_and_b32 s61, s2, 31'); a('s_lshl_b32 s61, s61, 7'); a(f's_add_u32 s61, s61, {WS_M + 4}')
            self.sentinel(61, 8, sleep=8)
            self.stamp(2)
            a('s_lshl_b32 s60, s36, 11'); a(f's_add_u32 s60, s60, {WS_Q}')
            Lp = self.lab('L_qp')
            a('v_lshlrev_b32 v6, 5, v0'); a('v_and_b32 v7, 31, v0'); a('v_lshlrev_b32 v7, 2, v7')
            a('s_lshl_b32 s61, s36, 7'); a(f's_add_u32 s61, s61, {WS_ZF}')
            a.label(Lp)
            a('buffer_load_dwordx4 v[8:11], v6, s[40:43], s60 offen sc1')
            a('buffer_load_dwordx4 v[12:15], v6, s[40:43], s60 offen offset:16 sc1')
            a('buffer_load_dword v17, v7, s[40:43], s61 offen sc1')
            a('s_waitcnt vmcnt(0)')
            self.tag_check([9, 11, 13, 15, 17], 16, Lp, sleep=self.qsleep)
            a('v_mov_b32 v9, v10'); a('v_mov_b32 v10, v12'); a('v_mov_b32 v11, v14')
            a('v_lshlrev_b32 v6, 4, v0'); a(f'v_add_u32 v6, {L_QL}, v6')
            a('ds_write_b128 v6, v[8:11]'); a('s_waitcnt lgkmcnt(0)')
            self.stamp(3)
            a.label(L)
            a('s_barrier')
        def t1_combine():
            Lp = self.lab('L_t1')
            a('v_lshlrev_b32 v6, 7, v2'); a('v_lshl_add_u32 v6, v1, 3, v6')
            a('s_lshl_b32 s60, s36, 5'); a('s_add_u32 s60, s60, s37'); a('s_lshl_b32 s60, s60, 12')
            a('s_lshl_b32 s62, s36, 11'); a('s_lshl_b32 s61, s37, 6'); a('s_add_u32 s62, s62, s61'); a(f's_add_u32 s62, s62, {WS_B}')
            a.label(Lp)
            for i in range(8): a(f'buffer_load_dwordx2 v[{8+2*i}:{9+2*i}], v6, s[40:43], s60 offen offset:{512*i} sc1')
            a('s_waitcnt vmcnt(0)')
            self.valid_check(range(8, 24), 24, Lp)
            self.stamp(6)
            a('v_max3_f32 v24, v9, v11, v13'); a('v_max3_f32 v24, v24, v15, v17'); a('v_max3_f32 v24, v24, v19, v21')
            a('v_max_f32 v24, v24, v23')
            self.allreduce([24], 'v_max_f32', 26, rows_only=True)
            for i in range(8): a(f'v_sub_f32 v{9+2*i}, v{9+2*i}, v24')
            for i in range(8): a(f'v_exp_f32 v{9+2*i}, v{9+2*i}')
            a('v_mul_f32 v24, v9, v8'); a('v_mov_b32 v25, v9')
            for i in range(1, 8):
                a(f'v_fmac_f32 v24, v{9+2*i}, v{8+2*i}'); a(f'v_add_f32 v25, v25, v{9+2*i}')
            self.allreduce([24, 25], 'v_add_f32', 26, rows_only=True)
            a('v_rcp_f32 v25, v25'); a('v_mul_f32 v24, v24, v25')
            publish16(62, 24)
            self.stamp(7)

        a.label('L_role_wq')
        a('s_lshl_b32 s62, s36, 10'); a('s_lshl_b32 s61, s37, 7'); a('s_add_u32 s62, s62, s61')
        iss = line_setup(14, 512 * 4096 * 2, 8192, 62)
        self.srd(52, 8, 1024); a('v_lshlrev_b32 v7, 4, v0')
        a('buffer_load_dwordx4 v[12:15], v7, s[52:55], 0 offen')
        iss('wq'); line_finish(); zero_stores('wq'); get_tag()
        X = 16
        self.unpack8(12, X)
        a(f'v_add_f32 v24, v{X}, v{X+1}')
        for k in range(2, 8): a(f'v_add_f32 v24, v24, v{X+k}')
        self.allreduce([24], 'v_add_f32', 26)
        a(f'v_mul_f32 v24, {hexf(1/512)}, v24')
        for k in range(8): a(f'v_sub_f32 v{28+k}, v{X+k}, v24')
        a('v_mul_f32 v25, v28, v28')
        for k in range(1, 8): a(f'v_fmac_f32 v25, v{28+k}, v{28+k}')
        self.allreduce([25], 'v_add_f32', 26)
        a(f'v_mul_f32 v25, {hexf(1/512)}, v25')
        self.round_pair(24, 25, 26)
        a(f'v_add_f32 v25, {hexf(1e-5)}, v25'); self.round1(25, 26)
        a('v_sqrt_f32 v25, v25'); self.round1(25, 26)
        a('v_rcp_f32 v25, v25')
        for k in range(8): a(f'v_sub_f32 v{X+k}, v{X+k}, v24')
        self.round_list(list(range(X, X+8)), 26)
        for k in range(8): a(f'v_mul_f32 v{X+k}, v{X+k}, v25')
        self.round_list(list(range(X, X+8)), 26)
        zsignal()
        self.stamp(4)
        Lp = self.lab('L_mp')
        a('v_lshlrev_b32 v6, 5, v0'); a(f's_mov_b32 s60, {WS_M}')
        a.label(Lp)
        a('buffer_load_dwordx4 v[104:107], v6, s[40:43], s60 offen sc1')
        a('buffer_load_dwordx4 v[108:111], v6, s[40:43], s60 offen offset:16 sc1')
        a('buffer_load_dwordx4 v[112:115], v6, s[40:43], s60 offen offset:2048 sc1')
        a('buffer_load_dwordx4 v[116:119], v6, s[40:43], s60 offen offset:2064 sc1')
        a('s_waitcnt vmcnt(0)')
        self.tag_check([105, 107, 109, 111, 113, 115, 117, 119], 8, Lp, sleep=4)
        self.stamp(5)
        for k in range(8):
            a(f'v_lshlrev_b32 v{24+2*k}, 16, v{104+2*k}'); a(f'v_and_b32 v{25+2*k}, 0xffff0000, v{104+2*k}')
        for k in range(8): a(f'v_add_f32 v{32+k}, 1.0, v{32+k}')
        self.round_list(list(range(32, 40)), 8)
        for k in range(8): a(f'v_mul_f32 v{X+k}, v{X+k}, v{32+k}')
        self.round_list(list(range(X, X+8)), 8)
        for k in range(8): a(f'v_add_f32 v{X+k}, v{X+k}, v{24+k}')
        self.pack8(X, 8)
        a('ds_write_b128 v5, v[8:11]'); a('s_waitcnt lgkmcnt(0)')
        self.gemv(4, W1, 16, ACC)
        a('s_lshl_b32 s60, s36, 11'); a('s_lshl_b32 s61, s37, 8'); a('s_add_u32 s60, s60, s61')
        a('s_lshl_b32 s61, s38, 6'); a('s_add_u32 s60, s60, s61'); a(f's_add_u32 s60, s60, {WS_Q}')
        publish_tag(60, ACC)
        self.stamp(8)
        qgather_and_barrier1()
        a('s_branch L_tail_plain')

        a.label('L_role_wo')
        a('s_lshl_b32 s62, s36, 19'); a('s_sub_u32 s61, s37, 8'); a('s_lshl_b32 s61, s61, 7'); a('s_add_u32 s62, s62, s61')
        iss = line_setup(16, 4096 * 512 * 2, 1024, 62)
        iss('wo')
        if 'wo' not in self.zfirst: zero_stores('wo'); get_tag()
        line_finish()
        if 'wo' not in self.zfirst: zsignal()
        qgather_and_barrier1()
        a('s_barrier')
        L = h0_begin()
        t1_combine()
        Lp = self.lab('L_bp')
        a('v_lshlrev_b32 v6, 5, v0'); a('s_lshl_b32 s60, s36, 11'); a(f's_add_u32 s60, s60, {WS_B}')
        a.label(Lp)
        a('buffer_load_dwordx4 v[8:11], v6, s[40:43], s60 offen sc1')
        a('buffer_load_dwordx4 v[12:15], v6, s[40:43], s60 offen offset:16 sc1')
        a('s_waitcnt vmcnt(0)')
        self.valid_check(range(8, 16), 16, Lp)
        self.stamp(8)
        self.pack8(8, 16)
        a('v_lshlrev_b32 v6, 4, v0'); a(f'v_add_u32 v6, {L_VEC}, v6')
        a('ds_write_b128 v6, v[16:19]'); a('s_waitcnt lgkmcnt(0)')
        a.label(L)
        a('v_lshlrev_b32 v4, 4, v2'); a(f'v_add_u32 v4, {L_VEC}, v4')
        a('s_lshl_b32 s60, s36, 11'); a('s_sub_u32 s61, s37, 8'); a('s_lshl_b32 s61, s61, 8'); a('s_add_u32 s60, s60, s61')
        a('s_lshl_b32 s61, s38, 6'); a('s_add_u32 s60, s60, s61'); a(f's_add_u32 s60, s60, {WS_C}')
        a('s_barrier')
        self.gemv(4, W1, 16, ACC)
        publish16(60, ACC)
        self.stamp(9)
        a('s_branch L_hend')

        a.label('L_role_mod')
        a('s_mul_i32 s62, s36, 768'); a('s_sub_u32 s61, s37, 16'); a('s_lshl_b32 s61, s61, 7'); a('s_add_u32 s62, s62, s61')
        a('s_lshr_b32 s68, s62, 1'); a('s_lshl_b32 s61, s38, 4'); a('s_add_u32 s68, s68, s61')
        iss = line_setup(28, 512 * 3072 * 2, 6144, 62)
        self.srd(52, 26, 1024); a('v_lshlrev_b32 v7, 4, v0')
        a('buffer_load_dwordx4 v[12:15], v7, s[52:55], 0 offen')
        iss('mod'); line_finish(); zero_stores('mod'); get_tag()
        X = 16
        self.unpack8(12, X)
        a(f's_mov_b32 s61, {hexf(-LOG2E)}')
        for k in range(8): a(f'v_mul_f32 v{24+k}, s61, v{X+k}')
        for k in range(8): a(f'v_exp_f32 v{24+k}, v{24+k}')
        for k in range(8): a(f'v_add_f32 v{24+k}, 1.0, v{24+k}')
        for k in range(8): a(f'v_rcp_f32 v{24+k}, v{24+k}')
        for k in range(8): a(f'v_mul_f32 v{X+k}, v{X+k}, v{24+k}')
        self.pack8(X, 8)
        a('ds_write_b128 v5, v[8:11]'); a('s_waitcnt lgkmcnt(0)')
        self.gemv(4, W1, 16, ACC)
        a('s_lshl_b32 s60, s68, 2'); a(f's_add_u32 s60, s60, {WS_M}')
        publish_tag(60, ACC)
        self.stamp(8)
        zsignal()
        qgather_and_barrier1()
        a('s_mov_b32 s75, 3')
        a('s_cmp_eq_u32 s37, 21'); a('s_cbranch_scc1 L_fin_common')
        a('s_branch L_tail_plain')

        a.label('L_role_fin')
        if 'fin' in self.zfirst:
            zero_stores('fin'); get_tag(); zsignal(); barrier0()
        else:
            barrier0(); zero_stores('fin'); get_tag(); zsignal()
        qgather_and_barrier1()
        a('s_sub_u32 s75, s37, 29')
        a.label('L_fin_common')
        L = h0_begin()
        a('s_lshl_b32 s69, s36, 6'); a('s_lshl_b32 s61, s75, 4'); a('s_add_u32 s69, s69, s61')
        self.srd(52, 8, 1024)
        a('v_lshlrev_b32 v6, 1, v1'); a('s_lshl_b32 s60, s69, 1')
        a('buffer_load_ushort v160, v6, s[52:55], s60 offen')
        Lp = self.lab('L_gp')
        a('v_and_b32 v6, 14, v1'); a('v_lshlrev_b32 v6, 2, v6'); a('s_lshl_b32 s60, s69, 2'); a(f's_add_u32 s60, s60, {WS_M}')
        a(f's_add_u32 s61, s60, {1024*4}'); a(f's_add_u32 s60, s60, {2560*4}')
        a('v_lshrrev_b32 v7, 3, v0'); a('v_lshlrev_b32 v7, 7, v7'); a('v_and_b32 v8, 7, v0')
        a('v_min_u32 v9, 6, v8'); a('v_lshl_add_u32 v15, v9, 2, v7'); a('v_lshl_add_u32 v7, v8, 2, v7')
        a(f's_mov_b32 s62, {WS_ZF + 32}')
        a.label(Lp)
        a('buffer_load_dwordx2 v[8:9], v6, s[40:43], s61 offen sc1')
        a('buffer_load_dwordx2 v[10:11], v6, s[40:43], s60 offen sc1')
        a('buffer_load_dword v13, v7, s[40:43], s62 offen sc1')
        a('buffer_load_dword v14, v15, s[40:43], s62 offen offset:56 sc1')
        a('s_waitcnt vmcnt(0)')
        self.tag_check([9, 11, 13, 14], 12, Lp, sleep=8)
        a('v_lshlrev_b32 v160, 16, v160')
        a('v_and_b32 v12, 1, v0'); a('v_cmp_eq_u32 vcc, 1, v12')
        a('v_lshlrev_b32 v161, 16, v8'); a('v_and_b32 v8, 0xffff0000, v8'); a('v_cndmask_b32 v161, v161, v8, vcc')
        a('v_lshlrev_b32 v162, 16, v10'); a('v_and_b32 v10, 0xffff0000, v10'); a('v_cndmask_b32 v162, v162, v10, vcc')
        a.label(L)
        a('s_barrier')
        a('s_cmp_lg_u32 s38, 0'); a('s_cbranch_scc1 L_hend')
        t1_combine()
        Lp = self.lab('L_cp')
        a('v_lshlrev_b32 v6, 2, v1'); a('s_lshl_b32 s60, s69, 2'); a(f's_add_u32 s60, s60, {WS_C}')
        a(f's_add_u32 s61, s60, 4096'); a(f's_add_u32 s62, s60, 8192'); a(f's_add_u32 s63, s60, 12288')
        a.label(Lp)
        for gp in range(8): a(f'buffer_load_dword v{8+gp}, v6, s[40:43], s{60+gp//2} offen offset:{2048*(gp&1)} sc1')
        a('s_waitcnt vmcnt(0)')
        self.valid_check(range(8, 16), 16, Lp, sleep=2)
        a('v_add_f32 v8, v8, v9'); a('v_add_f32 v10, v10, v11'); a('v_add_f32 v12, v12, v13'); a('v_add_f32 v14, v14, v15')
        a('v_add_f32 v8, v8, v10'); a('v_add_f32 v12, v12, v14'); a('v_add_f32 v8, v8, v12')
        a('v_fmac_f32 v160, v161, v8')
        self.stamp(8)
        self.srd(52, 30, 1024)
        a('v_lshlrev_b32 v6, 11, v2'); a('v_lshl_add_u32 v6, v1, 2, v6')
        a('s_lshl_b32 s76, s69, 1')
        a('s_lshl_b32 s60, s69, 2'); a(f's_add_u32 s60, s60, {WS_E}')
        soffs = [60 + i if i < 10 else 72 + (i - 10) for i in range(14)]
        for i in range(1, 14): a(f's_add_u32 s{soffs[i]}, s60, {8192*i}')
        Lp = self.lab('L_ep')
        a.label(Lp)
        for i in range(14): a(f'buffer_load_dword v{8+i}, v6, s[40:43], s{soffs[i]} offen sc1')
        a('s_waitcnt vmcnt(0)')
        self.valid_check(range(8, 22), 24, Lp)
        self.stamp(9)
        for st in ((8, 9), (10, 11), (12, 13), (14, 15), (16, 17), (18, 19), (20, 21), (8, 10), (12, 14), (16, 18), (8, 12), (16, 20), (8, 16)):
            a(f'v_add_f32 v{st[0]}, v{st[0]}, v{st[1]}')
        self.allreduce([8], 'v_add_f32', 24, rows_only=True)
        self.round1(8, 9)
        a('v_fmac_f32 v160, v162, v8')
        a('v_cvt_pk_bf16_f32 v8, v160, v160')
        a('v_lshlrev_b32 v6, 1, v1')
        a('s_mov_b64 exec, 0xffff')
        a('buffer_store_short v8, v6, s[52:55], s76 offen')
        a('s_cmp_lg_u32 s2, 232'); a('s_cbranch_scc1 L_hend')
        a('s_add_u32 s83, s83, 1'); a('v_mov_b32 v8, s83'); a('v_mov_b32 v6, 0'); a(f's_mov_b32 s60, {WS_EPOCH}')
        a('s_mov_b64 exec, 1')
        a('buffer_store_dword v8, v6, s[40:43], s60 offen')
        self.stamp(10)
        a('s_branch L_hend')

        WD = 104
        a.label('L_role_ffn')
        self.srd(48, 20, 512 * 1792 * 2); self.srd(52, 22, 512 * 1792 * 2)
        a('v_lshrrev_b32 v158, 2, v0'); a(f's_mov_b32 s61, 3584'); a('v_mul_lo_u32 v158, v158, s61')
        a('v_and_b32 v7, 3, v0'); a('v_lshl_add_u32 v158, v7, 4, v158')
        a('s_mul_i32 s72, s36, 448'); a('s_sub_u32 s61, s37, 22'); a('s_lshl_b32 s61, s61, 6'); a('s_add_u32 s72, s72, s61')
        a('s_lshr_b32 s68, s72, 1')
        a(f's_mul_i32 s61, s38, {128*3584}'); a('s_add_u32 s72, s72, s61'); a('s_mov_b32 s73, s72')
        a('s_lshl_b32 s66, s38, 13'); a(f's_add_u32 s66, s66, {L_TILE}'); a('s_add_u32 s74, s66, 32768')
        if 'ffn' in self.zfirst:
            zero_stores('ffn'); get_tag(); zsignal()
        if 'ffn' not in self.late_k: barrier0()
        dff = self.depth.get('ffn', 64)
        self.dma(48, 158, 72, 16 * 3584, 8, 66, nt=self.ffn_nt, depth=dff)
        self.dma(52, 158, 73, 16 * 3584, 8, 74, nt=self.ffn_nt, depth=dff, first=(dff >= 16))
        if 'ffn' in self.late_k: barrier0()
        if 'ffn' not in self.zfirst: zero_stores('ffn'); get_tag()
        self.stamp(1)
        a('s_waitcnt vmcnt(0)')
        self.stamp(12)
        self.lds_sync(1)
        a('v_lshrrev_b32 v6, 2, v1'); a('v_lshl_add_u32 v6, v2, 3, v6'); a('v_lshlrev_b32 v6, 6, v6')
        a('v_and_b32 v7, 1, v0'); a('v_lshl_add_u32 v6, v7, 3, v6')
        a('v_bfe_u32 v7, v0, 1, 1'); a('v_lshl_add_u32 v6, v7, 15, v6')
        a('s_lshl_b32 s61, s38, 4'); a(f's_add_u32 s61, s61, {L_TILE}'); a('v_add_u32 v6, s61, v6')
        self.tr_read(6, W1, 16, 2048, 256)
        self.stamp(14)
        if 'ffn' not in self.zfirst: zsignal()
        self.lds_sync(2)
        self.srd(48, 24, 1792 * 512 * 2)
        a('v_lshlrev_b32 v158, 4, v0')
        a('s_lshl_b32 s61, s38, 3'); a('s_add_u32 s72, s68, s61'); a('s_lshl_b32 s72, s72, 10')
        a('s_lshl_b32 s66, s38, 13'); a(f's_add_u32 s66, s66, {L_TILE}')
        self.dma(48, 158, 72, 1024, 8, 66, depth=self.depth.get('ffn', 64))
        qgather_and_barrier1()
        a('s_waitcnt vmcnt(0)')
        self.lds_sync(3)
        a('v_lshrrev_b32 v6, 2, v1'); a('v_lshl_add_u32 v6, v2, 3, v6'); a('v_lshlrev_b32 v6, 10, v6')
        a('v_and_b32 v7, 3, v0'); a('v_lshl_add_u32 v6, v7, 3, v6')
        a('s_lshl_b32 s61, s38, 8'); a(f's_add_u32 s61, s61, {L_TILE}'); a('v_add_u32 v6, s61, v6')
        self.tr_read(6, WD, 8, 32, 4096)
        self.srd(52, 8, 1024)
        a('v_lshlrev_b32 v7, 2, v0'); a('s_lshl_b32 s60, s38, 8')
        a('buffer_load_dword v142, v7, s[52:55], s60 offen')
        Lp = self.lab('L_gp2')
        a('v_lshlrev_b32 v6, 3, v0'); a('s_lshl_b32 s60, s38, 9'); a(f's_add_u32 s60, s60, {WS_M + 1024*4}'); a('s_add_u32 s61, s60, 4096')
        a('v_lshrrev_b32 v7, 3, v0'); a('v_lshlrev_b32 v7, 7, v7'); a('v_and_b32 v8, 7, v0'); a('v_lshl_add_u32 v7, v8, 2, v7')
        a(f's_mov_b32 s62, {WS_ZF + 32}')
        a.label(Lp)
        a('buffer_load_dwordx2 v[8:9], v6, s[40:43], s60 offen sc1')
        a('buffer_load_dwordx2 v[10:11], v6, s[40:43], s60 offen offset:2048 sc1')
        a('buffer_load_dwordx2 v[12:13], v6, s[40:43], s61 offen sc1')
        a('buffer_load_dword v14, v7, s[40:43], s62 offen sc1')
        a('s_waitcnt vmcnt(0)')
        self.tag_check([9, 11, 13, 14], 16, Lp, sleep=8)
        for k, r in enumerate((8, 10, 12, 142)):
            a(f'v_and_b32 v{137+2*k}, 0xffff0000, v{r}'); a(f'v_lshlrev_b32 v{136+2*k}, 16, v{r}')
        a('v_add_f32 v140, 1.0, v140'); a('v_add_f32 v141, 1.0, v141'); self.round_pair(140, 141, 16)
        a('v_lshlrev_b32 v144, 3, v0'); a('s_lshl_b32 s72, s38, 9'); a(f's_add_u32 s72, s72, {WS_C}')
        a('s_add_u32 s73, s72, 4096'); a('s_add_u32 s74, s72, 8192'); a('s_add_u32 s75, s72, 12288')
        a('v_lshlrev_b32 v145, 2, v0'); a('s_lshl_b32 s61, s38, 8'); a(f's_add_u32 s61, s61, {L_VEC}'); a('v_add_u32 v145, s61, v145')
        a('v_lshlrev_b32 v4, 4, v2'); a(f'v_add_u32 v4, {L_VEC}, v4')
        a(f'v_mov_b32 v146, {L_ST}'); a('s_lshl_b32 s61, s38, 3'); a('v_add_u32 v147, s61, v146')
        a('s_barrier')
        L = h0_begin()
        t1_combine()
        a.label(L)
        Lp = self.lab('L_cp2')
        a.label(Lp)
        for gp in range(8): a(f'buffer_load_dwordx2 v[{8+2*gp}:{9+2*gp}], v144, s[40:43], s{72+gp//2} offen offset:{2048*(gp&1)} sc1')
        a('s_waitcnt vmcnt(0)')
        self.valid_check(range(8, 24), 24, Lp)
        self.stamp(8)
        for (x_, y_) in ((8, 10), (12, 14), (16, 18), (20, 22), (8, 12), (16, 20), (8, 16)):
            a(f'v_add_f32 v{x_}, v{x_}, v{y_}'); a(f'v_add_f32 v{x_+1}, v{x_+1}, v{y_+1}')
        a('v_fmac_f32 v142, v136, v8'); a('v_fmac_f32 v143, v137, v9')
        a('v_add_f32 v10, v142, v143'); a('v_mul_f32 v11, v142, v142'); a('v_fmac_f32 v11, v143, v143')
        self.allreduce([10, 11], 'v_add_f32', 12)
        a('s_mov_b64 exec, 1'); a('ds_write_b64 v147, v[10:11]'); a('s_mov_b64 exec, -1')
        a('s_waitcnt lgkmcnt(0)')
        a('s_barrier')
        a('ds_read_b128 v[12:15], v146'); a('ds_read_b128 v[16:19], v146 offset:16')
        a('s_waitcnt lgkmcnt(0)')
        a('v_add_f32 v12, v12, v14'); a('v_add_f32 v13, v13, v15'); a('v_add_f32 v16, v16, v18'); a('v_add_f32 v17, v17, v19')
        a('v_add_f32 v12, v12, v16'); a('v_add_f32 v13, v13, v17')
        a(f'v_mul_f32 v12, {hexf(1/512)}, v12'); a(f'v_mul_f32 v13, {hexf(1/512)}, v13')
        a('v_fma_f32 v13, -v12, v12, v13'); a(f'v_add_f32 v13, {hexf(1e-5)}, v13'); a('v_rsq_f32 v13, v13')
        a('v_sub_f32 v142, v142, v12'); a('v_sub_f32 v143, v143, v12')
        a('v_mul_f32 v142, v142, v13'); a('v_mul_f32 v143, v143, v13')
        a('v_fma_f32 v142, v142, v140, v138'); a('v_fma_f32 v143, v143, v141, v139')
        a('v_cvt_pk_bf16_f32 v8, v142, v143')
        a('ds_write_b32 v145, v8'); a('s_waitcnt lgkmcnt(0)')
        a('s_barrier')
        self.stamp(9)
        ACC2 = 136
        self.gemv(4, W1, 16, ACC2)
        self.round1(ACC2, ACC2 + 1)
        a(f's_mov_b32 s61, {hexf(-LOG2E)}')
        a(f'v_mul_f32 v8, s61, v{ACC2}'); a('v_exp_f32 v8, v8'); a('v_add_f32 v8, 1.0, v8'); a('v_rcp_f32 v8, v8')
        a(f'v_mul_f32 v8, v{ACC2}, v8'); self.round1(8, 9)
        a(f'v_mov_b32_dpp v9, v{ACC2} row_ror:8 {DPPF}')
        a('v_mul_f32 v8, v8, v9')
        a('v_cvt_pk_bf16_f32 v8, v8, v8')
        a('v_lshlrev_b32 v6, 1, v1'); a('s_lshl_b32 s61, s38, 4'); a(f's_add_u32 s61, s61, {L_AV}'); a('v_add_u32 v6, s61, v6')
        a('s_mov_b64 exec, 0xff'); a('ds_write_b16 v6, v8'); a('s_mov_b64 exec, -1')
        a('v_lshlrev_b32 v7, 4, v2'); a(f'v_add_u32 v7, {L_AV}, v7')
        a('s_mul_i32 s60, s36, 7'); a('s_add_u32 s60, s60, s37'); a('s_sub_u32 s60, s60, 22'); a('s_lshl_b32 s60, s60, 11')
        a('s_lshl_b32 s61, s38, 9'); a('s_add_u32 s60, s60, s61'); a(f's_add_u32 s60, s60, {WS_E}')
        a('s_mov_b32 s62, 0xffff0000'); a('s_mov_b32 s63, 0xffff0000'); a('s_mov_b32 s64, 0'); a('s_mov_b32 s65, -1')
        a('s_waitcnt lgkmcnt(0)')
        a('s_barrier')
        a('ds_read_b128 v[136:139], v7'); a('s_waitcnt lgkmcnt(0)')
        for jj in range(8):
            a(f'v_mfma_f32_16x16x32_bf16 v[{8+4*jj}:{11+4*jj}], v[136:139], v[{WD+4*jj}:{WD+4*jj+3}], 0')
        self.stamp(10)
        for half in range(2):
            b = 8 + 16 * half
            a(f'v_cndmask_b32 v{140+2*half}, v{b}, v{b+4}, s[62:63]'); a(f'v_cndmask_b32 v{141+2*half}, v{b+8}, v{b+12}, s[62:63]')
            a(f'v_cndmask_b32 v{140+2*half}, v{140+2*half}, v{141+2*half}, s[64:65]')
            a(f'v_or_b32 v{140+2*half}, 1, v{140+2*half}')
        a('v_lshlrev_b32 v6, 2, v0')
        a('buffer_store_dword v140, v6, s[40:43], s60 offen sc1')
        a('buffer_store_dword v142, v6, s[40:43], s60 offen offset:256 sc1')
        a('s_branch L_hend')

        a.label('L_tail_plain')
        a('s_barrier')
        a('s_cmp_lg_u32 s38, 0'); a('s_cbranch_scc1 L_hend')
        t1_combine()
        a.label('L_hend')
        self.stamp(11)
        self.stamp_flush(helper=True)
        a('s_endpgm')

    def build(self):
        a = self.a
        hdr = open('cdna_kernels/' + KNAME.replace('_kernel', '') + '.s.ref').read().split('\n')
        head = [l for l in hdr if l.startswith(';') and '@launch' not in l and 'Override' not in l and 'grid=ceil' not in l]
        a.raw('\n'.join(head))
        a.raw(f'; @launch grid=(256,1,1) block=(768,1,1) lds={LDS_SIZE}')
        a.raw('.amdgcn_target "amdgcn-amd-amdhsa--gfx950"\n.text')
        a.raw(f'.globl {KNAME}\n.p2align 8\n.type {KNAME},@function\n{KNAME}:')
        a('s_cmp_ge_u32 s2, 256'); a('s_cbranch_scc1 L_abort')
        a('s_load_dwordx16 s[8:23], s[0:1], 0'); a('s_load_dwordx8 s[24:31], s[0:1], 64'); a('s_load_dwordx4 s[32:35], s[0:1], 96')
        a('v_lshrrev_b32 v1, 6, v0'); a('v_readfirstlane_b32 s3, v1'); a('v_and_b32 v0, 63, v0')
        a('s_and_b32 s36, s2, 7'); a('s_lshr_b32 s37, s2, 3')
        self.stamp_init()
        a('s_waitcnt lgkmcnt(0)')
        self.srd(40, 34, WS_SIZE)
        a('s_cmp_ge_u32 s3, 8'); a('s_cbranch_scc1 L_helper')
        self.attention()
        a.label('L_helper')
        self.helper()
        a.label('L_abort')
        a('s_endpgm')
        n = a.pad()
        a.raw('.section .rodata,"a"\n.p2align 6')
        a.raw(f'.amdhsa_kernel {KNAME}\n  .amdhsa_next_free_vgpr 168\n  .amdhsa_next_free_sgpr 102\n  .amdhsa_accum_offset 168\n'
              '  .amdhsa_group_segment_fixed_size 0\n  .amdhsa_kernarg_size 112\n  .amdhsa_user_sgpr_count 2\n'
              '  .amdhsa_user_sgpr_kernarg_segment_ptr 1\n  .amdhsa_system_sgpr_workgroup_id_x 1\n'
              '  .amdhsa_float_denorm_mode_32 3\n.end_amdhsa_kernel')
        return a.text(), n

if __name__ == '__main__':
    import argparse
    p = argparse.ArgumentParser()
    p.add_argument('-o', default='cdna_kernels/' + KNAME.replace('_kernel', '') + '.s')
    p.add_argument('--thr', type=int, default=2); p.add_argument('--thr-deep', type=int, default=3)
    p.add_argument('--stamps', action='store_true'); p.add_argument('--ffn-nt', action='store_true')
    p.add_argument('--deep', default='ffn'); p.add_argument('--x-notile', action='store_true'); p.add_argument('--x-nopoll', action='store_true')
    p.add_argument('--qsleep', type=int, default=4); p.add_argument('--x-nokv', action='store_true')
    p.add_argument('--depth', default=''); p.add_argument('--kthr', default=''); p.add_argument('--late', default=''); p.add_argument('--dbgmode', action='store_true'); p.add_argument('--vthr', type=int, default=None); p.add_argument('--zfirst', default='')
    args = p.parse_args()
    kv = lambda t: {x.split('=')[0]: int(x.split('=')[1]) for x in t.split(',') if x}
    g = Gen(thr=args.thr, stamps=args.stamps, thr_deep=args.thr_deep, ffn_nt=args.ffn_nt, deep_roles=tuple(x for x in args.deep.split(',') if x),
            x_notile=args.x_notile, x_nopoll=args.x_nopoll, qsleep=args.qsleep, x_nokv=args.x_nokv, depth=kv(args.depth), kthr=kv(args.kthr), late_k=tuple(x for x in args.late.split(',') if x), vthr=args.vthr, zfirst=tuple(x for x in args.zfirst.split(',') if x))
    g.dbgmode = args.dbgmode
    t, n = g.build()
    open(args.o, 'w').write(t)
    print('wrote', args.o, 'lines', t.count('\n'), 'nops inserted', n)
```

```python
import sys, struct
sys.path.insert(0, 'gen')
from asmdsl import Asm

KNAME = 'adaLN_cond__gqa_block_cached__swiglu_ffn__decode_kernel'

WS_A = 0
WS_SM = 1 << 20
WS_B = WS_SM + 0
WS_C = WS_SM + 16384
WS_E = WS_SM + 32768
WS_M = (2 << 20)
WS_Q = (2 << 20) + 16384
WS_ZF = (2 << 20) + 65536
WS_EPOCH = (3 << 20)
WS_STAMP = 4 << 20
WS_SIZE = 8 << 20
L_TILE = 0
NVL = 10
L_VL = 65536
VLS = NVL * 1024
L_ML = L_VL + 8 * VLS
L_QL = L_ML + 256
L_VEC = L_QL + 1024
L_ST = L_VEC + 4096
L_AV = L_ST + 64
L_CNT = L_AV + 64
LDS_SIZE = L_CNT + 64
assert LDS_SIZE <= 163840

LOG2E = 1.4426950408889634
def f2u(x): return struct.unpack('<I', struct.pack('<f', x))[0]
def hexf(x): return '0x%08x' % f2u(x)
DPPF = 'row_mask:0xf bank_mask:0xf'
POLL_LIMIT = 400000

class Gen:
    def __init__(self, thr=2, stamps=False, thr_deep=3, ffn_nt=False, qk_extra=True, deep_roles=('ffn',), x_notile=False, x_nopoll=False,
                 qsleep=4, x_nokv=False, depth=None, kthr=None, late_k=(), vthr=None, zfirst=()):
        self.a = Asm(); self.thr = thr; self.stamps = stamps; self.thr_deep = thr_deep; self.ffn_nt = ffn_nt
        self.qk_extra = qk_extra; self.deep_roles = deep_roles; self.x_notile = x_notile; self.x_nopoll = x_nopoll
        self.vthr = vthr; self.zfirst = zfirst; self.depth = depth or {}; self.kthr = kthr or {}; self.late_k = late_k; self.qsleep = qsleep; self.x_nokv = x_nokv
        self.nlab = 0; self.dbgmode = False
    def lab(self, p='L'):
        self.nlab += 1
        return f'{p}_{self.nlab}'
    def srd(self, sd, sp, size):
        a = self.a
        a(f's_mov_b32 s{sd}, s{sp}'); a(f's_and_b32 s{sd+1}, s{sp+1}, 0xffff')
        a(f's_mov_b32 s{sd+2}, {size}'); a(f's_mov_b32 s{sd+3}, 0x00020000')
    def stamp(self, k):
        if not self.stamps: return
        a = self.a
        a('s_memrealtime s[70:71]'); a('s_waitcnt lgkmcnt(0)'); a(f's_mov_b32 s{84+k}, s70')
    def stamp_init(self):
        if not self.stamps: return
        for k in range(16): self.a(f's_mov_b32 s{84+k}, 0')
    def stamp_flush(self, helper=False):
        if not self.stamps: return
        a = self.a
        if self.dbgmode:
            L = self.lab('L_nodbg')
            self.srd(44, 32, 256)
            a('s_mov_b64 exec, 1'); a('v_mov_b32 v1, 0')
            if helper:
                a('s_cmp_lg_u32 s2, 232'); a(f's_cbranch_scc1 {L}'); a('s_cmp_lg_u32 s3, 8'); a(f's_cbranch_scc1 {L}')
                lst = [(k, 8 + i) for i, k in enumerate((0, 2, 3, 6, 7, 8, 9, 11))]
            else:
                a('s_cmp_lg_u32 s2, 0'); a(f's_cbranch_scc1 {L}'); a('s_cmp_lg_u32 s3, 0'); a(f's_cbranch_scc1 {L}')
                lst = [(k, k) for k in range(8)]
            for k, slot in lst:
                a(f'v_mov_b32 v2, s{84+k}')
                a(f'buffer_store_dword v2, v1, s[44:47], 0 offen offset:{4*slot}')
            a('s_waitcnt vmcnt(0)')
            a.label(L)
            return
        a('s_mov_b64 exec, 1')
        a('s_mul_i32 s70, s2, 12'); a('s_add_u32 s70, s70, s3'); a('s_lshl_b32 s70, s70, 6')
        a(f's_add_u32 s70, s70, {WS_STAMP}')
        a('v_mov_b32 v1, 0')
        for k in range(16):
            a(f'v_mov_b32 v2, s{84+k}')
            a(f'buffer_store_dword v2, v1, s[40:43], s70 offen offset:{4*k}')
        a('s_waitcnt vmcnt(0)')
    def round_pair(self, x, y, t):
        a = self.a
        a(f'v_cvt_pk_bf16_f32 v{t}, v{x}, v{y}')
        a(f'v_lshlrev_b32 v{x}, 16, v{t}')
        a(f'v_and_b32 v{y}, 0xffff0000, v{t}')
    def round_list(self, regs, t):
        for i in range(0, len(regs), 2):
            self.round_pair(regs[i], regs[i+1], t + (i // 2) % 2)
    def round1(self, x, t):
        a = self.a
        a(f'v_cvt_pk_bf16_f32 v{t}, v{x}, v{x}')
        a(f'v_lshlrev_b32 v{x}, 16, v{t}')
    def allreduce(self, regs, op, t, rows_only=False, quad=True, row=True):
        a = self.a
        if not rows_only:
            steps = []
            if quad: steps += ['quad_perm:[1,0,3,2]', 'quad_perm:[2,3,0,1]']
            if row: steps += ['row_half_mirror', 'row_mirror']
            for st in steps:
                for r in regs: a(f'{op}_dpp v{r}, v{r}, v{r} {st} {DPPF}')
        for sw in ('v_permlane16_swap_b32', 'v_permlane32_swap_b32'):
            for k, r in enumerate(regs): a(f'v_mov_b32 v{t+k}, v{r}')
            for k, r in enumerate(regs): a(f'{sw} v{r}, v{t+k}')
            for k, r in enumerate(regs): a(f'{op} v{r}, v{r}, v{t+k}')
    def poll_tail(self, loop_label, sleep=0):
        a = self.a
        if self.x_nopoll: return
        a('s_add_u32 s80, s80, 1'); a(f's_cmp_gt_u32 s80, {POLL_LIMIT}'); a('s_cbranch_scc1 L_abort')
        a('s_cmp_eq_u64 vcc, exec')
        if sleep:
            L = self.lab('L_pk')
            a(f's_cbranch_scc1 {L}'); a(f's_sleep {sleep}'); a(f's_branch {loop_label}'); a.label(L)
        else:
            a(f's_cbranch_scc0 {loop_label}')
    def valid_check(self, regs, t, loop_label, sleep=0):
        a = self.a
        regs = list(regs); cur = regs[0]; i = 1
        while i < len(regs):
            if i + 1 < len(regs):
                a(f'v_min3_u32 v{t}, v{cur}, v{regs[i]}, v{regs[i+1]}'); i += 2
            else:
                a(f'v_min_u32 v{t}, v{cur}, v{regs[i]}'); i += 1
            cur = t
        a(f'v_cmp_ne_u32 vcc, 0, v{cur}')
        self.poll_tail(loop_label, sleep)
    def tag_check(self, regs, t, loop_label, sleep=0):
        a = self.a
        regs = list(regs)
        for r in regs: a(f'v_xor_b32 v{r}, s81, v{r}')
        cur = regs[0]; i = 1
        while i < len(regs):
            if i + 1 < len(regs):
                a(f'v_or3_b32 v{t}, v{cur}, v{regs[i]}, v{regs[i+1]}'); i += 2
            else:
                a(f'v_or_b32 v{t}, v{cur}, v{regs[i]}'); i += 1
            cur = t
        a(f'v_cmp_eq_u32 vcc, 0, v{cur}')
        self.poll_tail(loop_label, sleep)
    def sentinel(self, soff, t, sleep=6):
        a = self.a
        if self.x_nopoll: return
        L = self.lab('L_sn'); L2 = self.lab('L_sn2')
        a(f'v_mov_b32 v{t}, 0'); a(f's_branch {L2}')
        a.label(L); a(f's_sleep {sleep}'); a.label(L2)
        a(f'buffer_load_dword v{t+1}, v{t}, s[40:43], s{soff} offen sc1')
        a('s_waitcnt vmcnt(0)')
        a(f'v_readfirstlane_b32 s82, v{t+1}')
        a('s_add_u32 s80, s80, 1'); a(f's_cmp_gt_u32 s80, {POLL_LIMIT}'); a('s_cbranch_scc1 L_abort')
        a('s_cmp_eq_u32 s82, s81'); a(f's_cbranch_scc0 {L}')
    def unpack8(self, src, dst):
        for k in range(4):
            self.a(f'v_lshlrev_b32 v{dst+2*k}, 16, v{src+k}')
            self.a(f'v_and_b32 v{dst+2*k+1}, 0xffff0000, v{src+k}')
    def pack8(self, src, dst):
        for k in range(4): self.a(f'v_cvt_pk_bf16_f32 v{dst+k}, v{src+2*k}, v{src+2*k+1}')
    def dma(self, srd, voff, soff, step, n, lds_s, nt=True, depth=64, first=True):
        a = self.a
        if self.x_notile: return
        ntf = ' nt' if nt else ''
        for i in range(n):
            if (i >= depth) or (not first): a(f's_waitcnt vmcnt({depth - 1})')
            a(f's_add_u32 m0, s{lds_s}, {i*1024}')
            a(f'buffer_load_dwordx4 v{voff}, s[{srd}:{srd+3}], s{soff} offen{ntf} lds')
            if i + 1 < n: a(f's_add_u32 s{soff}, s{soff}, {step}')
    def lds_sync(self, phase):
        a = self.a
        L = self.lab('L_ls')
        a(f'v_mov_b32 v38, {L_CNT}'); a('v_mov_b32 v39, 1')
        a('s_mov_b64 exec, 1'); a('ds_add_u32 v38, v39'); a('s_mov_b64 exec, -1')
        a.label(L)
        a('ds_read_b32 v39, v38'); a('s_waitcnt lgkmcnt(0)'); a('v_readfirstlane_b32 s82, v39')
        a('s_add_u32 s80, s80, 1'); a(f's_cmp_gt_u32 s80, {POLL_LIMIT}'); a('s_cbranch_scc1 L_abort')
        a(f's_cmp_lt_u32 s82, {4*phase}'); a(f's_cbranch_scc1 {L}')
    def tr_read(self, vaddr, W, n, step, half):
        a = self.a
        for i in range(n):
            a(f'ds_read_b64_tr_b16 v[{W+4*i}:{W+4*i+1}], v{vaddr} offset:{i*step}')
            a(f'ds_read_b64_tr_b16 v[{W+4*i+2}:{W+4*i+3}], v{vaddr} offset:{i*step+half}')
            if (i % 5) == 4: a('s_waitcnt lgkmcnt(4)')
        a('s_waitcnt lgkmcnt(0)')
    def gemv(self, vaddr, W, n, acc, Areg=8, nsets=8):
        a = self.a
        issued = 0
        for i in range(min(nsets, n)):
            a(f'ds_read_b128 v[{Areg+4*i}:{Areg+4*i+3}], v{vaddr} offset:{i*64}'); issued += 1
        for i in range(n):
            a(f's_waitcnt lgkmcnt({issued - i - 1})')
            A = Areg + 4 * (i % nsets); c = acc + 4 * (i % 2)
            src = f'v[{c}:{c+3}]' if i >= 2 else '0'
            a(f'v_mfma_f32_16x16x32_bf16 v[{c}:{c+3}], v[{A}:{A+3}], v[{W+4*i}:{W+4*i+3}], {src}')
            if issued < n:
                a(f'ds_read_b128 v[{A}:{A+3}], v{vaddr} offset:{issued*64}'); issued += 1
        a(f'v_add_f32 v{acc}, v{acc}, v{acc+4}')

    def attention(self):
        a = self.a; thr = self.thr
        BUF = 40; Q = 8; D = 12; T = 28; M0 = 3; M1 = 4; TMP = 36
        self.stamp(0)
        self.srd(48, 10, 0x4000000); self.srd(52, 12, 0x4000000)
        a('s_lshl_b32 s60, s36, 23'); a('s_lshl_b32 s61, s37, 18'); a('s_add_u32 s60, s60, s61')
        a('s_lshl_b32 s61, s3, 10'); a('s_add_u32 s60, s60, s61'); a('s_mov_b32 s61, s60')
        a('v_bfe_u32 v5, v0, 2, 2'); a('v_lshlrev_b32 v1, 8, v5')
        a('v_lshrrev_b32 v5, 4, v0'); a('v_lshl_add_u32 v1, v5, 6, v1')
        a('v_and_b32 v5, 3, v0'); a('v_lshl_add_u32 v1, v5, 4, v1')
        a('v_lshlrev_b32 v2, 4, v0')
        out = []
        def issue(tag, text):
            if not self.x_nokv: a(text)
            out.append(tag)
        def wait(tag):
            if tag in out:
                k = out.index(tag); n = len(out) - k - 1
                a(f's_waitcnt vmcnt({n})'); del out[:k+1]
        def waitn(n):
            if len(out) > n:
                a(f's_waitcnt vmcnt({n})'); del out[:len(out)-n]
        a(f'v_mov_b32 v{M0}, 0'); a(f'v_mov_b32 v{M1}, 0')
        a('v_mov_b32 v6, 0xffff'); a('v_mov_b32 v7, 0xffff0000')
        a('v_cmp_eq_u32 vcc, 0, v5'); a(f'v_cndmask_b32 v{M0}, v{M0}, v6, vcc')
        a('v_cmp_eq_u32 vcc, 1, v5'); a(f'v_cndmask_b32 v{M0}, v{M0}, v7, vcc')
        a('v_cmp_eq_u32 vcc, 2, v5'); a(f'v_cndmask_b32 v{M1}, v{M1}, v6, vcc')
        a('v_cmp_eq_u32 vcc, 3, v5'); a(f'v_cndmask_b32 v{M1}, v{M1}, v7, vcc')
        a('s_mov_b32 s56, 0xaaaaaaaa'); a('s_mov_b32 s57, 0xaaaaaaaa')
        a('s_mov_b32 s58, 0xcccccccc'); a('s_mov_b32 s59, 0xcccccccc')
        a(f'v_add_u32 v6, {L_QL}, v1')
        a(f's_mul_i32 s63, s3, {VLS}'); a(f's_add_u32 s63, s63, {L_VL}')
        lo_hi = {'wq': (0, 8), 'wo': (8, 16), 'mod': (16, 22), 'ffn': (22, 29), 'fin': (29, 32)}
        variants = sorted(set(self.kthr.get(r, thr) for r in lo_hi) - {thr})
        for r, (lo, hi) in lo_hi.items():
            th = self.kthr.get(r, thr)
            if th != thr:
                a(f's_sub_u32 s62, s37, {lo}'); a(f's_cmp_lt_u32 s62, {hi-lo}'); a(f's_cbranch_scc1 L_k{th}')
        def kloop(th):
            del out[:]
            a('s_barrier')
            for i in range(32):
                issue(('K', i), f'buffer_load_dwordx4 v[{BUF+4*i}:{BUF+4*i+3}], v1, s[48:51], s60 offen nt')
                if i < 31: a('s_add_u32 s60, s60, 8192')
                waitn(th)
            for j in range(NVL):
                a(f's_add_u32 m0, s63, {j*1024}')
                issue(('V', j), f'buffer_load_dwordx4 v2, s[52:55], s61 offen nt lds')
                a('s_add_u32 s61, s61, 8192')
                waitn(thr if j >= NVL - 2 else th)
        kloop(thr)
        for th in variants:
            a('s_branch L_kdone')
            a.label(f'L_k{th}')
            kloop(th)
        a.label('L_kdone')
        self.stamp(1)
        a('s_barrier')
        self.stamp(2)
        a(f'ds_read_b128 v[{Q}:{Q+3}], v6')
        a('s_waitcnt lgkmcnt(0)')
        nv = [NVL]
        vreg = lambda j: BUF + 4 * (j - NVL)
        def issueV():
            j = nv[0]
            if j >= 32: return
            issue(('V', j), f'buffer_load_dwordx4 v[{vreg(j)}:{vreg(j)+3}], v2, s[52:55], s61 offen nt')
            if j < 31: a('s_add_u32 s61, s61, 8192')
            nv[0] += 1
        for t in range(8):
            for u in range(4):
                i = 4 * t + u
                a(f'v_mfma_f32_16x16x32_bf16 v[{D+4*u}:{D+4*u+3}], v[{BUF+4*i}:{BUF+4*i+3}], v[{Q}:{Q+3}], 0')
            vth = self.vthr if self.vthr is not None else thr
            if t == 0:
                for _ in range(min(4, vth + 1)): issueV()
            if t >= 1 and nv[0] - NVL < vth + 1 + (1 if (t >= 4 and self.qk_extra) else 0): issueV()
            for x in range(4):
                d = lambda v: D + 4 * (v ^ x) + v
                a(f'v_cndmask_b32 v{TMP+0}, v{d(0)}, v{d(1)}, s[56:57]')
                a(f'v_cndmask_b32 v{TMP+1}, v{d(2)}, v{d(3)}, s[56:57]')
                if x == 0:
                    a(f'v_cndmask_b32 v{T+t}, v{TMP+0}, v{TMP+1}, s[58:59]')
                else:
                    a(f'v_cndmask_b32 v{TMP+2+(x&1)}, v{TMP+0}, v{TMP+1}, s[58:59]')
                    qp = {1: '[1,0,3,2]', 2: '[2,3,0,1]', 3: '[3,2,1,0]'}[x]
                    a(f'v_add_f32_dpp v{T+t}, v{TMP+2+(x&1)}, v{T+t} quad_perm:{qp} {DPPF}')
        self.stamp(3)
        Ts = list(range(T, T + 8))
        self.round_list(Ts, TMP)
        a(f's_mov_b32 s62, {hexf(128 ** -0.5)}')
        for r in Ts: a(f'v_mul_f32 v{r}, s62, v{r}')
        self.round_list(Ts, TMP)
        MX = 5; SUM = 6
        a(f'v_max3_f32 v{MX}, v{T}, v{T+1}, v{T+2}'); a(f'v_max3_f32 v{MX}, v{MX}, v{T+3}, v{T+4}')
        a(f'v_max3_f32 v{MX}, v{MX}, v{T+5}, v{T+6}'); a(f'v_max_f32 v{MX}, v{MX}, v{T+7}')
        self.allreduce([MX], 'v_max_f32', TMP, row=False)
        a(f's_mov_b32 s62, {hexf(LOG2E)}')
        a(f'v_mul_f32 v{MX}, s62, v{MX}')
        for r in Ts: a(f'v_fma_f32 v{r}, v{r}, s62, -v{MX}')
        for r in Ts: a(f'v_exp_f32 v{r}, v{r}')
        a(f'v_add_f32 v{SUM}, v{T}, v{T+1}')
        for r in Ts[2:]: a(f'v_add_f32 v{SUM}, v{SUM}, v{r}')
        for r in Ts: a(f'v_cvt_pk_bf16_f32 v{r}, v{r}, v{r}')
        self.allreduce([SUM], 'v_add_f32', TMP, row=False)
        self.stamp(4)
        ACC = 12; AOP = 20; VT = [24, 36]
        a('v_add_u32 v7, s63, v2')
        for j in range(NVL): wait(('V', j))
        a(f'ds_read_b128 v[{VT[0]}:{VT[0]+3}], v7')
        for i in range(32):
            t = i >> 2; u = i & 3
            A = AOP + 2 * (i & 1)
            a(f'v_and_b32_dpp v{A}, v{T+t}, v{M0} quad_perm:[{u},{u},{u},{u}] {DPPF}')
            a(f'v_and_b32_dpp v{A+1}, v{T+t}, v{M1} quad_perm:[{u},{u},{u},{u}] {DPPF}')
            if i < NVL:
                vb = VT[i & 1]
                if i + 1 < NVL:
                    nb = VT[(i + 1) & 1]
                    a(f'ds_read_b128 v[{nb}:{nb+3}], v7 offset:{(i+1)*1024}'); a('s_waitcnt lgkmcnt(1)')
                else:
                    a('s_waitcnt lgkmcnt(0)')
                if i >= NVL - thr - 1: pass
            else:
                wait(('V', i)); issueV()
                vb = vreg(i)
            c1 = f'v[{ACC}:{ACC+3}]' if i else '0'
            c2 = f'v[{ACC+4}:{ACC+7}]' if i else '0'
            a(f'v_mfma_f32_16x16x16_bf16 v[{ACC}:{ACC+3}], v[{A}:{A+1}], v[{vb}:{vb+1}], {c1}')
            a(f'v_mfma_f32_16x16x16_bf16 v[{ACC+4}:{ACC+7}], v[{A}:{A+1}], v[{vb+2}:{vb+3}], {c2}')
        self.stamp(5)
        a('v_lshlrev_b32 v7, 5, v0'); a('v_add_u32 v7, s63, v7')
        a('v_lshrrev_b32 v8, 2, v0'); a('v_lshlrev_b32 v8, 5, v8')
        a('s_lshl_b32 s62, s3, 2'); a(f's_add_u32 s62, s62, {L_ML}'); a('v_add_u32 v8, s62, v8')
        a('v_and_b32 v9, 0x33, v0'); a('v_cmp_eq_u32 vcc, 0, v9')
        a(f'ds_write_b128 v7, v[{ACC}:{ACC+3}]'); a(f'ds_write_b128 v7, v[{ACC+4}:{ACC+7}] offset:16')
        a('s_and_saveexec_b64 s[64:65], vcc')
        a(f'ds_write_b32 v8, v{MX}'); a(f'ds_write_b32 v8, v{SUM} offset:128')
        a('s_mov_b64 exec, s[64:65]')
        a('s_lshr_b32 s62, s3, 1'); a('s_lshl_b32 s62, s62, 5'); a(f's_add_u32 s62, s62, {L_ML}')
        a('v_mov_b32 v1, s62')
        a('v_lshrrev_b32 v2, 4, v0'); a('v_lshl_add_u32 v3, v2, 3, v1'); a('v_and_b32 v4, 15, v0')
        a(f's_mov_b32 s63, {2*VLS}'); a('v_mul_lo_u32 v5, v2, s63'); a('v_lshl_add_u32 v5, v4, 4, v5')
        a('s_lshl_b32 s63, s3, 8'); a(f's_add_u32 s63, s63, {L_VL}'); a('v_add_u32 v5, s63, v5')
        a('v_lshrrev_b32 v6, 2, v4'); a('v_lshlrev_b32 v6, 12, v6')
        a('v_and_b32 v7, 3, v4'); a('v_lshl_add_u32 v6, v7, 5, v6')
        a('s_lshl_b32 s62, s36, 5'); a('s_lshl_b32 s63, s3, 2'); a('s_add_u32 s62, s62, s63')
        a('s_lshl_b32 s62, s62, 5'); a('s_add_u32 s62, s62, s37'); a('s_lshl_b32 s62, s62, 7')
        a('s_waitcnt lgkmcnt(0)')
        a('s_barrier')
        self.stamp(6)
        a('ds_read_b128 v[8:11], v1'); a('ds_read_b128 v[12:15], v1 offset:16')
        a('ds_read_b64 v[24:25], v3')
        a('ds_read_b128 v[28:31], v5'); a(f'ds_read_b128 v[32:35], v5 offset:{VLS}')
        a('ds_read_b128 v[16:19], v1 offset:128'); a('ds_read_b128 v[20:23], v1 offset:144')
        a('s_waitcnt lgkmcnt(4)')
        a('v_max3_f32 v26, v8, v9, v10'); a('v_max3_f32 v26, v26, v11, v12'); a('v_max3_f32 v26, v26, v13, v14')
        a('v_max_f32 v26, v26, v15')
        a('v_sub_f32 v24, v24, v26'); a('v_sub_f32 v25, v25, v26')
        for k in range(8): a(f'v_sub_f32 v{8+k}, v{8+k}, v26')
        a('v_exp_f32 v24, v24'); a('v_exp_f32 v25, v25')
        for k in range(8): a(f'v_exp_f32 v{8+k}, v{8+k}')
        a('s_waitcnt lgkmcnt(2)')
        for k in range(4): a(f'v_mul_f32 v{28+k}, v24, v{28+k}')
        for k in range(4): a(f'v_fmac_f32 v{28+k}, v25, v{32+k}')
        a('s_waitcnt lgkmcnt(0)')
        a('v_mul_f32 v27, v8, v16')
        for k in range(1, 8): a(f'v_fmac_f32 v27, v{8+k}, v{16+k}')
        self.allreduce([28, 29, 30, 31], 'v_add_f32', 36, rows_only=True)
        a('v_rcp_f32 v8, v27'); a('v_log_f32 v9, v27')
        a('v_add_f32 v9, v9, v26'); a('v_or_b32 v9, 1, v9')
        for k in range(4): a(f'v_mul_f32 v{28+k}, v8, v{28+k}')
        a('v_or_b32 v12, 1, v28'); a('v_mov_b32 v13, v9'); a('v_or_b32 v14, 1, v29'); a('v_mov_b32 v15, v9')
        a('v_or_b32 v16, 1, v30'); a('v_mov_b32 v17, v9'); a('v_or_b32 v18, 1, v31'); a('v_mov_b32 v19, v9')
        a('s_mov_b64 exec, 0xffff')
        a('buffer_store_dwordx4 v[12:15], v6, s[40:43], s62 offen sc1')
        a('buffer_store_dwordx4 v[16:19], v6, s[40:43], s62 offen offset:16 sc1')
        self.stamp(7)
        self.stamp_flush()
        a('s_endpgm')

    def helper(self):
        a = self.a
        W1 = 40; W2 = 104; ACC = 104
        a('s_sub_u32 s38, s3, 8')
        self.stamp(0)
        a('s_mov_b32 s80, 0')
        a(f's_add_u32 s78, s34, {WS_EPOCH}'); a('s_addc_u32 s79, s35, 0')
        a('s_load_dword s83, s[78:79], 0')
        a('v_and_b32 v1, 15, v0'); a('v_lshrrev_b32 v2, 4, v0')
        Lz = self.lab('L_noinit')
        a('s_cmp_lg_u32 s38, 0'); a(f's_cbranch_scc1 {Lz}')
        a(f'v_mov_b32 v38, {L_CNT}'); a('v_mov_b32 v39, 0'); a('ds_write_b32 v38, v39')
        a.label(Lz)
        a('s_lshl_b32 s67, s38, 10'); a(f's_add_u32 s67, s67, {L_VEC}')
        a('v_lshlrev_b32 v4, 4, v2'); a('v_add_u32 v4, s67, v4')
        a('v_lshlrev_b32 v5, 4, v0'); a('v_add_u32 v5, s67, v5')
        a('s_cmp_lt_u32 s37, 8'); a('s_cbranch_scc1 L_role_wq')
        a('s_cmp_lt_u32 s37, 16'); a('s_cbranch_scc1 L_role_wo')
        a('s_cmp_lt_u32 s37, 22'); a('s_cbranch_scc1 L_role_mod')
        a('s_cmp_lt_u32 s37, 29'); a('s_cbranch_scc1 L_role_ffn')
        a('s_branch L_role_fin')

        def h0_begin():
            L = self.lab('L_h0e')
            a('s_cmp_lg_u32 s38, 0'); a(f's_cbranch_scc1 {L}')
            return L
        def barrier0():
            a('s_waitcnt lgkmcnt(0)')
            a('s_barrier')
        def get_tag():
            a('s_waitcnt lgkmcnt(0)')
            a('s_mul_i32 s81, s83, 0x9E3779B1'); a('s_add_u32 s81, s81, 0x7F4A7C15')
        def zero_stores(role):
            L = h0_begin()
            for k in range(4): a(f'v_mov_b32 v{8+k}, 0')
            a('v_lshlrev_b32 v6, 4, v0')
            a('s_lshl_b32 s60, s36, 5'); a('s_add_u32 s60, s60, s37'); a('s_lshl_b32 s60, s60, 12')
            for k in range(4): a(f'buffer_store_dwordx4 v[8:11], v6, s[40:43], s60 offen offset:{1024*k} sc1')
            if role == 'ffn':
                a('s_mul_i32 s60, s36, 7'); a('s_add_u32 s60, s60, s37'); a('s_sub_u32 s60, s60, 22'); a('s_lshl_b32 s60, s60, 11')
                a(f's_add_u32 s60, s60, {WS_E}')
                a('buffer_store_dwordx4 v[8:11], v6, s[40:43], s60 offen sc1')
                a('buffer_store_dwordx4 v[8:11], v6, s[40:43], s60 offen offset:1024 sc1')
            a('s_lshl_b32 s60, s36, 11'); a('s_lshl_b32 s61, s37, 6'); a('s_add_u32 s60, s60, s61'); a(f's_add_u32 s60, s60, {WS_B}')
            a('s_mov_b64 exec, 0xf')
            a('buffer_store_dwordx4 v[8:11], v6, s[40:43], s60 offen sc1')
            if role == 'wo':
                a('s_lshl_b32 s60, s36, 11'); a('s_sub_u32 s61, s37, 8'); a('s_lshl_b32 s61, s61, 8'); a('s_add_u32 s60, s60, s61')
                a(f's_add_u32 s60, s60, {WS_C}'); a('s_mov_b64 exec, 0xffff')
                a('buffer_store_dwordx4 v[8:11], v6, s[40:43], s60 offen sc1')
            a('s_mov_b64 exec, -1')
            a.label(L)
        def zsignal():
            L = h0_begin()
            a('s_waitcnt vmcnt(0)')
            a('s_lshl_b32 s60, s36, 7'); a('s_lshl_b32 s61, s37, 2'); a('s_add_u32 s60, s60, s61'); a(f's_add_u32 s60, s60, {WS_ZF}')
            a('s_mov_b64 exec, 1')
            a('v_mov_b32 v38, 0'); a('v_mov_b32 v39, s81')
            a('buffer_store_dword v39, v38, s[40:43], s60 offen sc1')
            a('s_mov_b64 exec, -1')
            a.label(L)
        def line_setup(ptr, size, rs, col_s):
            self.srd(48, ptr, size)
            a('v_lshrrev_b32 v158, 3, v0'); a(f's_mov_b32 s61, {rs}'); a('v_mul_lo_u32 v158, v158, s61')
            a('v_and_b32 v7, 7, v0'); a('v_lshl_add_u32 v158, v7, 4, v158')
            a(f's_mul_i32 s61, s38, {128*rs}'); a(f's_add_u32 s72, s{col_s}, s61')
            a('s_lshl_b32 s66, s38, 14'); a(f's_add_u32 s66, s66, {L_TILE}')
            def iss(role):
                if role in self.zfirst:
                    zero_stores(role); get_tag(); zsignal()
                if role not in self.late_k: barrier0()
                self.dma(48, 158, 72, 8 * rs, 16, 66, depth=self.depth.get(role, 64))
                if role in self.late_k: barrier0()
            return iss
        def line_finish():
            self.stamp(1)
            a('s_waitcnt vmcnt(0)')
            self.stamp(12)
            self.lds_sync(1)
            a('v_lshrrev_b32 v3, 2, v1'); a('v_lshl_add_u32 v3, v2, 3, v3'); a('v_lshlrev_b32 v3, 7, v3')
            a('v_and_b32 v7, 3, v0'); a('v_lshl_add_u32 v3, v7, 3, v3')
            a('s_lshl_b32 s61, s38, 5'); a(f's_add_u32 s61, s61, {L_TILE}'); a('v_add_u32 v3, s61, v3')
            self.tr_read(3, W1, 16, 4096, 512)
            self.stamp(14)
        def publish16(base_s, val, nl=0xffff):
            a(f'v_or_b32 v{val}, 1, v{val}')
            a('v_lshlrev_b32 v6, 2, v1')
            a(f's_mov_b64 exec, {nl}')
            a(f'buffer_store_dword v{val}, v6, s[40:43], s{base_s} offen sc1')
            a('s_mov_b64 exec, -1')
        def publish_tag(base_s, val):
            a(f'v_mov_b32_dpp v{val+1}, v{val} quad_perm:[1,1,3,3] {DPPF}')
            a(f'v_cvt_pk_bf16_f32 v{val}, v{val}, v{val+1}')
            a(f'v_mov_b32 v{val+1}, s81')
            a('v_lshlrev_b32 v6, 2, v1')
            a('s_mov_b64 exec, 0x5555')
            a(f'buffer_store_dwordx2 v[{val}:{val+1}], v6, s[40:43], s{base_s} offen sc1')
            a('s_mov_b64 exec, -1')
        def qgather_and_barrier1():
            L = h0_begin()
            a('s_and_b32 s61, s2, 31'); a('s_lshl_b32 s61, s61, 7'); a(f's_add_u32 s61, s61, {WS_M + 4}')
            self.sentinel(61, 8, sleep=8)
            self.stamp(2)
            a('s_lshl_b32 s60, s36, 11'); a(f's_add_u32 s60, s60, {WS_Q}')
            Lp = self.lab('L_qp')
            a('v_lshlrev_b32 v6, 5, v0'); a('v_and_b32 v7, 31, v0'); a('v_lshlrev_b32 v7, 2, v7')
            a('s_lshl_b32 s61, s36, 7'); a(f's_add_u32 s61, s61, {WS_ZF}')
            a.label(Lp)
            a('buffer_load_dwordx4 v[8:11], v6, s[40:43], s60 offen sc1')
            a('buffer_load_dwordx4 v[12:15], v6, s[40:43], s60 offen offset:16 sc1')
            a('buffer_load_dword v17, v7, s[40:43], s61 offen sc1')
            a('s_waitcnt vmcnt(0)')
            self.tag_check([9, 11, 13, 15, 17], 16, Lp, sleep=self.qsleep)
            a('v_mov_b32 v9, v10'); a('v_mov_b32 v10, v12'); a('v_mov_b32 v11, v14')
            a('v_lshlrev_b32 v6, 4, v0'); a(f'v_add_u32 v6, {L_QL}, v6')
            a('ds_write_b128 v6, v[8:11]'); a('s_waitcnt lgkmcnt(0)')
            self.stamp(3)
            a.label(L)
            a('s_barrier')
        def t1_combine():
            Lp = self.lab('L_t1')
            a('v_lshlrev_b32 v6, 7, v2'); a('v_lshl_add_u32 v6, v1, 3, v6')
            a('s_lshl_b32 s60, s36, 5'); a('s_add_u32 s60, s60, s37'); a('s_lshl_b32 s60, s60, 12')
            a('s_lshl_b32 s62, s36, 11'); a('s_lshl_b32 s61, s37, 6'); a('s_add_u32 s62, s62, s61'); a(f's_add_u32 s62, s62, {WS_B}')
            a.label(Lp)
            for i in range(8): a(f'buffer_load_dwordx2 v[{8+2*i}:{9+2*i}], v6, s[40:43], s60 offen offset:{512*i} sc1')
            a('s_waitcnt vmcnt(0)')
            self.valid_check(range(8, 24), 24, Lp)
            self.stamp(6)
            a('v_max3_f32 v24, v9, v11, v13'); a('v_max3_f32 v24, v24, v15, v17'); a('v_max3_f32 v24, v24, v19, v21')
            a('v_max_f32 v24, v24, v23')
            self.allreduce([24], 'v_max_f32', 26, rows_only=True)
            for i in range(8): a(f'v_sub_f32 v{9+2*i}, v{9+2*i}, v24')
            for i in range(8): a(f'v_exp_f32 v{9+2*i}, v{9+2*i}')
            a('v_mul_f32 v24, v9, v8'); a('v_mov_b32 v25, v9')
            for i in range(1, 8):
                a(f'v_fmac_f32 v24, v{9+2*i}, v{8+2*i}'); a(f'v_add_f32 v25, v25, v{9+2*i}')
            self.allreduce([24, 25], 'v_add_f32', 26, rows_only=True)
            a('v_rcp_f32 v25, v25'); a('v_mul_f32 v24, v24, v25')
            publish16(62, 24)
            self.stamp(7)

        a.label('L_role_wq')
        a('s_lshl_b32 s62, s36, 10'); a('s_lshl_b32 s61, s37, 7'); a('s_add_u32 s62, s62, s61')
        iss = line_setup(14, 512 * 4096 * 2, 8192, 62)
        self.srd(52, 8, 1024); a('v_lshlrev_b32 v7, 4, v0')
        a('buffer_load_dwordx4 v[12:15], v7, s[52:55], 0 offen')
        iss('wq'); line_finish(); zero_stores('wq'); get_tag()
        X = 16
        self.unpack8(12, X)
        a(f'v_add_f32 v24, v{X}, v{X+1}')
        for k in range(2, 8): a(f'v_add_f32 v24, v24, v{X+k}')
        self.allreduce([24], 'v_add_f32', 26)
        a(f'v_mul_f32 v24, {hexf(1/512)}, v24')
        for k in range(8): a(f'v_sub_f32 v{28+k}, v{X+k}, v24')
        a('v_mul_f32 v25, v28, v28')
        for k in range(1, 8): a(f'v_fmac_f32 v25, v{28+k}, v{28+k}')
        self.allreduce([25], 'v_add_f32', 26)
        a(f'v_mul_f32 v25, {hexf(1/512)}, v25')
        self.round_pair(24, 25, 26)
        a(f'v_add_f32 v25, {hexf(1e-5)}, v25'); self.round1(25, 26)
        a('v_sqrt_f32 v25, v25'); self.round1(25, 26)
        a('v_rcp_f32 v25, v25')
        for k in range(8): a(f'v_sub_f32 v{X+k}, v{X+k}, v24')
        self.round_list(list(range(X, X+8)), 26)
        for k in range(8): a(f'v_mul_f32 v{X+k}, v{X+k}, v25')
        self.round_list(list(range(X, X+8)), 26)
        zsignal()
        self.stamp(4)
        Lp = self.lab('L_mp')
        a('v_lshlrev_b32 v6, 5, v0'); a(f's_mov_b32 s60, {WS_M}')
        a.label(Lp)
        a('buffer_load_dwordx4 v[104:107], v6, s[40:43], s60 offen sc1')
        a('buffer_load_dwordx4 v[108:111], v6, s[40:43], s60 offen offset:16 sc1')
        a('buffer_load_dwordx4 v[112:115], v6, s[40:43], s60 offen offset:2048 sc1')
        a('buffer_load_dwordx4 v[116:119], v6, s[40:43], s60 offen offset:2064 sc1')
        a('s_waitcnt vmcnt(0)')
        self.tag_check([105, 107, 109, 111, 113, 115, 117, 119], 8, Lp, sleep=4)
        self.stamp(5)
        for k in range(8):
            a(f'v_lshlrev_b32 v{24+2*k}, 16, v{104+2*k}'); a(f'v_and_b32 v{25+2*k}, 0xffff0000, v{104+2*k}')
        for k in range(8): a(f'v_add_f32 v{32+k}, 1.0, v{32+k}')
        self.round_list(list(range(32, 40)), 8)
        for k in range(8): a(f'v_mul_f32 v{X+k}, v{X+k}, v{32+k}')
        self.round_list(list(range(X, X+8)), 8)
        for k in range(8): a(f'v_add_f32 v{X+k}, v{X+k}, v{24+k}')
        self.pack8(X, 8)
        a('ds_write_b128 v5, v[8:11]'); a('s_waitcnt lgkmcnt(0)')
        self.gemv(4, W1, 16, ACC)
        a('s_lshl_b32 s60, s36, 11'); a('s_lshl_b32 s61, s37, 8'); a('s_add_u32 s60, s60, s61')
        a('s_lshl_b32 s61, s38, 6'); a('s_add_u32 s60, s60, s61'); a(f's_add_u32 s60, s60, {WS_Q}')
        publish_tag(60, ACC)
        self.stamp(8)
        qgather_and_barrier1()
        a('s_branch L_tail_plain')

        a.label('L_role_wo')
        a('s_lshl_b32 s62, s36, 19'); a('s_sub_u32 s61, s37, 8'); a('s_lshl_b32 s61, s61, 7'); a('s_add_u32 s62, s62, s61')
        iss = line_setup(16, 4096 * 512 * 2, 1024, 62)
        iss('wo')
        if 'wo' not in self.zfirst: zero_stores('wo'); get_tag()
        line_finish()
        if 'wo' not in self.zfirst: zsignal()
        qgather_and_barrier1()
        a('s_barrier')
        L = h0_begin()
        t1_combine()
        Lp = self.lab('L_bp')
        a('v_lshlrev_b32 v6, 5, v0'); a('s_lshl_b32 s60, s36, 11'); a(f's_add_u32 s60, s60, {WS_B}')
        a.label(Lp)
        a('buffer_load_dwordx4 v[8:11], v6, s[40:43], s60 offen sc1')
        a('buffer_load_dwordx4 v[12:15], v6, s[40:43], s60 offen offset:16 sc1')
        a('s_waitcnt vmcnt(0)')
        self.valid_check(range(8, 16), 16, Lp)
        self.stamp(8)
        self.pack8(8, 16)
        a('v_lshlrev_b32 v6, 4, v0'); a(f'v_add_u32 v6, {L_VEC}, v6')
        a('ds_write_b128 v6, v[16:19]'); a('s_waitcnt lgkmcnt(0)')
        a.label(L)
        a('v_lshlrev_b32 v4, 4, v2'); a(f'v_add_u32 v4, {L_VEC}, v4')
        a('s_lshl_b32 s60, s36, 11'); a('s_sub_u32 s61, s37, 8'); a('s_lshl_b32 s61, s61, 8'); a('s_add_u32 s60, s60, s61')
        a('s_lshl_b32 s61, s38, 6'); a('s_add_u32 s60, s60, s61'); a(f's_add_u32 s60, s60, {WS_C}')
        a('s_barrier')
        self.gemv(4, W1, 16, ACC)
        publish16(60, ACC)
        self.stamp(9)
        a('s_branch L_hend')

        a.label('L_role_mod')
        a('s_mul_i32 s62, s36, 768'); a('s_sub_u32 s61, s37, 16'); a('s_lshl_b32 s61, s61, 7'); a('s_add_u32 s62, s62, s61')
        a('s_lshr_b32 s68, s62, 1'); a('s_lshl_b32 s61, s38, 4'); a('s_add_u32 s68, s68, s61')
        iss = line_setup(28, 512 * 3072 * 2, 6144, 62)
        self.srd(52, 26, 1024); a('v_lshlrev_b32 v7, 4, v0')
        a('buffer_load_dwordx4 v[12:15], v7, s[52:55], 0 offen')
        iss('mod'); line_finish(); zero_stores('mod'); get_tag()
        X = 16
        self.unpack8(12, X)
        a(f's_mov_b32 s61, {hexf(-LOG2E)}')
        for k in range(8): a(f'v_mul_f32 v{24+k}, s61, v{X+k}')
        for k in range(8): a(f'v_exp_f32 v{24+k}, v{24+k}')
        for k in range(8): a(f'v_add_f32 v{24+k}, 1.0, v{24+k}')
        for k in range(8): a(f'v_rcp_f32 v{24+k}, v{24+k}')
        for k in range(8): a(f'v_mul_f32 v{X+k}, v{X+k}, v{24+k}')
        self.pack8(X, 8)
        a('ds_write_b128 v5, v[8:11]'); a('s_waitcnt lgkmcnt(0)')
        self.gemv(4, W1, 16, ACC)
        a('s_lshl_b32 s60, s68, 2'); a(f's_add_u32 s60, s60, {WS_M}')
        publish_tag(60, ACC)
        self.stamp(8)
        zsignal()
        qgather_and_barrier1()
        a('s_mov_b32 s75, 3')
        a('s_cmp_eq_u32 s37, 21'); a('s_cbranch_scc1 L_fin_common')
        a('s_branch L_tail_plain')

        a.label('L_role_fin')
        if 'fin' in self.zfirst:
            zero_stores('fin'); get_tag(); zsignal(); barrier0()
        else:
            barrier0(); zero_stores('fin'); get_tag(); zsignal()
        qgather_and_barrier1()
        a('s_sub_u32 s75, s37, 29')
        a.label('L_fin_common')
        L = h0_begin()
        a('s_lshl_b32 s69, s36, 6'); a('s_lshl_b32 s61, s75, 4'); a('s_add_u32 s69, s69, s61')
        self.srd(52, 8, 1024)
        a('v_lshlrev_b32 v6, 1, v1'); a('s_lshl_b32 s60, s69, 1')
        a('buffer_load_ushort v160, v6, s[52:55], s60 offen')
        Lp = self.lab('L_gp')
        a('v_and_b32 v6, 14, v1'); a('v_lshlrev_b32 v6, 2, v6'); a('s_lshl_b32 s60, s69, 2'); a(f's_add_u32 s60, s60, {WS_M}')
        a(f's_add_u32 s61, s60, {1024*4}'); a(f's_add_u32 s60, s60, {2560*4}')
        a('v_lshrrev_b32 v7, 3, v0'); a('v_lshlrev_b32 v7, 7, v7'); a('v_and_b32 v8, 7, v0')
        a('v_min_u32 v9, 6, v8'); a('v_lshl_add_u32 v15, v9, 2, v7'); a('v_lshl_add_u32 v7, v8, 2, v7')
        a(f's_mov_b32 s62, {WS_ZF + 32}')
        a.label(Lp)
        a('buffer_load_dwordx2 v[8:9], v6, s[40:43], s61 offen sc1')
        a('buffer_load_dwordx2 v[10:11], v6, s[40:43], s60 offen sc1')
        a('buffer_load_dword v13, v7, s[40:43], s62 offen sc1')
        a('buffer_load_dword v14, v15, s[40:43], s62 offen offset:56 sc1')
        a('s_waitcnt vmcnt(0)')
        self.tag_check([9, 11, 13, 14], 12, Lp, sleep=8)
        a('v_lshlrev_b32 v160, 16, v160')
        a('v_and_b32 v12, 1, v0'); a('v_cmp_eq_u32 vcc, 1, v12')
        a('v_lshlrev_b32 v161, 16, v8'); a('v_and_b32 v8, 0xffff0000, v8'); a('v_cndmask_b32 v161, v161, v8, vcc')
        a('v_lshlrev_b32 v162, 16, v10'); a('v_and_b32 v10, 0xffff0000, v10'); a('v_cndmask_b32 v162, v162, v10, vcc')
        a.label(L)
        a('s_barrier')
        a('s_cmp_lg_u32 s38, 0'); a('s_cbranch_scc1 L_hend')
        t1_combine()
        Lp = self.lab('L_cp')
        a('v_lshlrev_b32 v6, 2, v1'); a('s_lshl_b32 s60, s69, 2'); a(f's_add_u32 s60, s60, {WS_C}')
        a(f's_add_u32 s61, s60, 4096'); a(f's_add_u32 s62, s60, 8192'); a(f's_add_u32 s63, s60, 12288')
        a.label(Lp)
        for gp in range(8): a(f'buffer_load_dword v{8+gp}, v6, s[40:43], s{60+gp//2} offen offset:{2048*(gp&1)} sc1')
        a('s_waitcnt vmcnt(0)')
        self.valid_check(range(8, 16), 16, Lp, sleep=2)
        a('v_add_f32 v8, v8, v9'); a('v_add_f32 v10, v10, v11'); a('v_add_f32 v12, v12, v13'); a('v_add_f32 v14, v14, v15')
        a('v_add_f32 v8, v8, v10'); a('v_add_f32 v12, v12, v14'); a('v_add_f32 v8, v8, v12')
        a('v_fmac_f32 v160, v161, v8')
        self.stamp(8)
        self.srd(52, 30, 1024)
        a('v_lshlrev_b32 v6, 11, v2'); a('v_lshl_add_u32 v6, v1, 2, v6')
        a('s_lshl_b32 s76, s69, 1')
        a('s_lshl_b32 s60, s69, 2'); a(f's_add_u32 s60, s60, {WS_E}')
        soffs = [60 + i if i < 10 else 72 + (i - 10) for i in range(14)]
        for i in range(1, 14): a(f's_add_u32 s{soffs[i]}, s60, {8192*i}')
        Lp = self.lab('L_ep')
        a.label(Lp)
        for i in range(14): a(f'buffer_load_dword v{8+i}, v6, s[40:43], s{soffs[i]} offen sc1')
        a('s_waitcnt vmcnt(0)')
        self.valid_check(range(8, 22), 24, Lp)
        self.stamp(9)
        for st in ((8, 9), (10, 11), (12, 13), (14, 15), (16, 17), (18, 19), (20, 21), (8, 10), (12, 14), (16, 18), (8, 12), (16, 20), (8, 16)):
            a(f'v_add_f32 v{st[0]}, v{st[0]}, v{st[1]}')
        self.allreduce([8], 'v_add_f32', 24, rows_only=True)
        self.round1(8, 9)
        a('v_fmac_f32 v160, v162, v8')
        a('v_cvt_pk_bf16_f32 v8, v160, v160')
        a('v_lshlrev_b32 v6, 1, v1')
        a('s_mov_b64 exec, 0xffff')
        a('buffer_store_short v8, v6, s[52:55], s76 offen')
        a('s_cmp_lg_u32 s2, 232'); a('s_cbranch_scc1 L_hend')
        a('s_add_u32 s83, s83, 1'); a('v_mov_b32 v8, s83'); a('v_mov_b32 v6, 0'); a(f's_mov_b32 s60, {WS_EPOCH}')
        a('s_mov_b64 exec, 1')
        a('buffer_store_dword v8, v6, s[40:43], s60 offen')
        self.stamp(10)
        a('s_branch L_hend')

        WD = 104
        a.label('L_role_ffn')
        self.srd(48, 20, 512 * 1792 * 2); self.srd(52, 22, 512 * 1792 * 2)
        a('v_lshrrev_b32 v158, 2, v0'); a(f's_mov_b32 s61, 3584'); a('v_mul_lo_u32 v158, v158, s61')
        a('v_and_b32 v7, 3, v0'); a('v_lshl_add_u32 v158, v7, 4, v158')
        a('s_mul_i32 s72, s36, 448'); a('s_sub_u32 s61, s37, 22'); a('s_lshl_b32 s61, s61, 6'); a('s_add_u32 s72, s72, s61')
        a('s_lshr_b32 s68, s72, 1')
        a(f's_mul_i32 s61, s38, {128*3584}'); a('s_add_u32 s72, s72, s61'); a('s_mov_b32 s73, s72')
        a('s_lshl_b32 s66, s38, 13'); a(f's_add_u32 s66, s66, {L_TILE}'); a('s_add_u32 s74, s66, 32768')
        if 'ffn' in self.zfirst:
            zero_stores('ffn'); get_tag(); zsignal()
        if 'ffn' not in self.late_k: barrier0()
        dff = self.depth.get('ffn', 64)
        self.dma(48, 158, 72, 16 * 3584, 8, 66, nt=self.ffn_nt, depth=dff)
        self.dma(52, 158, 73, 16 * 3584, 8, 74, nt=self.ffn_nt, depth=dff, first=(dff >= 16))
        if 'ffn' in self.late_k: barrier0()
        if 'ffn' not in self.zfirst: zero_stores('ffn'); get_tag()
        self.stamp(1)
        a('s_waitcnt vmcnt(0)')
        self.stamp(12)
        self.lds_sync(1)
        a('v_lshrrev_b32 v6, 2, v1'); a('v_lshl_add_u32 v6, v2, 3, v6'); a('v_lshlrev_b32 v6, 6, v6')
        a('v_and_b32 v7, 1, v0'); a('v_lshl_add_u32 v6, v7, 3, v6')
        a('v_bfe_u32 v7, v0, 1, 1'); a('v_lshl_add_u32 v6, v7, 15, v6')
        a('s_lshl_b32 s61, s38, 4'); a(f's_add_u32 s61, s61, {L_TILE}'); a('v_add_u32 v6, s61, v6')
        self.tr_read(6, W1, 16, 2048, 256)
        self.stamp(14)
        if 'ffn' not in self.zfirst: zsignal()
        self.lds_sync(2)
        self.srd(48, 24, 1792 * 512 * 2)
        a('v_lshlrev_b32 v158, 4, v0')
        a('s_lshl_b32 s61, s38, 3'); a('s_add_u32 s72, s68, s61'); a('s_lshl_b32 s72, s72, 10')
        a('s_lshl_b32 s66, s38, 13'); a(f's_add_u32 s66, s66, {L_TILE}')
        self.dma(48, 158, 72, 1024, 8, 66, depth=self.depth.get('ffn', 64))
        qgather_and_barrier1()
        a('s_waitcnt vmcnt(0)')
        self.lds_sync(3)
        a('v_lshrrev_b32 v6, 2, v1'); a('v_lshl_add_u32 v6, v2, 3, v6'); a('v_lshlrev_b32 v6, 10, v6')
        a('v_and_b32 v7, 3, v0'); a('v_lshl_add_u32 v6, v7, 3, v6')
        a('s_lshl_b32 s61, s38, 8'); a(f's_add_u32 s61, s61, {L_TILE}'); a('v_add_u32 v6, s61, v6')
        self.tr_read(6, WD, 8, 32, 4096)
        self.srd(52, 8, 1024)
        a('v_lshlrev_b32 v7, 2, v0'); a('s_lshl_b32 s60, s38, 8')
        a('buffer_load_dword v142, v7, s[52:55], s60 offen')
        Lp = self.lab('L_gp2')
        a('v_lshlrev_b32 v6, 3, v0'); a('s_lshl_b32 s60, s38, 9'); a(f's_add_u32 s60, s60, {WS_M + 1024*4}'); a('s_add_u32 s61, s60, 4096')
        a('v_lshrrev_b32 v7, 3, v0'); a('v_lshlrev_b32 v7, 7, v7'); a('v_and_b32 v8, 7, v0'); a('v_lshl_add_u32 v7, v8, 2, v7')
        a(f's_mov_b32 s62, {WS_ZF + 32}')
        a.label(Lp)
        a('buffer_load_dwordx2 v[8:9], v6, s[40:43], s60 offen sc1')
        a('buffer_load_dwordx2 v[10:11], v6, s[40:43], s60 offen offset:2048 sc1')
        a('buffer_load_dwordx2 v[12:13], v6, s[40:43], s61 offen sc1')
        a('buffer_load_dword v14, v7, s[40:43], s62 offen sc1')
        a('s_waitcnt vmcnt(0)')
        self.tag_check([9, 11, 13, 14], 16, Lp, sleep=8)
        for k, r in enumerate((8, 10, 12, 142)):
            a(f'v_and_b32 v{137+2*k}, 0xffff0000, v{r}'); a(f'v_lshlrev_b32 v{136+2*k}, 16, v{r}')
        a('v_add_f32 v140, 1.0, v140'); a('v_add_f32 v141, 1.0, v141'); self.round_pair(140, 141, 16)
        a('v_lshlrev_b32 v144, 3, v0'); a('s_lshl_b32 s72, s38, 9'); a(f's_add_u32 s72, s72, {WS_C}')
        a('s_add_u32 s73, s72, 4096'); a('s_add_u32 s74, s72, 8192'); a('s_add_u32 s75, s72, 12288')
        a('v_lshlrev_b32 v145, 2, v0'); a('s_lshl_b32 s61, s38, 8'); a(f's_add_u32 s61, s61, {L_VEC}'); a('v_add_u32 v145, s61, v145')
        a('v_lshlrev_b32 v4, 4, v2'); a(f'v_add_u32 v4, {L_VEC}, v4')
        a(f'v_mov_b32 v146, {L_ST}'); a('s_lshl_b32 s61, s38, 3'); a('v_add_u32 v147, s61, v146')
        a('s_barrier')
        L = h0_begin()
        t1_combine()
        a.label(L)
        Lp = self.lab('L_cp2')
        a.label(Lp)
        for gp in range(8): a(f'buffer_load_dwordx2 v[{8+2*gp}:{9+2*gp}], v144, s[40:43], s{72+gp//2} offen offset:{2048*(gp&1)} sc1')
        a('s_waitcnt vmcnt(0)')
        self.valid_check(range(8, 24), 24, Lp)
        self.stamp(8)
        for (x_, y_) in ((8, 10), (12, 14), (16, 18), (20, 22), (8, 12), (16, 20), (8, 16)):
            a(f'v_add_f32 v{x_}, v{x_}, v{y_}'); a(f'v_add_f32 v{x_+1}, v{x_+1}, v{y_+1}')
        a('v_fmac_f32 v142, v136, v8'); a('v_fmac_f32 v143, v137, v9')
        a('v_add_f32 v10, v142, v143'); a('v_mul_f32 v11, v142, v142'); a('v_fmac_f32 v11, v143, v143')
        self.allreduce([10, 11], 'v_add_f32', 12)
        a('s_mov_b64 exec, 1'); a('ds_write_b64 v147, v[10:11]'); a('s_mov_b64 exec, -1')
        a('s_waitcnt lgkmcnt(0)')
        a('s_barrier')
        a('ds_read_b128 v[12:15], v146'); a('ds_read_b128 v[16:19], v146 offset:16')
        a('s_waitcnt lgkmcnt(0)')
        a('v_add_f32 v12, v12, v14'); a('v_add_f32 v13, v13, v15'); a('v_add_f32 v16, v16, v18'); a('v_add_f32 v17, v17, v19')
        a('v_add_f32 v12, v12, v16'); a('v_add_f32 v13, v13, v17')
        a(f'v_mul_f32 v12, {hexf(1/512)}, v12'); a(f'v_mul_f32 v13, {hexf(1/512)}, v13')
        a('v_fma_f32 v13, -v12, v12, v13'); a(f'v_add_f32 v13, {hexf(1e-5)}, v13'); a('v_rsq_f32 v13, v13')
        a('v_sub_f32 v142, v142, v12'); a('v_sub_f32 v143, v143, v12')
        a('v_mul_f32 v142, v142, v13'); a('v_mul_f32 v143, v143, v13')
        a('v_fma_f32 v142, v142, v140, v138'); a('v_fma_f32 v143, v143, v141, v139')
        a('v_cvt_pk_bf16_f32 v8, v142, v143')
        a('ds_write_b32 v145, v8'); a('s_waitcnt lgkmcnt(0)')
        a('s_barrier')
        self.stamp(9)
        ACC2 = 136
        self.gemv(4, W1, 16, ACC2)
        self.round1(ACC2, ACC2 + 1)
        a(f's_mov_b32 s61, {hexf(-LOG2E)}')
        a(f'v_mul_f32 v8, s61, v{ACC2}'); a('v_exp_f32 v8, v8'); a('v_add_f32 v8, 1.0, v8'); a('v_rcp_f32 v8, v8')
        a(f'v_mul_f32 v8, v{ACC2}, v8'); self.round1(8, 9)
        a(f'v_mov_b32_dpp v9, v{ACC2} row_ror:8 {DPPF}')
        a('v_mul_f32 v8, v8, v9')
        a('v_cvt_pk_bf16_f32 v8, v8, v8')
        a('v_lshlrev_b32 v6, 1, v1'); a('s_lshl_b32 s61, s38, 4'); a(f's_add_u32 s61, s61, {L_AV}'); a('v_add_u32 v6, s61, v6')
        a('s_mov_b64 exec, 0xff'); a('ds_write_b16 v6, v8'); a('s_mov_b64 exec, -1')
        a('v_lshlrev_b32 v7, 4, v2'); a(f'v_add_u32 v7, {L_AV}, v7')
        a('s_mul_i32 s60, s36, 7'); a('s_add_u32 s60, s60, s37'); a('s_sub_u32 s60, s60, 22'); a('s_lshl_b32 s60, s60, 11')
        a('s_lshl_b32 s61, s38, 9'); a('s_add_u32 s60, s60, s61'); a(f's_add_u32 s60, s60, {WS_E}')
        a('s_mov_b32 s62, 0xffff0000'); a('s_mov_b32 s63, 0xffff0000'); a('s_mov_b32 s64, 0'); a('s_mov_b32 s65, -1')
        a('s_waitcnt lgkmcnt(0)')
        a('s_barrier')
        a('ds_read_b128 v[136:139], v7'); a('s_waitcnt lgkmcnt(0)')
        for jj in range(8):
            a(f'v_mfma_f32_16x16x32_bf16 v[{8+4*jj}:{11+4*jj}], v[136:139], v[{WD+4*jj}:{WD+4*jj+3}], 0')
        self.stamp(10)
        for half in range(2):
            b = 8 + 16 * half
            a(f'v_cndmask_b32 v{140+2*half}, v{b}, v{b+4}, s[62:63]'); a(f'v_cndmask_b32 v{141+2*half}, v{b+8}, v{b+12}, s[62:63]')
            a(f'v_cndmask_b32 v{140+2*half}, v{140+2*half}, v{141+2*half}, s[64:65]')
            a(f'v_or_b32 v{140+2*half}, 1, v{140+2*half}')
        a('v_lshlrev_b32 v6, 2, v0')
        a('buffer_store_dword v140, v6, s[40:43], s60 offen sc1')
        a('buffer_store_dword v142, v6, s[40:43], s60 offen offset:256 sc1')
        a('s_branch L_hend')

        a.label('L_tail_plain')
        a('s_barrier')
        a('s_cmp_lg_u32 s38, 0'); a('s_cbranch_scc1 L_hend')
        t1_combine()
        a.label('L_hend')
        self.stamp(11)
        self.stamp_flush(helper=True)
        a('s_endpgm')

    def build(self):
        a = self.a
        hdr = open('cdna_kernels/' + KNAME.replace('_kernel', '') + '.s.ref').read().split('\n')
        head = [l for l in hdr if l.startswith(';') and '@launch' not in l and 'Override' not in l and 'grid=ceil' not in l]
        a.raw('\n'.join(head))
        a.raw(f'; @launch grid=(256,1,1) block=(768,1,1) lds={LDS_SIZE}')
        a.raw('.amdgcn_target "amdgcn-amd-amdhsa--gfx950"\n.text')
        a.raw(f'.globl {KNAME}\n.p2align 8\n.type {KNAME},@function\n{KNAME}:')
        a('s_cmp_ge_u32 s2, 256'); a('s_cbranch_scc1 L_abort')
        a('s_load_dwordx16 s[8:23], s[0:1], 0'); a('s_load_dwordx8 s[24:31], s[0:1], 64'); a('s_load_dwordx4 s[32:35], s[0:1], 96')
        a('v_lshrrev_b32 v1, 6, v0'); a('v_readfirstlane_b32 s3, v1'); a('v_and_b32 v0, 63, v0')
        a('s_and_b32 s36, s2, 7'); a('s_lshr_b32 s37, s2, 3')
        self.stamp_init()
        a('s_waitcnt lgkmcnt(0)')
        self.srd(40, 34, WS_SIZE)
        a('s_cmp_ge_u32 s3, 8'); a('s_cbranch_scc1 L_helper')
        self.attention()
        a.label('L_helper')
        self.helper()
        a.label('L_abort')
        a('s_endpgm')
        n = a.pad()
        a.raw('.section .rodata,"a"\n.p2align 6')
        a.raw(f'.amdhsa_kernel {KNAME}\n  .amdhsa_next_free_vgpr 168\n  .amdhsa_next_free_sgpr 102\n  .amdhsa_accum_offset 168\n'
              '  .amdhsa_group_segment_fixed_size 0\n  .amdhsa_kernarg_size 112\n  .amdhsa_user_sgpr_count 2\n'
              '  .amdhsa_user_sgpr_kernarg_segment_ptr 1\n  .amdhsa_system_sgpr_workgroup_id_x 1\n'
              '  .amdhsa_float_denorm_mode_32 3\n.end_amdhsa_kernel')
        return a.text(), n

if __name__ == '__main__':
    import argparse
    p = argparse.ArgumentParser()
    p.add_argument('-o', default='cdna_kernels/' + KNAME.replace('_kernel', '') + '.s')
    p.add_argument('--thr', type=int, default=2); p.add_argument('--thr-deep', type=int, default=3)
    p.add_argument('--stamps', action='store_true'); p.add_argument('--ffn-nt', action='store_true')
    p.add_argument('--deep', default='ffn'); p.add_argument('--x-notile', action='store_true'); p.add_argument('--x-nopoll', action='store_true')
    p.add_argument('--qsleep', type=int, default=4); p.add_argument('--x-nokv', action='store_true')
    p.add_argument('--depth', default=''); p.add_argument('--kthr', default=''); p.add_argument('--late', default=''); p.add_argument('--dbgmode', action='store_true'); p.add_argument('--vthr', type=int, default=None); p.add_argument('--zfirst', default='')
    args = p.parse_args()
    kv = lambda t: {x.split('=')[0]: int(x.split('=')[1]) for x in t.split(',') if x}
    g = Gen(thr=args.thr, stamps=args.stamps, thr_deep=args.thr_deep, ffn_nt=args.ffn_nt, deep_roles=tuple(x for x in args.deep.split(',') if x),
            x_notile=args.x_notile, x_nopoll=args.x_nopoll, qsleep=args.qsleep, x_nokv=args.x_nokv, depth=kv(args.depth), kthr=kv(args.kthr), late_k=tuple(x for x in args.late.split(',') if x), vthr=args.vthr, zfirst=tuple(x for x in args.zfirst.split(',') if x))
    g.dbgmode = args.dbgmode
    t, n = g.build()
    open(args.o, 'w').write(t)
    print('wrote', args.o, 'lines', t.count('\n'), 'nops inserted', n)
```

```python
import sys, struct
sys.path.insert(0, 'gen')
from asmdsl import Asm

KNAME = 'adaLN_cond__gqa_block_cached__swiglu_ffn__decode_kernel'

WS_A = 0
WS_SM = 1 << 20
WS_AF = 5 << 20
WS_B = (2 << 20) + 131072
WS_BF = (2 << 20) + 196608
WS_C = WS_SM + 16384
WS_E = WS_SM + 32768
WS_M = (2 << 20)
WS_Q = (2 << 20) + 16384
WS_ZF = (2 << 20) + 65536
WS_EPOCH = (3 << 20)
WS_STAMP = 4 << 20
WS_SIZE = 8 << 20
L_TILE = 0
NVL = 10
L_VL = 65536
VLS = NVL * 1024
L_ML = L_VL + 8 * VLS
L_QL = L_ML + 256
L_VEC = L_QL + 1024
L_ST = L_VEC + 4096
L_AV = L_ST + 64
L_CNT = L_AV + 64
LDS_SIZE = L_CNT + 64
assert LDS_SIZE <= 163840

LOG2E = 1.4426950408889634
def f2u(x): return struct.unpack('<I', struct.pack('<f', x))[0]
def hexf(x): return '0x%08x' % f2u(x)
DPPF = 'row_mask:0xf bank_mask:0xf'
POLL_LIMIT = 400000
FAST_TRIES = 40

class Gen:
    def __init__(self, thr=2, stamps=False, thr_deep=3, ffn_nt=False, qk_extra=True, deep_roles=('ffn',), x_notile=False, x_nopoll=False,
                 qsleep=4, x_nokv=False, depth=None, kthr=None, late_k=(), vthr=None, zfirst=(), ngroups=None, psleep=None):
        self.a = Asm(); self.thr = thr; self.stamps = stamps; self.thr_deep = thr_deep; self.ffn_nt = ffn_nt
        self.qk_extra = qk_extra; self.deep_roles = deep_roles; self.x_notile = x_notile; self.x_nopoll = x_nopoll
        self.psleep = psleep or {}; self.ngroups = ngroups or {}; self.vthr = vthr; self.zfirst = zfirst; self.depth = depth or {}; self.kthr = kthr or {}; self.late_k = late_k; self.qsleep = qsleep; self.x_nokv = x_nokv
        self.cpf = True; self.light = None; self.nlab = 0; self.dbgmode = False; self.remap = False; self.fast = True
    def lab(self, p='L'):
        self.nlab += 1
        return f'{p}_{self.nlab}'
    def srd(self, sd, sp, size):
        a = self.a
        a(f's_mov_b32 s{sd}, s{sp}'); a(f's_and_b32 s{sd+1}, s{sp+1}, 0xffff')
        a(f's_mov_b32 s{sd+2}, {size}'); a(f's_mov_b32 s{sd+3}, 0x00020000')
    def stamp(self, k):
        if not self.stamps: return
        if self.light is not None and k not in self.light: return
        a = self.a
        a('s_memrealtime s[70:71]'); a('s_waitcnt lgkmcnt(0)'); a(f's_mov_b32 s{84+k}, s70')
    def stamp_init(self):
        if not self.stamps: return
        for k in range(16): self.a(f's_mov_b32 s{84+k}, 0')
    def stamp_flush(self, helper=False):
        if not self.stamps: return
        a = self.a
        if self.dbgmode:
            L = self.lab('L_nodbg')
            self.srd(44, 32, 256)
            a('s_mov_b64 exec, 1'); a('v_mov_b32 v1, 0')
            if helper:
                a('s_cmp_lg_u32 s2, 232'); a(f's_cbranch_scc1 {L}'); a('s_cmp_lg_u32 s3, 8'); a(f's_cbranch_scc1 {L}')
                lst = [(k, 8 + i) for i, k in enumerate((0, 2, 3, 6, 7, 8, 9, 11))]
            else:
                a('s_cmp_lg_u32 s2, 0'); a(f's_cbranch_scc1 {L}'); a('s_cmp_lg_u32 s3, 0'); a(f's_cbranch_scc1 {L}')
                lst = [(k, k) for k in range(8)]
            for k, slot in lst:
                a(f'v_mov_b32 v2, s{84+k}')
                a(f'buffer_store_dword v2, v1, s[44:47], 0 offen offset:{4*slot}')
            a('s_waitcnt vmcnt(0)')
            a.label(L)
            return
        a('s_mov_b64 exec, 1')
        a('s_mul_i32 s70, s2, 12'); a('s_add_u32 s70, s70, s3'); a('s_lshl_b32 s70, s70, 6')
        a(f's_add_u32 s70, s70, {WS_STAMP}')
        a('v_mov_b32 v1, 0')
        for k in range(16):
            a(f'v_mov_b32 v2, s{84+k}')
            a(f'buffer_store_dword v2, v1, s[40:43], s70 offen offset:{4*k}')
        a('s_waitcnt vmcnt(0)')
    def round_pair(self, x, y, t):
        a = self.a
        a(f'v_cvt_pk_bf16_f32 v{t}, v{x}, v{y}')
        a(f'v_lshlrev_b32 v{x}, 16, v{t}')
        a(f'v_and_b32 v{y}, 0xffff0000, v{t}')
    def round_list(self, regs, t):
        for i in range(0, len(regs), 2):
            self.round_pair(regs[i], regs[i+1], t + (i // 2) % 2)
    def round1(self, x, t):
        a = self.a
        a(f'v_cvt_pk_bf16_f32 v{t}, v{x}, v{x}')
        a(f'v_lshlrev_b32 v{x}, 16, v{t}')
    def allreduce(self, regs, op, t, rows_only=False, quad=True, row=True):
        a = self.a
        if not rows_only:
            steps = []
            if quad: steps += ['quad_perm:[1,0,3,2]', 'quad_perm:[2,3,0,1]']
            if row: steps += ['row_half_mirror', 'row_mirror']
            for st in steps:
                for r in regs: a(f'{op}_dpp v{r}, v{r}, v{r} {st} {DPPF}')
        for sw in ('v_permlane16_swap_b32', 'v_permlane32_swap_b32'):
            for k, r in enumerate(regs): a(f'v_mov_b32 v{t+k}, v{r}')
            for k, r in enumerate(regs): a(f'{sw} v{r}, v{t+k}')
            for k, r in enumerate(regs): a(f'{op} v{r}, v{r}, v{t+k}')
    def poll_tail(self, loop_label, sleep=0):
        a = self.a
        if self.x_nopoll: return
        a('s_add_u32 s80, s80, 1'); a(f's_cmp_gt_u32 s80, {POLL_LIMIT}'); a('s_cbranch_scc1 L_abort')
        a('s_cmp_eq_u64 vcc, exec')
        if sleep:
            L = self.lab('L_pk')
            a(f's_cbranch_scc1 {L}'); a(f's_sleep {sleep}'); a(f's_branch {loop_label}'); a.label(L)
        else:
            a(f's_cbranch_scc0 {loop_label}')
    def valid_check(self, regs, t, loop_label, sleep=0):
        a = self.a
        regs = list(regs); cur = regs[0]; i = 1
        while i < len(regs):
            if i + 1 < len(regs):
                a(f'v_min3_u32 v{t}, v{cur}, v{regs[i]}, v{regs[i+1]}'); i += 2
            else:
                a(f'v_min_u32 v{t}, v{cur}, v{regs[i]}'); i += 1
            cur = t
        a(f'v_cmp_ne_u32 vcc, 0, v{cur}')
        self.poll_tail(loop_label, sleep)
    def tag_check(self, regs, t, loop_label, sleep=0):
        a = self.a
        regs = list(regs)
        for r in regs: a(f'v_xor_b32 v{r}, s81, v{r}')
        cur = regs[0]; i = 1
        while i < len(regs):
            if i + 1 < len(regs):
                a(f'v_or3_b32 v{t}, v{cur}, v{regs[i]}, v{regs[i+1]}'); i += 2
            else:
                a(f'v_or_b32 v{t}, v{cur}, v{regs[i]}'); i += 1
            cur = t
        a(f'v_cmp_eq_u32 vcc, 0, v{cur}')
        self.poll_tail(loop_label, sleep)
    def sentinel(self, soff, t, sleep=6):
        a = self.a
        if self.x_nopoll: return
        L = self.lab('L_sn'); L2 = self.lab('L_sn2')
        a(f'v_mov_b32 v{t}, 0'); a(f's_branch {L2}')
        a.label(L); a(f's_sleep {sleep}'); a.label(L2)
        a(f'buffer_load_dword v{t+1}, v{t}, s[40:43], s{soff} offen sc1')
        a('s_waitcnt vmcnt(0)')
        a(f'v_readfirstlane_b32 s82, v{t+1}')
        a('s_add_u32 s80, s80, 1'); a(f's_cmp_gt_u32 s80, {POLL_LIMIT}'); a('s_cbranch_scc1 L_abort')
        a('s_cmp_eq_u32 s82, s81'); a(f's_cbranch_scc0 {L}')
    def unpack8(self, src, dst):
        for k in range(4):
            self.a(f'v_lshlrev_b32 v{dst+2*k}, 16, v{src+k}')
            self.a(f'v_and_b32 v{dst+2*k+1}, 0xffff0000, v{src+k}')
    def pack8(self, src, dst):
        for k in range(4): self.a(f'v_cvt_pk_bf16_f32 v{dst+k}, v{src+2*k}, v{src+2*k+1}')
    def dma(self, srd, voff, soff, step, n, lds_s, nt=True, depth=64, first=True):
        a = self.a
        if self.x_notile: return
        ntf = ' nt' if nt else ''
        for i in range(n):
            if (i >= depth) or (not first): a(f's_waitcnt vmcnt({depth - 1})')
            a(f's_add_u32 m0, s{lds_s}, {i*1024}')
            a(f'buffer_load_dwordx4 v{voff}, s[{srd}:{srd+3}], s{soff} offen{ntf} lds')
            if i + 1 < n: a(f's_add_u32 s{soff}, s{soff}, {step}')
    def lds_sync(self, phase):
        a = self.a
        L = self.lab('L_ls')
        a(f'v_mov_b32 v38, {L_CNT}'); a('v_mov_b32 v39, 1')
        a('s_mov_b64 exec, 1'); a('ds_add_u32 v38, v39'); a('s_mov_b64 exec, -1')
        a.label(L)
        a('ds_read_b32 v39, v38'); a('s_waitcnt lgkmcnt(0)'); a('v_readfirstlane_b32 s82, v39')
        a('s_add_u32 s80, s80, 1'); a(f's_cmp_gt_u32 s80, {POLL_LIMIT}'); a('s_cbranch_scc1 L_abort')
        a(f's_cmp_lt_u32 s82, {4*phase}'); a(f's_cbranch_scc1 {L}')
    def tr_read(self, vaddr, W, n, step, half):
        a = self.a
        for i in range(n):
            a(f'ds_read_b64_tr_b16 v[{W+4*i}:{W+4*i+1}], v{vaddr} offset:{i*step}')
            a(f'ds_read_b64_tr_b16 v[{W+4*i+2}:{W+4*i+3}], v{vaddr} offset:{i*step+half}')
            if (i % 5) == 4: a('s_waitcnt lgkmcnt(4)')
        a('s_waitcnt lgkmcnt(0)')
    def gemv(self, vaddr, W, n, acc, Areg=8, nsets=8):
        a = self.a
        issued = 0
        for i in range(min(nsets, n)):
            a(f'ds_read_b128 v[{Areg+4*i}:{Areg+4*i+3}], v{vaddr} offset:{i*64}'); issued += 1
        for i in range(n):
            a(f's_waitcnt lgkmcnt({issued - i - 1})')
            A = Areg + 4 * (i % nsets); c = acc + 4 * (i % 2)
            src = f'v[{c}:{c+3}]' if i >= 2 else '0'
            a(f'v_mfma_f32_16x16x32_bf16 v[{c}:{c+3}], v[{A}:{A+3}], v[{W+4*i}:{W+4*i+3}], {src}')
            if issued < n:
                a(f'ds_read_b128 v[{A}:{A+3}], v{vaddr} offset:{issued*64}'); issued += 1
        a(f'v_add_f32 v{acc}, v{acc}, v{acc+4}')

    ROLES = {'wq': (0, 8), 'wo': (8, 16), 'mod': (16, 22), 'ffn': (22, 29), 'fin': (29, 32)}
    def attention(self):
        a = self.a; thr = self.thr
        BUF = 40; Q = 8; D = 12; M0 = 3; M1 = 4; TMP = 36
        TREG = [28, 29, 30, 31, 32, 33, 34, 35, 7, 5]
        ng = {r: self.ngroups.get(r, 32) for r in self.ROLES}
        assert sum(ng[r] * (hi - lo) for r, (lo, hi) in self.ROLES.items()) == 1024, ng
        self.stamp(0)
        self.srd(48, 10, 0x4000000); self.srd(52, 12, 0x4000000)
        a('v_bfe_u32 v5, v0, 2, 2'); a('v_lshlrev_b32 v1, 8, v5')
        a('v_lshrrev_b32 v5, 4, v0'); a('v_lshl_add_u32 v1, v5, 6, v1')
        a('v_and_b32 v5, 3, v0'); a('v_lshl_add_u32 v1, v5, 4, v1')
        a('v_lshlrev_b32 v2, 4, v0')
        a(f'v_mov_b32 v{M0}, 0'); a(f'v_mov_b32 v{M1}, 0')
        a('v_mov_b32 v6, 0xffff'); a('v_mov_b32 v7, 0xffff0000')
        a('v_cmp_eq_u32 vcc, 0, v5'); a(f'v_cndmask_b32 v{M0}, v{M0}, v6, vcc')
        a('v_cmp_eq_u32 vcc, 1, v5'); a(f'v_cndmask_b32 v{M0}, v{M0}, v7, vcc')
        a('v_cmp_eq_u32 vcc, 2, v5'); a(f'v_cndmask_b32 v{M1}, v{M1}, v6, vcc')
        a('v_cmp_eq_u32 vcc, 3, v5'); a(f'v_cndmask_b32 v{M1}, v{M1}, v7, vcc')
        a('s_mov_b32 s56, 0xaaaaaaaa'); a('s_mov_b32 s57, 0xaaaaaaaa')
        a('s_mov_b32 s58, 0xcccccccc'); a('s_mov_b32 s59, 0xcccccccc')
        a(f'v_add_u32 v6, {L_QL}, v1')
        a(f's_mul_i32 s63, s3, {VLS}'); a(f's_add_u32 s63, s63, {L_VL}')
        variants = {}
        base = 0
        for r, (lo, hi) in self.ROLES.items():
            key = (ng[r], self.kthr.get(r, thr))
            variants.setdefault(key, []).append((lo, hi, base))
            base += ng[r] * (hi - lo)
        keys = list(variants)
        for key in keys:
            for (lo, hi, b0) in variants[key]:
                L = self.lab('L_nx')
                a(f's_sub_u32 s62, s37, {lo}'); a(f's_cmp_lt_u32 s62, {hi-lo}'); a(f's_cbranch_scc0 {L}')
                a(f's_mul_i32 s62, s62, {key[0]}'); a(f's_add_u32 s62, s62, {b0}')
                a(f's_branch L_att_{key[0]}_{key[1]}')
                a.label(L)
        a('s_branch L_abort')
        for key in keys:
            a.label(f'L_att_{key[0]}_{key[1]}')
            self.att_body(key[0], key[1], BUF, Q, D, TREG, M0, M1, TMP)
            if key != keys[-1]: a('s_branch L_att_done')
        a.label('L_att_done')
        MX = 5; SUM = 6; ACC = 12
        self.stamp(5)
        a('v_lshlrev_b32 v7, 5, v0'); a('v_add_u32 v7, s63, v7')
        a('v_lshrrev_b32 v8, 2, v0'); a('v_lshlrev_b32 v8, 5, v8')
        a('s_lshl_b32 s62, s3, 2'); a(f's_add_u32 s62, s62, {L_ML}'); a('v_add_u32 v8, s62, v8')
        a('v_and_b32 v9, 0x33, v0'); a('v_cmp_eq_u32 vcc, 0, v9')
        a(f'ds_write_b128 v7, v[{ACC}:{ACC+3}]'); a(f'ds_write_b128 v7, v[{ACC+4}:{ACC+7}] offset:16')
        a('s_and_saveexec_b64 s[64:65], vcc')
        a(f'ds_write_b32 v8, v{MX}'); a(f'ds_write_b32 v8, v{SUM} offset:128')
        a('s_mov_b64 exec, s[64:65]')
        a('s_lshr_b32 s62, s3, 1'); a('s_lshl_b32 s62, s62, 5'); a(f's_add_u32 s62, s62, {L_ML}')
        a('v_mov_b32 v1, s62')
        a('v_lshrrev_b32 v2, 4, v0'); a('v_lshl_add_u32 v3, v2, 3, v1'); a('v_and_b32 v4, 15, v0')
        a(f's_mov_b32 s63, {2*VLS}'); a('v_mul_lo_u32 v5, v2, s63'); a('v_lshl_add_u32 v5, v4, 4, v5')
        a('s_lshl_b32 s63, s3, 8'); a(f's_add_u32 s63, s63, {L_VL}'); a('v_add_u32 v5, s63, v5')
        a('v_lshrrev_b32 v6, 2, v4'); a('v_lshlrev_b32 v6, 12, v6')
        a('v_and_b32 v7, 3, v4'); a('v_lshl_add_u32 v6, v7, 5, v6')
        a('s_lshl_b32 s62, s36, 5'); a('s_lshl_b32 s63, s3, 2'); a('s_add_u32 s62, s62, s63')
        a('s_lshl_b32 s62, s62, 5'); a('s_add_u32 s62, s62, s37'); a('s_lshl_b32 s62, s62, 7')
        a('s_waitcnt lgkmcnt(0)')
        a('s_barrier')
        self.stamp(6)
        a('ds_read_b128 v[8:11], v1'); a('ds_read_b128 v[12:15], v1 offset:16')
        a('ds_read_b64 v[24:25], v3')
        a('ds_read_b128 v[28:31], v5'); a(f'ds_read_b128 v[32:35], v5 offset:{VLS}')
        a('ds_read_b128 v[16:19], v1 offset:128'); a('ds_read_b128 v[20:23], v1 offset:144')
        a('s_waitcnt lgkmcnt(4)')
        a('v_max3_f32 v26, v8, v9, v10'); a('v_max3_f32 v26, v26, v11, v12'); a('v_max3_f32 v26, v26, v13, v14')
        a('v_max_f32 v26, v26, v15')
        a('v_sub_f32 v24, v24, v26'); a('v_sub_f32 v25, v25, v26')
        for k in range(8): a(f'v_sub_f32 v{8+k}, v{8+k}, v26')
        a('v_exp_f32 v24, v24'); a('v_exp_f32 v25, v25')
        for k in range(8): a(f'v_exp_f32 v{8+k}, v{8+k}')
        a('s_waitcnt lgkmcnt(2)')
        for k in range(4): a(f'v_mul_f32 v{28+k}, v24, v{28+k}')
        for k in range(4): a(f'v_fmac_f32 v{28+k}, v25, v{32+k}')
        a('s_waitcnt lgkmcnt(0)')
        a('v_mul_f32 v27, v8, v16')
        for k in range(1, 8): a(f'v_fmac_f32 v27, v{8+k}, v{16+k}')
        self.allreduce([28, 29, 30, 31], 'v_add_f32', 36, rows_only=True)
        a('v_rcp_f32 v8, v27'); a('v_log_f32 v9, v27')
        a('v_add_f32 v9, v9, v26'); a('v_or_b32 v9, 1, v9')
        for k in range(4): a(f'v_mul_f32 v{28+k}, v8, v{28+k}')
        a('s_mov_b32 s64, 0xffff0000'); a('s_mov_b32 s65, 0')
        a('v_cndmask_b32 v12, v28, v30, s[64:65]'); a('v_cndmask_b32 v14, v29, v31, s[64:65]')
        a('v_or_b32 v12, 1, v12'); a('v_mov_b32 v13, v9'); a('v_or_b32 v14, 1, v14'); a('v_mov_b32 v15, v9')
        a('v_lshl_add_u32 v6, v2, 4, v6')
        a('s_mov_b32 exec_hi, 0')
        a(f's_add_u32 s63, s62, {WS_AF}')
        if self.fast: a('buffer_store_dwordx4 v[12:15], v6, s[40:43], s63 offen')
        a('buffer_store_dwordx4 v[12:15], v6, s[40:43], s62 offen sc1')
        self.stamp(7)
        self.stamp_flush()
        a('s_endpgm')

    def att_body(self, n, kth, BUF, Q, D, TREG, M0, M1, TMP):
        a = self.a; thr = self.thr
        nov = max(0, n - 32)
        NV = NVL - nov
        nt = (n + 3) // 4
        T = TREG[:nt]
        a('s_lshl_b32 s60, s36, 23'); a('s_lshl_b32 s61, s62, 13'); a('s_add_u32 s60, s60, s61')
        a('s_lshl_b32 s61, s3, 10'); a('s_add_u32 s60, s60, s61'); a('s_mov_b32 s61, s60')
        out = []
        def issue(tag, text):
            if not self.x_nokv: a(text)
            out.append(tag)
        def wait(tag):
            if tag in out:
                k = out.index(tag); m = len(out) - k - 1
                a(f's_waitcnt vmcnt({m})'); del out[:k+1]
        def waitn(m):
            if len(out) > m:
                a(f's_waitcnt vmcnt({m})'); del out[:len(out)-m]
        a('s_barrier')
        for i in range(n):
            if i < 32:
                issue(('K', i), f'buffer_load_dwordx4 v[{BUF+4*i}:{BUF+4*i+3}], v1, s[48:51], s60 offen nt')
            else:
                a(f's_add_u32 m0, s63, {(i-32)*1024}')
                issue(('K', i), f'buffer_load_dwordx4 v1, s[48:51], s60 offen nt lds')
            if i < n - 1: a('s_add_u32 s60, s60, 8192')
            waitn(kth)
        for j in range(NV):
            a(f's_add_u32 m0, s63, {(nov+j)*1024}')
            issue(('V', j), f'buffer_load_dwordx4 v2, s[52:55], s61 offen nt lds')
            a('s_add_u32 s61, s61, 8192')
            waitn(thr if j >= NV - 2 else kth)
        self.stamp(1)
        a('s_barrier')
        self.stamp(2)
        a(f'ds_read_b128 v[{Q}:{Q+3}], v6')
        if nov:
            a('v_add_u32 v6, s63, v2')
            for k in range(nov): a(f'ds_read_b128 v[{D+4*k}:{D+4*k+3}], v6 offset:{k*1024}') if False else None
        a('s_waitcnt lgkmcnt(0)')
        nv = [NV]
        vreg = lambda j: BUF + 4 * (j - NV)
        def issueV():
            j = nv[0]
            if j >= n: return
            issue(('V', j), f'buffer_load_dwordx4 v[{vreg(j)}:{vreg(j)+3}], v2, s[52:55], s61 offen nt')
            if j < n - 1: a('s_add_u32 s61, s61, 8192')
            nv[0] += 1
        vth = self.vthr if self.vthr is not None else thr
        for t in range(nt):
            us = [u for u in range(4) if 4 * t + u < n]
            if t == 7 and nov:
                pass
            if t == 8:
                for u in us: a(f'ds_read_b128 v[{BUF+4*(28+u)}:{BUF+4*(28+u)+3}], v6 offset:{u*1024}')
                a('s_waitcnt lgkmcnt(0)')
            for u in us:
                i = 4 * t + u
                kr = BUF + 4 * i if i < 32 else BUF + 4 * (28 + u)
                a(f'v_mfma_f32_16x16x32_bf16 v[{D+4*u}:{D+4*u+3}], v[{kr}:{kr+3}], v[{Q}:{Q+3}], 0')
            if t == 0:
                for _ in range(min(4, vth + 1)): issueV()
            elif nv[0] - NV < vth + 1 + (1 if (t >= 4 and self.qk_extra) else 0): issueV()
            Tt = T[t]
            for x in range(4):
                d = lambda v: D + 4 * (v ^ x) + v
                a(f'v_cndmask_b32 v{TMP+0}, v{d(0)}, v{d(1)}, s[56:57]')
                a(f'v_cndmask_b32 v{TMP+1}, v{d(2)}, v{d(3)}, s[56:57]')
                if x == 0:
                    a(f'v_cndmask_b32 v{Tt}, v{TMP+0}, v{TMP+1}, s[58:59]')
                else:
                    a(f'v_cndmask_b32 v{TMP+2+(x&1)}, v{TMP+0}, v{TMP+1}, s[58:59]')
                    qp = {1: '[1,0,3,2]', 2: '[2,3,0,1]', 3: '[3,2,1,0]'}[x]
                    a(f'v_add_f32_dpp v{Tt}, v{TMP+2+(x&1)}, v{Tt} quad_perm:{qp} {DPPF}')
            if len(us) < 4:
                m = {1: 0xeeeeeeee, 2: 0xcccccccc, 3: 0x88888888}[len(us)]
                a(f's_mov_b32 s64, {hex(m)}'); a(f's_mov_b32 s65, {hex(m)}')
                a(f'v_mov_b32 v{TMP}, 0xfe000000')
                a(f'v_cndmask_b32 v{Tt}, v{Tt}, v{TMP}, s[64:65]')
        self.stamp(3)
        def rnd(regs):
            for i in range(0, len(regs) - 1, 2): self.round_pair(regs[i], regs[i+1], TMP + (i // 2) % 2)
            if len(regs) % 2: self.round1(regs[-1], TMP)
        rnd(T)
        a(f's_mov_b32 s62, {hexf(128 ** -0.5)}')
        for r in T: a(f'v_mul_f32 v{r}, s62, v{r}')
        rnd(T)
        MX = 8; SUM = 9
        a(f'v_max_f32 v{MX}, v{T[0]}, v{T[1]}')
        rest = T[2:]
        for i in range(0, len(rest) - 1, 2): a(f'v_max3_f32 v{MX}, v{MX}, v{rest[i]}, v{rest[i+1]}')
        if len(rest) % 2: a(f'v_max_f32 v{MX}, v{MX}, v{rest[-1]}')
        self.allreduce([MX], 'v_max_f32', TMP, row=False)
        a(f's_mov_b32 s62, {hexf(LOG2E)}')
        a(f'v_mul_f32 v{MX}, s62, v{MX}')
        for r in T: a(f'v_fma_f32 v{r}, v{r}, s62, -v{MX}')
        for r in T: a(f'v_exp_f32 v{r}, v{r}')
        a(f'v_add_f32 v{SUM}, v{T[0]}, v{T[1]}')
        for r in T[2:]: a(f'v_add_f32 v{SUM}, v{SUM}, v{r}')
        for r in T: a(f'v_cvt_pk_bf16_f32 v{r}, v{r}, v{r}')
        self.allreduce([SUM], 'v_add_f32', TMP, row=False)
        self.stamp(4)
        ACC = 12; AOP = 20; VT = [24, 36]; VA = 10
        a(f'v_add_u32 v{VA}, s63, v2')
        for j in range(NV): wait(('V', j))
        a(f'ds_read_b128 v[{VT[0]}:{VT[0]+3}], v{VA} offset:{nov*1024}')
        for i in range(n):
            t = i >> 2; u = i & 3
            A = AOP + 2 * (i & 1)
            a(f'v_and_b32_dpp v{A}, v{T[t]}, v{M0} quad_perm:[{u},{u},{u},{u}] {DPPF}')
            a(f'v_and_b32_dpp v{A+1}, v{T[t]}, v{M1} quad_perm:[{u},{u},{u},{u}] {DPPF}')
            if i < NV:
                vb = VT[i & 1]
                if i + 1 < NV:
                    nb = VT[(i + 1) & 1]
                    a(f'ds_read_b128 v[{nb}:{nb+3}], v{VA} offset:{(nov+i+1)*1024}'); a('s_waitcnt lgkmcnt(1)')
                else:
                    a('s_waitcnt lgkmcnt(0)')
            else:
                wait(('V', i)); issueV()
                vb = vreg(i)
            c1 = f'v[{ACC}:{ACC+3}]' if i else '0'
            c2 = f'v[{ACC+4}:{ACC+7}]' if i else '0'
            a(f'v_mfma_f32_16x16x16_bf16 v[{ACC}:{ACC+3}], v[{A}:{A+1}], v[{vb}:{vb+1}], {c1}')
            a(f'v_mfma_f32_16x16x16_bf16 v[{ACC+4}:{ACC+7}], v[{A}:{A+1}], v[{vb+2}:{vb+3}], {c2}')
        a(f'v_mov_b32 v5, v{MX}'); a(f'v_mov_b32 v6, v{SUM}')

    def helper(self):
        a = self.a
        W1 = 40; W2 = 104; ACC = 104
        a('s_sub_u32 s38, s3, 8')
        self.stamp(0)
        a('s_mov_b32 s80, 0')
        a(f's_add_u32 s78, s34, {WS_EPOCH}'); a('s_addc_u32 s79, s35, 0')
        a('s_load_dword s83, s[78:79], 0')
        a('v_and_b32 v1, 15, v0'); a('v_lshrrev_b32 v2, 4, v0')
        Lz = self.lab('L_noinit')
        a('s_cmp_lg_u32 s38, 0'); a(f's_cbranch_scc1 {Lz}')
        a(f'v_mov_b32 v38, {L_CNT}'); a('v_mov_b32 v39, 0'); a('ds_write_b32 v38, v39')
        a.label(Lz)
        a('s_lshl_b32 s67, s38, 10'); a(f's_add_u32 s67, s67, {L_VEC}')
        a('v_lshlrev_b32 v4, 4, v2'); a('v_add_u32 v4, s67, v4')
        a('v_lshlrev_b32 v5, 4, v0'); a('v_add_u32 v5, s67, v5')
        a('s_cmp_lt_u32 s37, 8'); a('s_cbranch_scc1 L_role_wq')
        a('s_cmp_lt_u32 s37, 16'); a('s_cbranch_scc1 L_role_wo')
        a('s_cmp_lt_u32 s37, 22'); a('s_cbranch_scc1 L_role_mod')
        a('s_cmp_lt_u32 s37, 29'); a('s_cbranch_scc1 L_role_ffn')
        a('s_branch L_role_fin')

        def h0_begin():
            L = self.lab('L_h0e')
            a('s_cmp_lg_u32 s38, 0'); a(f's_cbranch_scc1 {L}')
            return L
        def barrier0():
            a('s_waitcnt lgkmcnt(0)')
            a('s_barrier')
        def get_tag():
            a('s_waitcnt lgkmcnt(0)')
            a('s_mul_i32 s81, s83, 0x9E3779B1'); a('s_add_u32 s81, s81, 0x7F4A7C15')
        def zero_stores(role):
            L = h0_begin()
            for k in range(4): a(f'v_mov_b32 v{8+k}, 0')
            a('v_lshlrev_b32 v6, 4, v0')
            a('s_lshl_b32 s60, s36, 5'); a('s_add_u32 s60, s60, s37'); a('s_lshl_b32 s60, s60, 12')
            for k in range(4): a(f'buffer_store_dwordx4 v[8:11], v6, s[40:43], s60 offen offset:{1024*k} sc1')
            a(f's_add_u32 s60, s60, {WS_AF}')
            for k in range(4): a(f'buffer_store_dwordx4 v[8:11], v6, s[40:43], s60 offen offset:{1024*k}')
            if role == 'ffn':
                a('s_mul_i32 s60, s36, 7'); a('s_add_u32 s60, s60, s37'); a('s_sub_u32 s60, s60, 22'); a('s_lshl_b32 s60, s60, 11')
                a(f's_add_u32 s60, s60, {WS_E}')
                a('buffer_store_dwordx4 v[8:11], v6, s[40:43], s60 offen sc1')
                a('buffer_store_dwordx4 v[8:11], v6, s[40:43], s60 offen offset:1024 sc1')
            if role == 'wo':
                a('s_lshl_b32 s60, s36, 11'); a('s_sub_u32 s61, s37, 8'); a('s_lshl_b32 s61, s61, 8'); a('s_add_u32 s60, s60, s61')
                a(f's_add_u32 s60, s60, {WS_C}'); a('s_mov_b64 exec, 0xffff')
                a('buffer_store_dwordx4 v[8:11], v6, s[40:43], s60 offen sc1')
            a('s_mov_b64 exec, -1')
            a.label(L)
        def zsignal():
            L = h0_begin()
            a('s_waitcnt vmcnt(0)')
            a('s_lshl_b32 s60, s36, 7'); a('s_lshl_b32 s61, s37, 2'); a('s_add_u32 s60, s60, s61'); a(f's_add_u32 s60, s60, {WS_ZF}')
            a('s_mov_b64 exec, 1')
            a('v_mov_b32 v38, 0'); a('v_mov_b32 v39, s81')
            a('buffer_store_dword v39, v38, s[40:43], s60 offen sc1')
            a('s_mov_b64 exec, -1')
            a.label(L)
        def line_setup(ptr, size, rs, col_s):
            self.srd(48, ptr, size)
            a('v_lshrrev_b32 v158, 3, v0'); a(f's_mov_b32 s61, {rs}'); a('v_mul_lo_u32 v158, v158, s61')
            a('v_and_b32 v7, 7, v0'); a('v_lshl_add_u32 v158, v7, 4, v158')
            a(f's_mul_i32 s61, s38, {128*rs}'); a(f's_add_u32 s72, s{col_s}, s61')
            a('s_lshl_b32 s66, s38, 14'); a(f's_add_u32 s66, s66, {L_TILE}')
            def iss(role):
                if role in self.zfirst:
                    zero_stores(role); get_tag(); zsignal()
                if role not in self.late_k: barrier0()
                self.dma(48, 158, 72, 8 * rs, 16, 66, depth=self.depth.get(role, 64))
                if role in self.late_k: barrier0()
            return iss
        def line_finish():
            self.stamp(1)
            a('s_waitcnt vmcnt(0)')
            self.stamp(12)
            self.lds_sync(1)
            a('v_lshrrev_b32 v3, 2, v1'); a('v_lshl_add_u32 v3, v2, 3, v3'); a('v_lshlrev_b32 v3, 7, v3')
            a('v_and_b32 v7, 3, v0'); a('v_lshl_add_u32 v3, v7, 3, v3')
            a('s_lshl_b32 s61, s38, 5'); a(f's_add_u32 s61, s61, {L_TILE}'); a('v_add_u32 v3, s61, v3')
            self.tr_read(3, W1, 16, 4096, 512)
            self.stamp(14)
        def publish16(base_s, val, nl=0xffff):
            a(f'v_or_b32 v{val}, 1, v{val}')
            a('v_lshlrev_b32 v6, 2, v1')
            a(f's_mov_b64 exec, {nl}')
            a(f'buffer_store_dword v{val}, v6, s[40:43], s{base_s} offen sc1')
            a('s_mov_b64 exec, -1')
        def publish_tag(base_s, val):
            a(f'v_mov_b32_dpp v{val+1}, v{val} quad_perm:[1,1,3,3] {DPPF}')
            a(f'v_cvt_pk_bf16_f32 v{val}, v{val}, v{val+1}')
            a(f'v_mov_b32 v{val+1}, s81')
            a('v_lshlrev_b32 v6, 2, v1')
            a('s_mov_b64 exec, 0x5555')
            a(f'buffer_store_dwordx2 v[{val}:{val+1}], v6, s[40:43], s{base_s} offen sc1')
            a('s_mov_b64 exec, -1')
        def qgather_and_barrier1():
            L = h0_begin()
            a('s_and_b32 s61, s2, 31'); a('s_lshl_b32 s61, s61, 7'); a(f's_add_u32 s61, s61, {WS_M + 4}')
            self.sentinel(61, 8, sleep=8)
            self.stamp(2)
            a('s_lshl_b32 s60, s36, 11'); a(f's_add_u32 s60, s60, {WS_Q}')
            Lp = self.lab('L_qp')
            a('v_lshlrev_b32 v6, 5, v0'); a('v_and_b32 v7, 31, v0'); a('v_lshlrev_b32 v7, 2, v7')
            a('s_lshl_b32 s61, s36, 7'); a(f's_add_u32 s61, s61, {WS_ZF}')
            a.label(Lp)
            a('buffer_load_dwordx4 v[8:11], v6, s[40:43], s60 offen sc1')
            a('buffer_load_dwordx4 v[12:15], v6, s[40:43], s60 offen offset:16 sc1')
            a('buffer_load_dword v17, v7, s[40:43], s61 offen sc1')
            a('s_waitcnt vmcnt(0)')
            self.tag_check([9, 11, 13, 15, 17], 16, Lp, sleep=self.qsleep)
            a('v_mov_b32 v9, v10'); a('v_mov_b32 v10, v12'); a('v_mov_b32 v11, v14')
            a('v_lshlrev_b32 v6, 4, v0'); a(f'v_add_u32 v6, {L_QL}, v6')
            a('ds_write_b128 v6, v[8:11]'); a('s_waitcnt lgkmcnt(0)')
            self.stamp(3)
            a.label(L)
            a('s_barrier')
        def pick_path(dst, fast, slow):
            if not self.fast:
                a(f's_mov_b32 s{dst}, s{slow}'); return
            a('s_add_u32 s77, s77, 1'); a(f's_cmp_lt_u32 s77, {FAST_TRIES}'); a('s_cselect_b32 s76, 0, s77'); a('s_and_b32 s76, s76, 1')
            a('s_cmp_eq_u32 s76, 0'); a(f's_cselect_b32 s{dst}, s{fast}, s{slow}')
        def t1_combine():
            Lp = self.lab('L_t1')
            a('v_lshlrev_b32 v6, 7, v2'); a('v_lshl_add_u32 v6, v1, 3, v6')
            a('s_lshl_b32 s64, s36, 5'); a('s_add_u32 s64, s64, s37'); a('s_lshl_b32 s64, s64, 12'); a(f's_add_u32 s65, s64, {WS_AF}')
            a('s_lshl_b32 s62, s36, 12'); a('s_lshl_b32 s61, s37, 7'); a('s_add_u32 s62, s62, s61')
            a(f's_add_u32 s63, s62, {WS_BF}'); a(f's_add_u32 s62, s62, {WS_B}')
            a('s_mov_b32 s77, 0')
            a.label(Lp)
            pick_path(60, 65, 64)
            for i in range(8): a(f'buffer_load_dwordx2 v[{8+2*i}:{9+2*i}], v6, s[40:43], s60 offen offset:{512*i} sc1')
            a('s_waitcnt vmcnt(0)')
            self.valid_check(range(8, 24), 24, Lp, sleep=self.psleep.get('A', 0))
            self.stamp(6)
            a('v_max3_f32 v24, v9, v11, v13'); a('v_max3_f32 v24, v24, v15, v17'); a('v_max3_f32 v24, v24, v19, v21')
            a('v_max_f32 v24, v24, v23')
            self.allreduce([24], 'v_max_f32', 26, rows_only=True)
            for i in range(8): a(f'v_sub_f32 v{9+2*i}, v{9+2*i}, v24')
            for i in range(8): a(f'v_exp_f32 v{9+2*i}, v{9+2*i}')
            a('v_mul_f32 v24, v9, v8'); a('v_mov_b32 v25, v9')
            for i in range(1, 8):
                a(f'v_fmac_f32 v24, v{9+2*i}, v{8+2*i}'); a(f'v_add_f32 v25, v25, v{9+2*i}')
            self.allreduce([24, 25], 'v_add_f32', 26, rows_only=True)
            a('v_rcp_f32 v25, v25'); a('v_lshlrev_b32 v6, 3, v1'); a('v_mul_f32 v24, v24, v25'); a('v_mov_b32 v25, s81')
            a('s_mov_b64 exec, 0xffff')
            if self.fast: a('buffer_store_dwordx2 v[24:25], v6, s[40:43], s63 offen')
            a('buffer_store_dwordx2 v[24:25], v6, s[40:43], s62 offen sc1')
            a('s_mov_b64 exec, -1')
            self.stamp(7)

        a.label('L_role_wq')
        a('s_lshl_b32 s62, s36, 10'); a('s_lshl_b32 s61, s37, 7'); a('s_add_u32 s62, s62, s61')
        iss = line_setup(14, 512 * 4096 * 2, 8192, 62)
        self.srd(52, 8, 1024); a('v_lshlrev_b32 v7, 4, v0')
        a('buffer_load_dwordx4 v[12:15], v7, s[52:55], 0 offen')
        iss('wq'); line_finish(); zero_stores('wq'); get_tag()
        X = 16
        self.unpack8(12, X)
        a(f'v_add_f32 v24, v{X}, v{X+1}')
        for k in range(2, 8): a(f'v_add_f32 v24, v24, v{X+k}')
        self.allreduce([24], 'v_add_f32', 26)
        a(f'v_mul_f32 v24, {hexf(1/512)}, v24')
        for k in range(8): a(f'v_sub_f32 v{28+k}, v{X+k}, v24')
        a('v_mul_f32 v25, v28, v28')
        for k in range(1, 8): a(f'v_fmac_f32 v25, v{28+k}, v{28+k}')
        self.allreduce([25], 'v_add_f32', 26)
        a(f'v_mul_f32 v25, {hexf(1/512)}, v25')
        self.round_pair(24, 25, 26)
        a(f'v_add_f32 v25, {hexf(1e-5)}, v25'); self.round1(25, 26)
        a('v_sqrt_f32 v25, v25'); self.round1(25, 26)
        a('v_rcp_f32 v25, v25')
        for k in range(8): a(f'v_sub_f32 v{X+k}, v{X+k}, v24')
        self.round_list(list(range(X, X+8)), 26)
        for k in range(8): a(f'v_mul_f32 v{X+k}, v{X+k}, v25')
        self.round_list(list(range(X, X+8)), 26)
        zsignal()
        self.stamp(4)
        Lp = self.lab('L_mp')
        a('v_lshlrev_b32 v6, 5, v0'); a(f's_mov_b32 s60, {WS_M}')
        a.label(Lp)
        a('buffer_load_dwordx4 v[104:107], v6, s[40:43], s60 offen sc1')
        a('buffer_load_dwordx4 v[108:111], v6, s[40:43], s60 offen offset:16 sc1')
        a('buffer_load_dwordx4 v[112:115], v6, s[40:43], s60 offen offset:2048 sc1')
        a('buffer_load_dwordx4 v[116:119], v6, s[40:43], s60 offen offset:2064 sc1')
        a('s_waitcnt vmcnt(0)')
        self.tag_check([105, 107, 109, 111, 113, 115, 117, 119], 8, Lp, sleep=4)
        self.stamp(5)
        for k in range(8):
            a(f'v_lshlrev_b32 v{24+2*k}, 16, v{104+2*k}'); a(f'v_and_b32 v{25+2*k}, 0xffff0000, v{104+2*k}')
        for k in range(8): a(f'v_add_f32 v{32+k}, 1.0, v{32+k}')
        self.round_list(list(range(32, 40)), 8)
        for k in range(8): a(f'v_mul_f32 v{X+k}, v{X+k}, v{32+k}')
        self.round_list(list(range(X, X+8)), 8)
        for k in range(8): a(f'v_add_f32 v{X+k}, v{X+k}, v{24+k}')
        self.pack8(X, 8)
        a('ds_write_b128 v5, v[8:11]'); a('s_waitcnt lgkmcnt(0)')
        self.gemv(4, W1, 16, ACC)
        a('s_lshl_b32 s60, s36, 11'); a('s_lshl_b32 s61, s37, 8'); a('s_add_u32 s60, s60, s61')
        a('s_lshl_b32 s61, s38, 6'); a('s_add_u32 s60, s60, s61'); a(f's_add_u32 s60, s60, {WS_Q}')
        publish_tag(60, ACC)
        self.stamp(8)
        qgather_and_barrier1()
        a('s_branch L_tail_plain')

        a.label('L_role_wo')
        a('s_lshl_b32 s62, s36, 19'); a('s_sub_u32 s61, s37, 8'); a('s_lshl_b32 s61, s61, 7'); a('s_add_u32 s62, s62, s61')
        iss = line_setup(16, 4096 * 512 * 2, 1024, 62)
        iss('wo')
        if 'wo' not in self.zfirst: zero_stores('wo'); get_tag()
        line_finish()
        if 'wo' not in self.zfirst: zsignal()
        qgather_and_barrier1()
        a('s_barrier')
        L = h0_begin()
        t1_combine()
        Lp = self.lab('L_bp')
        a('v_lshlrev_b32 v6, 6, v0'); a('s_lshl_b32 s64, s36, 12'); a(f's_add_u32 s65, s64, {WS_BF}'); a(f's_add_u32 s64, s64, {WS_B}')
        a('s_mov_b32 s77, 0')
        a.label(Lp)
        pick_path(60, 65, 64)
        for i in range(4): a(f'buffer_load_dwordx4 v[{8+4*i}:{11+4*i}], v6, s[40:43], s60 offen offset:{16*i} sc1')
        a('s_waitcnt vmcnt(0)')
        self.tag_check([9, 11, 13, 15, 17, 19, 21, 23], 24, Lp, sleep=self.psleep.get('B', 0))
        self.stamp(8)
        a('v_cvt_pk_bf16_f32 v16, v8, v10') if False else None
        a('v_cvt_pk_bf16_f32 v24, v8, v10'); a('v_cvt_pk_bf16_f32 v25, v12, v14'); a('v_cvt_pk_bf16_f32 v26, v16, v18'); a('v_cvt_pk_bf16_f32 v27, v20, v22')
        a('v_lshlrev_b32 v6, 4, v0'); a(f'v_add_u32 v6, {L_VEC}, v6')
        a('ds_write_b128 v6, v[24:27]'); a('s_waitcnt lgkmcnt(0)')
        a.label(L)
        a('v_lshlrev_b32 v4, 4, v2'); a(f'v_add_u32 v4, {L_VEC}, v4')
        a('s_lshl_b32 s60, s36, 11'); a('s_sub_u32 s61, s37, 8'); a('s_lshl_b32 s61, s61, 8'); a('s_add_u32 s60, s60, s61')
        a('s_lshl_b32 s61, s38, 6'); a('s_add_u32 s60, s60, s61'); a(f's_add_u32 s60, s60, {WS_C}')
        a('s_barrier')
        self.gemv(4, W1, 16, ACC)
        publish16(60, ACC)
        self.stamp(9)
        a('s_branch L_hend')

        a.label('L_role_mod')
        a('s_mul_i32 s62, s36, 768'); a('s_sub_u32 s61, s37, 16'); a('s_lshl_b32 s61, s61, 7'); a('s_add_u32 s62, s62, s61')
        a('s_lshr_b32 s68, s62, 1'); a('s_lshl_b32 s61, s38, 4'); a('s_add_u32 s68, s68, s61')
        iss = line_setup(28, 512 * 3072 * 2, 6144, 62)
        self.srd(52, 26, 1024); a('v_lshlrev_b32 v7, 4, v0')
        a('buffer_load_dwordx4 v[12:15], v7, s[52:55], 0 offen')
        iss('mod'); line_finish(); zero_stores('mod'); get_tag()
        X = 16
        self.unpack8(12, X)
        a(f's_mov_b32 s61, {hexf(-LOG2E)}')
        for k in range(8): a(f'v_mul_f32 v{24+k}, s61, v{X+k}')
        for k in range(8): a(f'v_exp_f32 v{24+k}, v{24+k}')
        for k in range(8): a(f'v_add_f32 v{24+k}, 1.0, v{24+k}')
        for k in range(8): a(f'v_rcp_f32 v{24+k}, v{24+k}')
        for k in range(8): a(f'v_mul_f32 v{X+k}, v{X+k}, v{24+k}')
        self.pack8(X, 8)
        a('ds_write_b128 v5, v[8:11]'); a('s_waitcnt lgkmcnt(0)')
        self.gemv(4, W1, 16, ACC)
        a('s_lshl_b32 s60, s68, 2'); a(f's_add_u32 s60, s60, {WS_M}')
        publish_tag(60, ACC)
        self.stamp(8)
        zsignal()
        qgather_and_barrier1()
        a('s_mov_b32 s75, 3')
        a('s_cmp_eq_u32 s37, 21'); a('s_cbranch_scc1 L_fin_common')
        a('s_branch L_tail_plain')

        a.label('L_role_fin')
        if self.cpf:
            Lc = self.lab('L_nocpf'); Ll = self.lab('L_cpf')
            a('s_cmp_eq_u32 s38, 0'); a(f's_cbranch_scc1 {Lc}')
            a('s_getpc_b64 s[60:61]')
            a.label('L_pc_here')
            a(f's_sub_u32 s60, s60, L_pc_here-{KNAME}'); a('s_subb_u32 s61, s61, 0')
            a('s_sub_u32 s62, s38, 1'); a('s_lshl_b32 s62, s62, 12')
            a('v_lshlrev_b32 v6, 6, v0')
            a.label(Ll)
            a('v_add_u32 v7, s62, v6'); a(f'v_min_u32 v7, L_code_end-{KNAME}-4, v7')
            a('global_load_dword v8, v7, s[60:61]')
            a('s_add_u32 s62, s62, 12288'); a(f's_cmp_lt_u32 s62, L_code_end-{KNAME}'); a(f's_cbranch_scc1 {Ll}')
            a.label(Lc)
        if 'fin' in self.zfirst:
            zero_stores('fin'); get_tag(); zsignal(); barrier0()
        else:
            barrier0(); zero_stores('fin'); get_tag(); zsignal()
        qgather_and_barrier1()
        a('s_sub_u32 s75, s37, 29')
        a.label('L_fin_common')
        L = h0_begin()
        a('s_lshl_b32 s69, s36, 6'); a('s_lshl_b32 s61, s75, 4'); a('s_add_u32 s69, s69, s61')
        self.srd(52, 8, 1024)
        a('v_lshlrev_b32 v6, 1, v1'); a('s_lshl_b32 s60, s69, 1')
        a('buffer_load_ushort v160, v6, s[52:55], s60 offen')
        Lp = self.lab('L_gp')
        a('v_and_b32 v6, 14, v1'); a('v_lshlrev_b32 v6, 2, v6'); a('s_lshl_b32 s60, s69, 2'); a(f's_add_u32 s60, s60, {WS_M}')
        a(f's_add_u32 s61, s60, {1024*4}'); a(f's_add_u32 s60, s60, {2560*4}')
        a('v_lshrrev_b32 v7, 3, v0'); a('v_lshlrev_b32 v7, 7, v7'); a('v_and_b32 v8, 7, v0')
        a('v_min_u32 v9, 6, v8'); a('v_lshl_add_u32 v15, v9, 2, v7'); a('v_lshl_add_u32 v7, v8, 2, v7')
        a(f's_mov_b32 s62, {WS_ZF + 32}')
        a.label(Lp)
        a('buffer_load_dwordx2 v[8:9], v6, s[40:43], s61 offen sc1')
        a('buffer_load_dwordx2 v[10:11], v6, s[40:43], s60 offen sc1')
        a('buffer_load_dword v13, v7, s[40:43], s62 offen sc1')
        a('buffer_load_dword v14, v15, s[40:43], s62 offen offset:56 sc1')
        a('s_waitcnt vmcnt(0)')
        self.tag_check([9, 11, 13, 14], 12, Lp, sleep=8)
        a('v_lshlrev_b32 v160, 16, v160')
        a('v_and_b32 v12, 1, v0'); a('v_cmp_eq_u32 vcc, 1, v12')
        a('v_lshlrev_b32 v161, 16, v8'); a('v_and_b32 v8, 0xffff0000, v8'); a('v_cndmask_b32 v161, v161, v8, vcc')
        a('v_lshlrev_b32 v162, 16, v10'); a('v_and_b32 v10, 0xffff0000, v10'); a('v_cndmask_b32 v162, v162, v10, vcc')
        a.label(L)
        a('s_barrier')
        a('s_cmp_lg_u32 s38, 0'); a('s_cbranch_scc1 L_hend')
        t1_combine()
        Lp = self.lab('L_cp')
        a('v_lshlrev_b32 v6, 2, v1'); a('s_lshl_b32 s60, s69, 2'); a(f's_add_u32 s60, s60, {WS_C}')
        a(f's_add_u32 s61, s60, 4096'); a(f's_add_u32 s62, s60, 8192'); a(f's_add_u32 s63, s60, 12288')
        a.label(Lp)
        for gp in range(8): a(f'buffer_load_dword v{8+gp}, v6, s[40:43], s{60+gp//2} offen offset:{2048*(gp&1)} sc1')
        a('s_waitcnt vmcnt(0)')
        self.valid_check(range(8, 16), 16, Lp, sleep=2)
        a('v_add_f32 v8, v8, v9'); a('v_add_f32 v10, v10, v11'); a('v_add_f32 v12, v12, v13'); a('v_add_f32 v14, v14, v15')
        a('v_add_f32 v8, v8, v10'); a('v_add_f32 v12, v12, v14'); a('v_add_f32 v8, v8, v12')
        a('v_fmac_f32 v160, v161, v8')
        self.stamp(8)
        self.srd(52, 30, 1024)
        a('v_lshlrev_b32 v6, 11, v2'); a('v_lshl_add_u32 v6, v1, 2, v6')
        a('s_lshl_b32 s76, s69, 1')
        a('s_lshl_b32 s60, s69, 2'); a(f's_add_u32 s60, s60, {WS_E}')
        soffs = [60 + i if i < 10 else 72 + (i - 10) for i in range(14)]
        for i in range(1, 14): a(f's_add_u32 s{soffs[i]}, s60, {8192*i}')
        Lp = self.lab('L_ep')
        a.label(Lp)
        for i in range(14): a(f'buffer_load_dword v{8+i}, v6, s[40:43], s{soffs[i]} offen sc1')
        a('s_waitcnt vmcnt(0)')
        self.valid_check(range(8, 22), 24, Lp, sleep=self.psleep.get('E', 0))
        self.stamp(9)
        for st in ((8, 9), (10, 11), (12, 13), (14, 15), (16, 17), (18, 19), (20, 21), (8, 10), (12, 14), (16, 18), (8, 12), (16, 20), (8, 16)):
            a(f'v_add_f32 v{st[0]}, v{st[0]}, v{st[1]}')
        self.allreduce([8], 'v_add_f32', 24, rows_only=True)
        self.round1(8, 9)
        a('v_fmac_f32 v160, v162, v8')
        a('v_cvt_pk_bf16_f32 v8, v160, v160')
        a('v_lshlrev_b32 v6, 1, v1')
        a('s_mov_b64 exec, 0xffff')
        a('buffer_store_short v8, v6, s[52:55], s76 offen')
        a('s_lshl_b32 s60, s37, 3'); a('s_add_u32 s60, s60, s36'); a('s_cmp_lg_u32 s60, 232'); a('s_cbranch_scc1 L_hend')
        a('s_add_u32 s83, s83, 1'); a('v_mov_b32 v8, s83'); a('v_mov_b32 v6, 0'); a(f's_mov_b32 s60, {WS_EPOCH}')
        a('s_mov_b64 exec, 1')
        a('buffer_store_dword v8, v6, s[40:43], s60 offen')
        self.stamp(10)
        a('s_branch L_hend')

        WD = 104
        a.label('L_role_ffn')
        self.srd(48, 20, 512 * 1792 * 2); self.srd(52, 22, 512 * 1792 * 2)
        a('v_lshrrev_b32 v158, 2, v0'); a(f's_mov_b32 s61, 3584'); a('v_mul_lo_u32 v158, v158, s61')
        a('v_and_b32 v7, 3, v0'); a('v_lshl_add_u32 v158, v7, 4, v158')
        a('s_mul_i32 s72, s36, 448'); a('s_sub_u32 s61, s37, 22'); a('s_lshl_b32 s61, s61, 6'); a('s_add_u32 s72, s72, s61')
        a('s_lshr_b32 s68, s72, 1')
        a(f's_mul_i32 s61, s38, {128*3584}'); a('s_add_u32 s72, s72, s61'); a('s_mov_b32 s73, s72')
        a('s_lshl_b32 s66, s38, 13'); a(f's_add_u32 s66, s66, {L_TILE}'); a('s_add_u32 s74, s66, 32768')
        zero_stores('ffn'); get_tag(); zsignal()
        barrier0()
        dff = self.depth.get('ffn', 64)
        def ffn_issue(depth):
            self.dma(48, 158, 72, 16 * 3584, 8, 66, nt=self.ffn_nt, depth=depth)
            self.dma(52, 158, 73, 16 * 3584, 8, 74, nt=self.ffn_nt, depth=depth, first=(depth >= 16))
        L1 = self.lab('L_f1'); L2 = self.lab('L_f2')
        a('s_cmp_eq_u32 s38, 0'); a(f's_cbranch_scc1 {L1}')
        ffn_issue(dff)
        a(f's_branch {L2}')
        a.label(L1)
        ffn_issue(self.depth.get('ffn0', 8))
        a.label(L2)
        qgather_and_barrier1()
        self.stamp(1)
        a('s_waitcnt vmcnt(0)')
        self.stamp(12)
        self.lds_sync(1)
        a('v_lshrrev_b32 v6, 2, v1'); a('v_lshl_add_u32 v6, v2, 3, v6'); a('v_lshlrev_b32 v6, 6, v6')
        a('v_and_b32 v7, 1, v0'); a('v_lshl_add_u32 v6, v7, 3, v6')
        a('v_bfe_u32 v7, v0, 1, 1'); a('v_lshl_add_u32 v6, v7, 15, v6')
        a('s_lshl_b32 s61, s38, 4'); a(f's_add_u32 s61, s61, {L_TILE}'); a('v_add_u32 v6, s61, v6')
        self.tr_read(6, W1, 16, 2048, 256)
        self.stamp(14)
        self.lds_sync(2)
        self.srd(48, 24, 1792 * 512 * 2)
        a('v_lshlrev_b32 v158, 4, v0')
        a('s_lshl_b32 s61, s38, 3'); a('s_add_u32 s72, s68, s61'); a('s_lshl_b32 s72, s72, 10')
        a('s_lshl_b32 s66, s38, 13'); a(f's_add_u32 s66, s66, {L_TILE}')
        self.dma(48, 158, 72, 1024, 8, 66, depth=8)
        a('s_waitcnt vmcnt(0)')
        self.lds_sync(3)
        a('v_lshrrev_b32 v6, 2, v1'); a('v_lshl_add_u32 v6, v2, 3, v6'); a('v_lshlrev_b32 v6, 10, v6')
        a('v_and_b32 v7, 3, v0'); a('v_lshl_add_u32 v6, v7, 3, v6')
        a('s_lshl_b32 s61, s38, 8'); a(f's_add_u32 s61, s61, {L_TILE}'); a('v_add_u32 v6, s61, v6')
        self.tr_read(6, WD, 8, 32, 4096)
        self.srd(52, 8, 1024)
        a('v_lshlrev_b32 v7, 2, v0'); a('s_lshl_b32 s60, s38, 8')
        a('buffer_load_dword v142, v7, s[52:55], s60 offen')
        Lp = self.lab('L_gp2')
        a('v_lshlrev_b32 v6, 3, v0'); a('s_lshl_b32 s60, s38, 9'); a(f's_add_u32 s60, s60, {WS_M + 1024*4}'); a('s_add_u32 s61, s60, 4096')
        a('v_lshrrev_b32 v7, 3, v0'); a('v_lshlrev_b32 v7, 7, v7'); a('v_and_b32 v8, 7, v0'); a('v_lshl_add_u32 v7, v8, 2, v7')
        a(f's_mov_b32 s62, {WS_ZF + 32}')
        a.label(Lp)
        a('buffer_load_dwordx2 v[8:9], v6, s[40:43], s60 offen sc1')
        a('buffer_load_dwordx2 v[10:11], v6, s[40:43], s60 offen offset:2048 sc1')
        a('buffer_load_dwordx2 v[12:13], v6, s[40:43], s61 offen sc1')
        a('buffer_load_dword v14, v7, s[40:43], s62 offen sc1')
        a('s_waitcnt vmcnt(0)')
        self.tag_check([9, 11, 13, 14], 16, Lp, sleep=8)
        for k, r in enumerate((8, 10, 12, 142)):
            a(f'v_and_b32 v{137+2*k}, 0xffff0000, v{r}'); a(f'v_lshlrev_b32 v{136+2*k}, 16, v{r}')
        a('v_add_f32 v140, 1.0, v140'); a('v_add_f32 v141, 1.0, v141'); self.round_pair(140, 141, 16)
        a('v_lshlrev_b32 v144, 3, v0'); a('s_lshl_b32 s72, s38, 9'); a(f's_add_u32 s72, s72, {WS_C}')
        a('s_add_u32 s73, s72, 4096'); a('s_add_u32 s74, s72, 8192'); a('s_add_u32 s75, s72, 12288')
        a('v_lshlrev_b32 v145, 2, v0'); a('s_lshl_b32 s61, s38, 8'); a(f's_add_u32 s61, s61, {L_VEC}'); a('v_add_u32 v145, s61, v145')
        a('v_lshlrev_b32 v4, 4, v2'); a(f'v_add_u32 v4, {L_VEC}, v4')
        a(f'v_mov_b32 v146, {L_ST}'); a('s_lshl_b32 s61, s38, 3'); a('v_add_u32 v147, s61, v146')
        a('s_barrier')
        L = h0_begin()
        t1_combine()
        a.label(L)
        Lp = self.lab('L_cp2')
        a.label(Lp)
        for gp in range(8): a(f'buffer_load_dwordx2 v[{8+2*gp}:{9+2*gp}], v144, s[40:43], s{72+gp//2} offen offset:{2048*(gp&1)} sc1')
        a('s_waitcnt vmcnt(0)')
        self.valid_check(range(8, 24), 24, Lp, sleep=self.psleep.get('C', 0))
        self.stamp(8)
        for (x_, y_) in ((8, 10), (12, 14), (16, 18), (20, 22), (8, 12), (16, 20), (8, 16)):
            a(f'v_add_f32 v{x_}, v{x_}, v{y_}'); a(f'v_add_f32 v{x_+1}, v{x_+1}, v{y_+1}')
        a('v_fmac_f32 v142, v136, v8'); a('v_fmac_f32 v143, v137, v9')
        a('v_add_f32 v10, v142, v143'); a('v_mul_f32 v11, v142, v142'); a('v_fmac_f32 v11, v143, v143')
        self.allreduce([10, 11], 'v_add_f32', 12)
        a('s_mov_b64 exec, 1'); a('ds_write_b64 v147, v[10:11]'); a('s_mov_b64 exec, -1')
        a('s_waitcnt lgkmcnt(0)')
        a('s_barrier')
        a('ds_read_b128 v[12:15], v146'); a('ds_read_b128 v[16:19], v146 offset:16')
        a('s_waitcnt lgkmcnt(0)')
        a('v_add_f32 v12, v12, v14'); a('v_add_f32 v13, v13, v15'); a('v_add_f32 v16, v16, v18'); a('v_add_f32 v17, v17, v19')
        a('v_add_f32 v12, v12, v16'); a('v_add_f32 v13, v13, v17')
        a(f'v_mul_f32 v12, {hexf(1/512)}, v12'); a(f'v_mul_f32 v13, {hexf(1/512)}, v13')
        a('v_fma_f32 v13, -v12, v12, v13'); a(f'v_add_f32 v13, {hexf(1e-5)}, v13'); a('v_rsq_f32 v13, v13')
        a('v_sub_f32 v142, v142, v12'); a('v_sub_f32 v143, v143, v12')
        a('v_mul_f32 v142, v142, v13'); a('v_mul_f32 v143, v143, v13')
        a('v_fma_f32 v142, v142, v140, v138'); a('v_fma_f32 v143, v143, v141, v139')
        a('v_cvt_pk_bf16_f32 v8, v142, v143')
        a('ds_write_b32 v145, v8'); a('s_waitcnt lgkmcnt(0)')
        a('s_barrier')
        self.stamp(9)
        ACC2 = 136
        self.gemv(4, W1, 16, ACC2)
        self.round1(ACC2, ACC2 + 1)
        a(f's_mov_b32 s61, {hexf(-LOG2E)}')
        a(f'v_mul_f32 v8, s61, v{ACC2}'); a('v_exp_f32 v8, v8'); a('v_add_f32 v8, 1.0, v8'); a('v_rcp_f32 v8, v8')
        a(f'v_mul_f32 v8, v{ACC2}, v8'); self.round1(8, 9)
        a(f'v_mov_b32_dpp v9, v{ACC2} row_ror:8 {DPPF}')
        a('v_mul_f32 v8, v8, v9')
        a('v_cvt_pk_bf16_f32 v8, v8, v8')
        a('v_lshlrev_b32 v6, 1, v1'); a('s_lshl_b32 s61, s38, 4'); a(f's_add_u32 s61, s61, {L_AV}'); a('v_add_u32 v6, s61, v6')
        a('s_mov_b64 exec, 0xff'); a('ds_write_b16 v6, v8'); a('s_mov_b64 exec, -1')
        a('v_lshlrev_b32 v7, 4, v2'); a(f'v_add_u32 v7, {L_AV}, v7')
        a('s_mul_i32 s60, s36, 7'); a('s_add_u32 s60, s60, s37'); a('s_sub_u32 s60, s60, 22'); a('s_lshl_b32 s60, s60, 11')
        a('s_lshl_b32 s61, s38, 9'); a('s_add_u32 s60, s60, s61'); a(f's_add_u32 s60, s60, {WS_E}')
        a('s_mov_b32 s62, 0xffff0000'); a('s_mov_b32 s63, 0xffff0000'); a('s_mov_b32 s64, 0'); a('s_mov_b32 s65, -1')
        a('s_waitcnt lgkmcnt(0)')
        a('s_barrier')
        a('ds_read_b128 v[136:139], v7'); a('s_waitcnt lgkmcnt(0)')
        for jj in range(8):
            a(f'v_mfma_f32_16x16x32_bf16 v[{8+4*jj}:{11+4*jj}], v[136:139], v[{WD+4*jj}:{WD+4*jj+3}], 0')
        self.stamp(10)
        for half in range(2):
            b = 8 + 16 * half
            a(f'v_cndmask_b32 v{140+2*half}, v{b}, v{b+4}, s[62:63]'); a(f'v_cndmask_b32 v{141+2*half}, v{b+8}, v{b+12}, s[62:63]')
            a(f'v_cndmask_b32 v{140+2*half}, v{140+2*half}, v{141+2*half}, s[64:65]')
            a(f'v_or_b32 v{140+2*half}, 1, v{140+2*half}')
        a('v_lshlrev_b32 v6, 2, v0')
        a('buffer_store_dword v140, v6, s[40:43], s60 offen sc1')
        a('buffer_store_dword v142, v6, s[40:43], s60 offen offset:256 sc1')
        a('s_branch L_hend')

        a.label('L_tail_plain')
        a('s_barrier')
        a('s_cmp_lg_u32 s38, 0'); a('s_cbranch_scc1 L_hend')
        t1_combine()
        a.label('L_hend')
        self.stamp(11)
        self.stamp_flush(helper=True)
        a('s_endpgm')

    def build(self):
        a = self.a
        hdr = open('cdna_kernels/' + KNAME.replace('_kernel', '') + '.s.ref').read().split('\n')
        head = [l for l in hdr if l.startswith(';') and '@launch' not in l and 'Override' not in l and 'grid=ceil' not in l]
        a.raw('\n'.join(head))
        a.raw(f'; @launch grid=(256,1,1) block=(768,1,1) lds={LDS_SIZE}')
        a.raw('.amdgcn_target "amdgcn-amd-amdhsa--gfx950"\n.text')
        a.raw(f'.globl {KNAME}\n.p2align 8\n.type {KNAME},@function\n{KNAME}:')
        a('s_cmp_ge_u32 s2, 256'); a('s_cbranch_scc1 L_abort')
        a('s_load_dwordx16 s[8:23], s[0:1], 0'); a('s_load_dwordx8 s[24:31], s[0:1], 64'); a('s_load_dwordx4 s[32:35], s[0:1], 96')
        a('v_lshrrev_b32 v1, 6, v0'); a('v_readfirstlane_b32 s3, v1'); a('v_and_b32 v0, 63, v0')
        if self.remap:
            a('s_lshr_b32 s36, s2, 5'); a('s_and_b32 s37, s2, 31')
        else:
            a('s_and_b32 s36, s2, 7'); a('s_lshr_b32 s37, s2, 3')
        self.stamp_init()
        a('s_waitcnt lgkmcnt(0)')
        self.srd(40, 34, WS_SIZE)
        a('s_cmp_ge_u32 s3, 8'); a('s_cbranch_scc1 L_helper')
        self.attention()
        a.label('L_helper')
        self.helper()
        a.label('L_abort')
        a('s_endpgm')
        a.label('L_code_end')
        n = a.pad()
        a.raw('.section .rodata,"a"\n.p2align 6')
        a.raw(f'.amdhsa_kernel {KNAME}\n  .amdhsa_next_free_vgpr 168\n  .amdhsa_next_free_sgpr 102\n  .amdhsa_accum_offset 168\n'
              '  .amdhsa_group_segment_fixed_size 0\n  .amdhsa_kernarg_size 112\n  .amdhsa_user_sgpr_count 2\n'
              '  .amdhsa_user_sgpr_kernarg_segment_ptr 1\n  .amdhsa_system_sgpr_workgroup_id_x 1\n'
              '  .amdhsa_float_denorm_mode_32 3\n.end_amdhsa_kernel')
        return a.text(), n

if __name__ == '__main__':
    import argparse
    p = argparse.ArgumentParser()
    p.add_argument('-o', default='cdna_kernels/' + KNAME.replace('_kernel', '') + '.s')
    p.add_argument('--thr', type=int, default=2); p.add_argument('--thr-deep', type=int, default=3)
    p.add_argument('--stamps', action='store_true'); p.add_argument('--ffn-nt', action='store_true')
    p.add_argument('--deep', default='ffn'); p.add_argument('--x-notile', action='store_true'); p.add_argument('--x-nopoll', action='store_true')
    p.add_argument('--qsleep', type=int, default=4); p.add_argument('--x-nokv', action='store_true')
    p.add_argument('--depth', default=''); p.add_argument('--kthr', default=''); p.add_argument('--late', default=''); p.add_argument('--light', default=''); p.add_argument('--nocpf', action='store_true'); p.add_argument('--remap', action='store_true'); p.add_argument('--nofast', action='store_true'); p.add_argument('--ng', default=''); p.add_argument('--psleep', default=''); p.add_argument('--dbgmode', action='store_true'); p.add_argument('--vthr', type=int, default=None); p.add_argument('--zfirst', default='')
    args = p.parse_args()
    kv = lambda t: {x.split('=')[0]: int(x.split('=')[1]) for x in t.split(',') if x}
    g = Gen(thr=args.thr, stamps=args.stamps, thr_deep=args.thr_deep, ffn_nt=args.ffn_nt, deep_roles=tuple(x for x in args.deep.split(',') if x),
            x_notile=args.x_notile, x_nopoll=args.x_nopoll, qsleep=args.qsleep, x_nokv=args.x_nokv, depth=kv(args.depth), kthr=kv(args.kthr), late_k=tuple(x for x in args.late.split(',') if x), vthr=args.vthr, zfirst=tuple(x for x in args.zfirst.split(',') if x), ngroups=kv(args.ng), psleep=kv(args.psleep))
    g.light = (set(int(x) for x in args.light.split(',')) if args.light else None)
    g.cpf = not args.nocpf
    g.dbgmode = args.dbgmode; g.remap = args.remap; g.fast = not args.nofast
    t, n = g.build()
    open(args.o, 'w').write(t)
    print('wrote', args.o, 'lines', t.count('\n'), 'nops inserted', n)
```

```python
import sys, struct
sys.path.insert(0, 'gen')
from asmdsl import Asm

KNAME = 'adaLN_cond__gqa_block_cached__swiglu_ffn__decode_kernel'

WS_A = 0
WS_SM = 1 << 20
WS_AF = 5 << 20
WS_B = (2 << 20) + 131072
WS_BF = (2 << 20) + 196608
WS_C = WS_SM + 262144
WS_E = WS_SM + 32768
WS_M = (2 << 20) + 262144
WS_Q = (2 << 20) + 16384
WS_ZF = (2 << 20) + 65536
WS_EPOCH = (3 << 20)
WS_STAMP = 4 << 20
WS_SIZE = 8 << 20
L_TILE = 0
NVL = 10
L_VL = 65536
VLS = NVL * 1024
L_ML = L_VL + 8 * VLS
L_QL = L_ML + 256
L_VEC = L_QL + 1024
L_ST = L_VEC + 4096
L_AV = L_ST + 64
L_CNT = L_AV + 64
L_MX = L_CNT + 64
LDS_SIZE = L_MX + 64
assert LDS_SIZE <= 163840

LOG2E = 1.4426950408889634
def f2u(x): return struct.unpack('<I', struct.pack('<f', x))[0]
def hexf(x): return '0x%08x' % f2u(x)
DPPF = 'row_mask:0xf bank_mask:0xf'
POLL_LIMIT = 400000
FAST_TRIES = 64

class Gen:
    def __init__(self, thr=2, stamps=False, thr_deep=3, ffn_nt=False, qk_extra=True, deep_roles=('ffn',), x_notile=False, x_nopoll=False,
                 qsleep=4, x_nokv=False, depth=None, kthr=None, late_k=(), vthr=None, zfirst=(), ngroups=None, psleep=None, ext=None):
        self.a = Asm(); self.thr = thr; self.stamps = stamps; self.thr_deep = thr_deep; self.ffn_nt = ffn_nt
        self.qk_extra = qk_extra; self.deep_roles = deep_roles; self.x_notile = x_notile; self.x_nopoll = x_nopoll
        self.ext = ext or {}; self.psleep = psleep or {}; self.ngroups = ngroups or {}; self.vthr = vthr; self.zfirst = zfirst; self.depth = depth or {}; self.kthr = kthr or {}; self.late_k = late_k; self.qsleep = qsleep; self.x_nokv = x_nokv
        self.slow = 0; self.slow_thr = 0; self.boost = 0; self.latef = False; self.trig_ahead = 2; self.nw = False; self.wide = True; self.pipe = True; self.cpf = True; self.light = None; self.nlab = 0; self.dbgmode = False; self.remap = False; self.fast = True
    def lab(self, p='L'):
        self.nlab += 1
        return f'{p}_{self.nlab}'
    def srd(self, sd, sp, size):
        a = self.a
        a(f's_mov_b32 s{sd}, s{sp}'); a(f's_and_b32 s{sd+1}, s{sp+1}, 0xffff')
        a(f's_mov_b32 s{sd+2}, {size}'); a(f's_mov_b32 s{sd+3}, 0x00020000')
    def stamp(self, k):
        if not self.stamps: return
        if self.light is not None and k not in self.light: return
        a = self.a
        if self.nw:
            j = sorted(self.light).index(k)
            a(f's_memrealtime s[{84+2*j}:{85+2*j}]')
            return
        a('s_memrealtime s[70:71]'); a('s_waitcnt lgkmcnt(0)'); a(f's_mov_b32 s{84+k}, s70')
    def stamp_init(self):
        if not self.stamps: return
        for k in range(18 if self.nw else 16): self.a(f's_mov_b32 s{84+k}, 0')
    def stamp_flush(self, helper=False):
        if not self.stamps: return
        a = self.a
        if self.dbgmode:
            L = self.lab('L_nodbg')
            self.srd(44, 32, 256)
            a('s_mov_b64 exec, 1'); a('v_mov_b32 v1, 0')
            if helper:
                a('s_cmp_lg_u32 s2, 232'); a(f's_cbranch_scc1 {L}'); a('s_cmp_lg_u32 s3, 8'); a(f's_cbranch_scc1 {L}')
                lst = [(k, 8 + i) for i, k in enumerate((0, 2, 3, 6, 7, 8, 9, 11))]
            else:
                a('s_cmp_lg_u32 s2, 0'); a(f's_cbranch_scc1 {L}'); a('s_cmp_lg_u32 s3, 0'); a(f's_cbranch_scc1 {L}')
                lst = [(k, k) for k in range(8)]
            for k, slot in lst:
                a(f'v_mov_b32 v2, s{84+k}')
                a(f'buffer_store_dword v2, v1, s[44:47], 0 offen offset:{4*slot}')
            a('s_waitcnt vmcnt(0)')
            a.label(L)
            return
        a('s_mov_b64 exec, 1')
        a('s_mul_i32 s70, s2, 12'); a('s_add_u32 s70, s70, s3'); a('s_lshl_b32 s70, s70, 6')
        a(f's_add_u32 s70, s70, {WS_STAMP}')
        a('v_mov_b32 v1, 0')
        if self.nw:
            a('s_waitcnt lgkmcnt(0)')
            lst = sorted(self.light)
            for k in range(16):
                if k in lst: a(f'v_mov_b32 v2, s{84+2*lst.index(k)}')
                else: a('v_mov_b32 v2, 0')
                a(f'buffer_store_dword v2, v1, s[40:43], s70 offen offset:{4*k}')
        else:
            for k in range(16):
                a(f'v_mov_b32 v2, s{84+k}')
                a(f'buffer_store_dword v2, v1, s[40:43], s70 offen offset:{4*k}')
        a('s_waitcnt vmcnt(0)')
    def round_pair(self, x, y, t):
        a = self.a
        a(f'v_cvt_pk_bf16_f32 v{t}, v{x}, v{y}')
        a(f'v_lshlrev_b32 v{x}, 16, v{t}')
        a(f'v_and_b32 v{y}, 0xffff0000, v{t}')
    def round_list(self, regs, t):
        for i in range(0, len(regs), 2):
            self.round_pair(regs[i], regs[i+1], t + (i // 2) % 2)
    def round1(self, x, t):
        a = self.a
        a(f'v_cvt_pk_bf16_f32 v{t}, v{x}, v{x}')
        a(f'v_lshlrev_b32 v{x}, 16, v{t}')
    def allreduce(self, regs, op, t, rows_only=False, quad=True, row=True):
        a = self.a
        if not rows_only:
            steps = []
            if quad: steps += ['quad_perm:[1,0,3,2]', 'quad_perm:[2,3,0,1]']
            if row: steps += ['row_half_mirror', 'row_mirror']
            for st in steps:
                for r in regs: a(f'{op}_dpp v{r}, v{r}, v{r} {st} {DPPF}')
        for sw in ('v_permlane16_swap_b32', 'v_permlane32_swap_b32'):
            for k, r in enumerate(regs): a(f'v_mov_b32 v{t+k}, v{r}')
            for k, r in enumerate(regs): a(f'{sw} v{r}, v{t+k}')
            for k, r in enumerate(regs): a(f'{op} v{r}, v{r}, v{t+k}')
    def poll_tail(self, loop_label, sleep=0):
        a = self.a
        if self.x_nopoll: return
        a('s_add_u32 s80, s80, 1'); a(f's_cmp_gt_u32 s80, {POLL_LIMIT}'); a('s_cbranch_scc1 L_abort')
        a('s_cmp_eq_u64 vcc, exec')
        if sleep:
            L = self.lab('L_pk')
            a(f's_cbranch_scc1 {L}'); a(f's_sleep {sleep}'); a(f's_branch {loop_label}'); a.label(L)
        else:
            a(f's_cbranch_scc0 {loop_label}')
    def valid_check(self, regs, t, loop_label, sleep=0):
        a = self.a
        regs = list(regs); cur = regs[0]; i = 1
        while i < len(regs):
            if i + 1 < len(regs):
                a(f'v_min3_u32 v{t}, v{cur}, v{regs[i]}, v{regs[i+1]}'); i += 2
            else:
                a(f'v_min_u32 v{t}, v{cur}, v{regs[i]}'); i += 1
            cur = t
        a(f'v_cmp_ne_u32 vcc, 0, v{cur}')
        self.poll_tail(loop_label, sleep)
    def tag_check(self, regs, t, loop_label, sleep=0):
        a = self.a
        regs = list(regs)
        for r in regs: a(f'v_xor_b32 v{r}, s81, v{r}')
        cur = regs[0]; i = 1
        while i < len(regs):
            if i + 1 < len(regs):
                a(f'v_or3_b32 v{t}, v{cur}, v{regs[i]}, v{regs[i+1]}'); i += 2
            else:
                a(f'v_or_b32 v{t}, v{cur}, v{regs[i]}'); i += 1
            cur = t
        a(f'v_cmp_eq_u32 vcc, 0, v{cur}')
        self.poll_tail(loop_label, sleep)
    def sentinel(self, soff, t, sleep=6):
        a = self.a
        if self.x_nopoll: return
        L = self.lab('L_sn'); L2 = self.lab('L_sn2')
        a(f'v_mov_b32 v{t}, 0'); a(f's_branch {L2}')
        a.label(L); a(f's_sleep {sleep}'); a.label(L2)
        a(f'buffer_load_dword v{t+1}, v{t}, s[40:43], s{soff} offen sc1')
        a('s_waitcnt vmcnt(0)')
        a(f'v_readfirstlane_b32 s82, v{t+1}')
        a('s_add_u32 s80, s80, 1'); a(f's_cmp_gt_u32 s80, {POLL_LIMIT}'); a('s_cbranch_scc1 L_abort')
        a('s_cmp_eq_u32 s82, s81'); a(f's_cbranch_scc0 {L}')
    def poll2(self, issue, nld, regsA, regsB, t, useA, useB, stagger=8):
        a = self.a
        L = self.lab('L_p2'); LA = self.lab('L_p2a'); LB = self.lab('L_p2b'); LD = self.lab('L_p2d')
        def check(regs, ok_label):
            regs = list(regs); cur = regs[0]; i = 1
            while i < len(regs):
                if i + 1 < len(regs):
                    a(f'v_min3_u32 v{t}, v{cur}, v{regs[i]}, v{regs[i+1]}'); i += 2
                else:
                    a(f'v_min_u32 v{t}, v{cur}, v{regs[i]}'); i += 1
                cur = t
            a(f'v_cmp_ne_u32 vcc, 0, v{cur}')
            if self.x_nopoll:
                a(f's_branch {ok_label}'); return
            a('s_add_u32 s80, s80, 1'); a(f's_cmp_gt_u32 s80, {POLL_LIMIT}'); a('s_cbranch_scc1 L_abort')
            a('s_cmp_eq_u64 vcc, exec'); a(f's_cbranch_scc1 {ok_label}')
        issue(regsA[0]); a(f's_sleep {stagger}'); issue(regsB[0])
        a.label(L)
        a(f's_waitcnt vmcnt({nld})'); check(regsA, LA); issue(regsA[0])
        a(f's_waitcnt vmcnt({nld})'); check(regsB, LB); issue(regsB[0])
        a(f's_branch {L}')
        a.label(LA); useA(); a(f's_branch {LD}')
        a.label(LB); useB()
        a.label(LD)
    def quad4(self, src, dst):
        for j in range(4): self.a(f'v_mov_b32_dpp v{dst+j}, v{src} quad_perm:[{j},{j},{j},{j}] {DPPF}')
    def unpack8(self, src, dst):
        for k in range(4):
            self.a(f'v_lshlrev_b32 v{dst+2*k}, 16, v{src+k}')
            self.a(f'v_and_b32 v{dst+2*k+1}, 0xffff0000, v{src+k}')
    def pack8(self, src, dst):
        for k in range(4): self.a(f'v_cvt_pk_bf16_f32 v{dst+k}, v{src+2*k}, v{src+2*k+1}')
    def dma(self, srd, voff, soff, step, n, lds_s, nt=True, depth=64, first=True):
        a = self.a
        if self.x_notile: return
        ntf = ' nt' if nt else ''
        for i in range(n):
            if (i >= depth) or (not first): a(f's_waitcnt vmcnt({depth - 1})')
            a(f's_add_u32 m0, s{lds_s}, {i*1024}')
            a(f'buffer_load_dwordx4 v{voff}, s[{srd}:{srd+3}], s{soff} offen{ntf} lds')
            if i + 1 < n: a(f's_add_u32 s{soff}, s{soff}, {step}')
    def lds_sync(self, phase):
        a = self.a
        L = self.lab('L_ls')
        a(f'v_mov_b32 v38, {L_CNT}'); a('v_mov_b32 v39, 1')
        a('s_mov_b64 exec, 1'); a('ds_add_u32 v38, v39'); a('s_mov_b64 exec, -1')
        a.label(L)
        a('ds_read_b32 v39, v38'); a('s_waitcnt lgkmcnt(0)'); a('v_readfirstlane_b32 s82, v39')
        a('s_add_u32 s80, s80, 1'); a(f's_cmp_gt_u32 s80, {POLL_LIMIT}'); a('s_cbranch_scc1 L_abort')
        a(f's_cmp_lt_u32 s82, {4*phase}'); a(f's_cbranch_scc1 {L}')
    def tr_read(self, vaddr, W, n, step, half):
        a = self.a
        for i in range(n):
            a(f'ds_read_b64_tr_b16 v[{W+4*i}:{W+4*i+1}], v{vaddr} offset:{i*step}')
            a(f'ds_read_b64_tr_b16 v[{W+4*i+2}:{W+4*i+3}], v{vaddr} offset:{i*step+half}')
            if (i % 5) == 4: a('s_waitcnt lgkmcnt(4)')
        a('s_waitcnt lgkmcnt(0)')
    def gemv(self, vaddr, W, n, acc, Areg=8, nsets=8):
        a = self.a
        issued = 0
        for i in range(min(nsets, n)):
            a(f'ds_read_b128 v[{Areg+4*i}:{Areg+4*i+3}], v{vaddr} offset:{i*64}'); issued += 1
        for i in range(n):
            a(f's_waitcnt lgkmcnt({issued - i - 1})')
            A = Areg + 4 * (i % nsets); c = acc + 4 * (i % 2)
            src = f'v[{c}:{c+3}]' if i >= 2 else '0'
            a(f'v_mfma_f32_16x16x32_bf16 v[{c}:{c+3}], v[{A}:{A+3}], v[{W+4*i}:{W+4*i+3}], {src}')
            if issued < n:
                a(f'ds_read_b128 v[{A}:{A+3}], v{vaddr} offset:{issued*64}'); issued += 1
        a(f'v_add_f32 v{acc}, v{acc}, v{acc+4}')

    ROLES = {'wq': (0, 8), 'wo': (8, 16), 'mod': (16, 22), 'ffn': (22, 29), 'fin': (29, 32)}
    def attention(self):
        a = self.a; thr = self.thr
        BUF = 40; Q = 8; D = 12; M0 = 3; M1 = 4; TMP = 36
        TREG = [28, 29, 30, 31, 32, 33, 34, 35, 7, 5]
        ng = {r: self.ngroups.get(r, 32) for r in self.ROLES}
        assert sum(ng[r] * (hi - lo) for r, (lo, hi) in self.ROLES.items()) == 1024, ng
        self.stamp(0)
        self.srd(48, 10, 0x4000000); self.srd(52, 12, 0x4000000)
        a('v_bfe_u32 v5, v0, 2, 2'); a('v_lshlrev_b32 v1, 8, v5')
        a('v_lshrrev_b32 v5, 4, v0'); a('v_lshl_add_u32 v1, v5, 6, v1')
        a('v_and_b32 v5, 3, v0'); a('v_lshl_add_u32 v1, v5, 4, v1')
        a('v_lshlrev_b32 v2, 4, v0')
        a(f'v_mov_b32 v{M0}, 0'); a(f'v_mov_b32 v{M1}, 0')
        a('v_mov_b32 v6, 0xffff'); a('v_mov_b32 v7, 0xffff0000')
        a('v_cmp_eq_u32 vcc, 0, v5'); a(f'v_cndmask_b32 v{M0}, v{M0}, v6, vcc')
        a('v_cmp_eq_u32 vcc, 1, v5'); a(f'v_cndmask_b32 v{M0}, v{M0}, v7, vcc')
        a('v_cmp_eq_u32 vcc, 2, v5'); a(f'v_cndmask_b32 v{M1}, v{M1}, v6, vcc')
        a('v_cmp_eq_u32 vcc, 3, v5'); a(f'v_cndmask_b32 v{M1}, v{M1}, v7, vcc')
        a('s_mov_b32 s56, 0xaaaaaaaa'); a('s_mov_b32 s57, 0xaaaaaaaa')
        a('s_mov_b32 s58, 0xcccccccc'); a('s_mov_b32 s59, 0xcccccccc')
        a(f'v_add_u32 v6, {L_QL}, v1')
        a(f's_mul_i32 s63, s3, {VLS}'); a(f's_add_u32 s63, s63, {L_VL}')
        a('s_mov_b32 s80, 0')
        Li = self.lab('L_noinit')
        a('s_cmp_lg_u32 s3, 0'); a(f's_cbranch_scc1 {Li}')
        for k in range(4): a(f'v_mov_b32 v{8+k}, 0')
        a('v_lshlrev_b32 v12, 2, v0'); a(f'v_add_u32 v12, {L_MX}, v12'); a('v_mov_b32 v13, 0xff800000')
        a('v_cmp_gt_u32 vcc, 4, v0'); a('v_cndmask_b32 v13, v8, v13, vcc')
        a('s_mov_b64 exec, 0x3ff'); a('ds_write_b32 v12, v13'); a('s_mov_b64 exec, -1')
        a('s_waitcnt lgkmcnt(0)')
        a.label(Li)
        variants = {}
        base = 0
        for r, (lo, hi) in self.ROLES.items():
            ext = self.ext.get(r, 0)
            key = (ng[r], self.kthr.get(r, thr), ext, int(ext > 0 and r != 'fin'), int(self.latef and r == 'ffn'))
            variants.setdefault(key, []).append((lo, hi, base))
            base += ng[r] * (hi - lo)
        keys = list(variants)
        nm = lambda key: 'L_att_' + '_'.join(str(x) for x in key)
        for key in keys:
            for (lo, hi, b0) in variants[key]:
                L = self.lab('L_nx')
                a(f's_sub_u32 s62, s37, {lo}'); a(f's_cmp_lt_u32 s62, {hi-lo}'); a(f's_cbranch_scc0 {L}')
                a(f's_mul_i32 s62, s62, {key[0]}'); a(f's_add_u32 s62, s62, {b0}')
                a(f's_branch {nm(key)}')
                a.label(L)
        a('s_branch L_abort')
        for key in keys:
            a.label(nm(key))
            self.att_body(key[0], key[1], BUF, Q, D, TREG, M0, M1, TMP, ext=key[2], chk=key[3], trig=key[4])
            if key != keys[-1]: a('s_branch L_att_done')
        a.label('L_att_done')
        ACC = 12
        self.stamp(5)
        for k in range(8): a(f'v_mul_f32 v{ACC+k}, v160, v{ACC+k}')
        a(f'ds_write_b128 v152, v[{ACC}:{ACC+3}]'); a(f'ds_write_b128 v152, v[{ACC+4}:{ACC+7}] offset:16')
        a('s_waitcnt lgkmcnt(0)')
        a('s_barrier')
        self.stamp(6)
        for i in range(4): a(f'ds_read_b64 v[{24+2*i}:{25+2*i}], v158 offset:{i*VLS}')
        a('ds_read_b32 v14, v159'); a('ds_read_b32 v15, v159 offset:16')
        a('s_waitcnt lgkmcnt(2)')
        a('v_add_f32 v24, v24, v26'); a('v_add_f32 v25, v25, v27'); a('v_add_f32 v28, v28, v30'); a('v_add_f32 v29, v29, v31')
        a('v_add_f32 v12, v24, v28'); a('v_add_f32 v13, v25, v29')
        a('v_mov_b32 v24, v12'); a('v_mov_b32 v25, v13')
        a('s_waitcnt lgkmcnt(0)')
        a('v_rcp_f32 v16, v15'); a('v_log_f32 v17, v15')
        a('v_permlane32_swap_b32 v12, v24'); a('v_permlane32_swap_b32 v13, v25')
        a('v_add_f32 v12, v12, v24'); a('v_add_f32 v13, v13, v25')
        a('s_mov_b32 exec_hi, 0')
        a('v_add_f32 v21, v17, v14'); a('v_mul_f32 v20, v12, v16'); a('v_mul_f32 v22, v13, v16')
        a('v_or_b32 v21, 1, v21'); a('v_or_b32 v20, 1, v20'); a('v_or_b32 v22, 1, v22'); a('v_mov_b32 v23, v21')
        if self.fast: a('buffer_store_dwordx4 v[20:23], v157, s[40:43], s67 offen')
        a('buffer_store_dwordx4 v[20:23], v157, s[40:43], s66 offen sc1')
        self.stamp(7)
        self.stamp_flush()
        a('s_endpgm')

    def att_body(self, n, kth, BUF, Q, D, TREG, M0, M1, TMP, ext=0, chk=0, trig=0):
        a = self.a; thr = self.thr
        nov = max(0, n - 32)
        NV = NVL - nov
        nt = (n + 3) // 4
        NL = NV + ext
        assert n - NL <= 28 and n <= 36 and NL <= n, 'V registers would run into the epilogue registers v152..'
        T = TREG[:nt]
        a('s_lshl_b32 s60, s36, 23'); a('s_lshl_b32 s61, s62, 13'); a('s_add_u32 s60, s60, s61')
        a('s_lshl_b32 s61, s3, 10'); a('s_add_u32 s60, s60, s61'); a('s_mov_b32 s61, s60')
        out = []
        def issue(tag, text):
            if not self.x_nokv: a(text)
            out.append(tag)
        def wait(tag):
            if tag in out:
                k = out.index(tag); m = len(out) - k - 1
                a(f's_waitcnt vmcnt({m})'); del out[:k+1]
        def waitn(m):
            if len(out) > m:
                a(f's_waitcnt vmcnt({m})'); del out[:len(out)-m]
        a('s_barrier')
        for i in range(n):
            if i < 32:
                issue(('K', i), f'buffer_load_dwordx4 v[{BUF+4*i}:{BUF+4*i+3}], v1, s[48:51], s60 offen nt')
            else:
                a(f's_add_u32 m0, s63, {(i-32)*1024}')
                issue(('K', i), f'buffer_load_dwordx4 v1, s[48:51], s60 offen nt lds')
            if i < n - 1: a('s_add_u32 s60, s60, 8192')
            waitn(self.slow_thr if i < self.slow else kth)
        for j in range(NV):
            a(f's_add_u32 m0, s63, {(nov+j)*1024}')
            issue(('V', j), f'buffer_load_dwordx4 v2, s[52:55], s61 offen nt lds')
            a('s_add_u32 s61, s61, 8192')
            waitn(thr if j >= NL - 2 else kth)
        if ext:
            if chk:
                Lc = self.lab('L_tf')
                a(f'v_mov_b32 v12, {L_CNT}')
                a.label(Lc)
                a('ds_read_b32 v13, v12'); a('s_waitcnt lgkmcnt(0)'); a('v_readfirstlane_b32 s62, v13')
                a('s_add_u32 s80, s80, 1'); a(f's_cmp_gt_u32 s80, {POLL_LIMIT}'); a('s_cbranch_scc1 L_abort')
                a('s_cmp_lt_u32 s62, 8'); a(f's_cbranch_scc1 {Lc}')
            a('s_lshl_b32 s65, s3, 13'); a(f's_add_u32 s65, s65, {L_TILE}')
            for e in range(ext):
                a(f's_add_u32 m0, s65, {e*1024}')
                issue(('V', NV + e), f'buffer_load_dwordx4 v2, s[52:55], s61 offen nt lds')
                a('s_add_u32 s61, s61, 8192')
                waitn(thr if NV + e >= NL - 2 else kth)
            a('v_add_u32 v11, s65, v2') if False else None
            a('s_mov_b32 s74, s65')
        self.stamp(1)
        a('s_barrier')
        self.stamp(2)
        a(f'ds_read_b128 v[{Q}:{Q+3}], v6')
        if nov:
            a('v_add_u32 v6, s63, v2')
            for k in range(nov): a(f'ds_read_b128 v[{D+4*k}:{D+4*k+3}], v6 offset:{k*1024}') if False else None
        a('s_waitcnt lgkmcnt(0)')
        nv = [NL]
        vreg = lambda j: BUF + 4 * (j - NL)
        def issueV():
            j = nv[0]
            if j >= n: return
            issue(('V', j), f'buffer_load_dwordx4 v[{vreg(j)}:{vreg(j)+3}], v2, s[52:55], s61 offen nt')
            if j < n - 1: a('s_add_u32 s61, s61, 8192')
            if trig and j == n - 1 - self.trig_ahead:
                Lt = self.lab('L_tg')
                a('s_cmp_lg_u32 s3, 0'); a(f's_cbranch_scc1 {Lt}')
                a('s_mov_b64 exec, 1'); a('ds_write_b32 v162, v163 offset:4'); a('s_mov_b64 exec, -1')
                a.label(Lt)
            nv[0] += 1
        vth = self.vthr if self.vthr is not None else thr
        boosted = [0]
        for t in range(nt):
            us = [u for u in range(4) if 4 * t + u < n]
            if t == 7 and nov:
                pass
            if t == 8:
                for u in us: a(f'ds_read_b128 v[{BUF+4*(28+u)}:{BUF+4*(28+u)+3}], v6 offset:{u*1024}')
                a('s_waitcnt lgkmcnt(0)')
            for u in us:
                i = 4 * t + u
                kr = BUF + 4 * i if i < 32 else BUF + 4 * (28 + u)
                a(f'v_mfma_f32_16x16x32_bf16 v[{D+4*u}:{D+4*u+3}], v[{kr}:{kr+3}], v[{Q}:{Q+3}], 0')
            if t == 0:
                for _ in range(min(4, vth + 1)): issueV()
            elif nv[0] - NL < vth + 1 + (1 if (t >= 4 and self.qk_extra) else 0): issueV()
            elif t in (2, 4, 6)[:self.boost]: issueV(); boosted[0] += 1
            Tt = T[t]
            for x in range(4):
                d = lambda v: D + 4 * (v ^ x) + v
                a(f'v_cndmask_b32 v{TMP+0}, v{d(0)}, v{d(1)}, s[56:57]')
                a(f'v_cndmask_b32 v{TMP+1}, v{d(2)}, v{d(3)}, s[56:57]')
                if x == 0:
                    a(f'v_cndmask_b32 v{Tt}, v{TMP+0}, v{TMP+1}, s[58:59]')
                else:
                    a(f'v_cndmask_b32 v{TMP+2+(x&1)}, v{TMP+0}, v{TMP+1}, s[58:59]')
                    qp = {1: '[1,0,3,2]', 2: '[2,3,0,1]', 3: '[3,2,1,0]'}[x]
                    a(f'v_add_f32_dpp v{Tt}, v{TMP+2+(x&1)}, v{Tt} quad_perm:{qp} {DPPF}')
            if len(us) < 4:
                m = {1: 0xeeeeeeee, 2: 0xcccccccc, 3: 0x88888888}[len(us)]
                a(f's_mov_b32 s64, {hex(m)}'); a(f's_mov_b32 s65, {hex(m)}')
                a(f'v_mov_b32 v{TMP}, 0xfe000000')
                a(f'v_cndmask_b32 v{Tt}, v{Tt}, v{TMP}, s[64:65]')
        self.stamp(3)
        def rnd(regs):
            for i in range(0, len(regs) - 1, 2): self.round_pair(regs[i], regs[i+1], TMP + (i // 2) % 2)
            if len(regs) % 2: self.round1(regs[-1], TMP)
        rnd(T)
        a(f's_mov_b32 s62, {hexf(128 ** -0.5)}')
        for r in T: a(f'v_mul_f32 v{r}, s62, v{r}')
        rnd(T)
        MX = 8; SUM = 9
        a(f'v_max_f32 v{MX}, v{T[0]}, v{T[1]}')
        rest = T[2:]
        for i in range(0, len(rest) - 1, 2): a(f'v_max3_f32 v{MX}, v{MX}, v{rest[i]}, v{rest[i+1]}')
        if len(rest) % 2: a(f'v_max_f32 v{MX}, v{MX}, v{rest[-1]}')
        self.allreduce([MX], 'v_max_f32', TMP, row=False)
        a(f's_mov_b32 s62, {hexf(LOG2E)}')
        a(f'v_mul_f32 v{MX}, s62, v{MX}')
        for r in T: a(f'v_fma_f32 v{r}, v{r}, s62, -v{MX}')
        for r in T: a(f'v_exp_f32 v{r}, v{r}')
        a(f'v_add_f32 v{SUM}, v{T[0]}, v{T[1]}')
        for r in T[2:]: a(f'v_add_f32 v{SUM}, v{SUM}, v{r}')
        for r in T: a(f'v_cvt_pk_bf16_f32 v{r}, v{r}, v{r}')
        self.allreduce([SUM], 'v_add_f32', TMP, row=False)
        a('v_lshlrev_b32 v152, 5, v0'); a('v_add_u32 v152, s63, v152')
        a('v_bfe_u32 v165, v0, 2, 2')
        a('s_lshl_b32 s62, s3, 2'); a(f's_add_u32 s62, s62, {L_ML}')
        a('v_lshlrev_b32 v153, 5, v165'); a('v_add_u32 v153, s62, v153')
        a('v_lshlrev_b32 v154, 2, v165'); a(f'v_add_u32 v154, {L_MX}, v154')
        a('v_lshrrev_b32 v165, 4, v0')
        a('v_lshlrev_b32 v155, 5, v165'); a('v_add_u32 v155, s62, v155')
        a('v_lshlrev_b32 v156, 2, v165'); a(f'v_add_u32 v156, {L_MX}, v156')
        a('v_and_b32 v166, 0x33, v0'); a('v_cmp_eq_u32 s[68:69], 0, v166')
        a(f'v_mov_b32 v162, {L_MX + 32}'); a('v_mov_b32 v163, 1')
        a('s_mov_b64 exec, s[68:69]')
        a(f'ds_write_b32 v153, v{MX}'); a(f'ds_max_f32 v154, v{MX}')
        a('s_mov_b64 exec, 1'); a('ds_add_u32 v162, v163'); a('s_mov_b64 exec, -1')
        a('v_and_b32 v166, 15, v0')
        a('v_lshrrev_b32 v157, 2, v166'); a('v_lshlrev_b32 v157, 12, v157')
        a('v_and_b32 v167, 3, v166'); a('v_lshl_add_u32 v157, v167, 5, v157'); a('v_and_b32 v164, 1, v165'); a('v_lshl_add_u32 v157, v164, 4, v157')
        a('v_and_b32 v158, 1, v166'); a('v_lshlrev_b32 v158, 4, v158'); a('v_lshl_add_u32 v158, v164, 3, v158')
        a('v_lshrrev_b32 v159, 2, v166'); a('v_lshl_add_u32 v158, v159, 6, v158')
        a('v_lshrrev_b32 v159, 1, v167'); a('v_lshl_add_u32 v158, v159, 5, v158')
        a('v_lshrrev_b32 v159, 5, v0'); a(f's_mov_b32 s62, {4*VLS}'); a('v_mul_lo_u32 v159, v159, s62'); a('v_add_u32 v158, v158, v159')
        a('s_lshr_b32 s62, s3, 1'); a('s_lshl_b32 s62, s62, 9'); a('s_and_b32 s64, s3, 1'); a('s_lshl_b32 s64, s64, 8'); a('s_add_u32 s62, s62, s64')
        a(f's_add_u32 s62, s62, {L_VL}'); a('v_add_u32 v158, s62, v158')
        a('s_lshr_b32 s62, s3, 1'); a('s_lshl_b32 s62, s62, 2'); a(f's_add_u32 s62, s62, {L_MX}'); a('v_mov_b32 v159, s62')
        a('s_lshl_b32 s66, s36, 5'); a('s_lshl_b32 s62, s3, 2'); a('s_add_u32 s66, s66, s62')
        a('s_lshl_b32 s66, s66, 5'); a('s_add_u32 s66, s66, s37'); a('s_lshl_b32 s66, s66, 7'); a(f's_add_u32 s67, s66, {WS_AF}')
        self.stamp(4)
        ACC = 12; AOP = 20; VT = [24, 36]; VA = 10
        a(f'v_add_u32 v{VA}, s63, v2')
        if ext: a('v_add_u32 v11, s74, v2')
        for j in range(NL): wait(('V', j))
        def lds_v(i, dst):
            if i < NV: a(f'ds_read_b128 v[{dst}:{dst+3}], v{VA} offset:{(nov+i)*1024}')
            else: a(f'ds_read_b128 v[{dst}:{dst+3}], v11 offset:{(i-NV)*1024}')
        lds_v(0, VT[0])
        istep = max(NL, n - 6)
        for i in range(n):
            t = i >> 2; u = i & 3
            A = AOP + 2 * (i & 1)
            if i == istep:
                Ls = self.lab('L_cm')
                a.label(Ls)
                a('ds_read_b32 v161, v162'); a('s_waitcnt lgkmcnt(0)'); a('v_readfirstlane_b32 s62, v161')
                a('s_add_u32 s80, s80, 1'); a(f's_cmp_gt_u32 s80, {POLL_LIMIT}'); a('s_cbranch_scc1 L_abort')
                a('s_cmp_lt_u32 s62, 8'); a(f's_cbranch_scc1 {Ls}')
                a('ds_read_b32 v160, v155'); a('ds_read_b32 v161, v156'); a('ds_read_b32 v164, v154'); a('s_waitcnt lgkmcnt(0)')
                a('v_sub_f32 v160, v160, v161'); a(f'v_sub_f32 v164, v{MX}, v164')
                a('v_exp_f32 v160, v160'); a('v_exp_f32 v164, v164')
                a(f'v_mul_f32 v164, v{SUM}, v164')
                a('s_mov_b64 exec, s[68:69]'); a('ds_add_f32 v154, v164 offset:16'); a('s_mov_b64 exec, -1')
            a(f'v_and_b32_dpp v{A}, v{T[t]}, v{M0} quad_perm:[{u},{u},{u},{u}] {DPPF}')
            a(f'v_and_b32_dpp v{A+1}, v{T[t]}, v{M1} quad_perm:[{u},{u},{u},{u}] {DPPF}')
            if i < NL:
                vb = VT[i & 1]
                if i + 1 < NL:
                    lds_v(i + 1, VT[(i + 1) & 1]); a('s_waitcnt lgkmcnt(1)')
                else:
                    a('s_waitcnt lgkmcnt(0)')
            else:
                wait(('V', i))
                if boosted[0] > 0: boosted[0] -= 1
                else: issueV()
                vb = vreg(i)
            c1 = f'v[{ACC}:{ACC+3}]' if i else '0'
            c2 = f'v[{ACC+4}:{ACC+7}]' if i else '0'
            a(f'v_mfma_f32_16x16x16_bf16 v[{ACC}:{ACC+3}], v[{A}:{A+1}], v[{vb}:{vb+1}], {c1}')
            a(f'v_mfma_f32_16x16x16_bf16 v[{ACC+4}:{ACC+7}], v[{A}:{A+1}], v[{vb+2}:{vb+3}], {c2}')

    def helper(self):
        a = self.a
        W1 = 40; W2 = 104; ACC = 104
        a('s_sub_u32 s38, s3, 8')
        self.stamp(0)
        a('s_mov_b32 s80, 0')
        a(f's_add_u32 s78, s34, {WS_EPOCH}'); a('s_addc_u32 s79, s35, 0')
        a('s_load_dword s83, s[78:79], 0')
        a('v_and_b32 v1, 15, v0'); a('v_lshrrev_b32 v2, 4, v0')
        Lz = self.lab('L_noinit')
        a('s_cmp_lg_u32 s38, 0'); a(f's_cbranch_scc1 {Lz}')
        a(f'v_mov_b32 v38, {L_CNT}'); a('v_mov_b32 v39, 0'); a('ds_write_b32 v38, v39')
        a.label(Lz)
        a('s_lshl_b32 s67, s38, 10'); a(f's_add_u32 s67, s67, {L_VEC}')
        a('v_lshlrev_b32 v4, 4, v2'); a('v_add_u32 v4, s67, v4')
        a('v_lshlrev_b32 v5, 4, v0'); a('v_add_u32 v5, s67, v5')
        a('s_cmp_lt_u32 s37, 8'); a('s_cbranch_scc1 L_role_wq')
        a('s_cmp_lt_u32 s37, 16'); a('s_cbranch_scc1 L_role_wo')
        a('s_cmp_lt_u32 s37, 22'); a('s_cbranch_scc1 L_role_mod')
        a('s_cmp_lt_u32 s37, 29'); a('s_cbranch_scc1 L_role_ffn')
        a('s_branch L_role_fin')

        def h0_begin():
            L = self.lab('L_h0e')
            a('s_cmp_lg_u32 s38, 0'); a(f's_cbranch_scc1 {L}')
            return L
        def barrier0():
            a('s_waitcnt lgkmcnt(0)')
            a('s_barrier')
        def get_tag():
            a('s_waitcnt lgkmcnt(0)')
            a('s_mul_i32 s81, s83, 0x9E3779B1'); a('s_add_u32 s81, s81, 0x7F4A7C15')
        def zero_stores(role):
            L = h0_begin()
            for k in range(4): a(f'v_mov_b32 v{8+k}, 0')
            a('v_lshlrev_b32 v6, 4, v0')
            def zero_inbox(add):
                a('s_lshl_b32 s60, s36, 5'); a('s_add_u32 s60, s60, s37')
                if add: a(f's_add_u32 s60, s60, {add}')
                a('s_lshl_b32 s60, s60, 12')
                for k in range(4): a(f'buffer_store_dwordx4 v[8:11], v6, s[40:43], s60 offen offset:{1024*k} sc1')
                a(f's_add_u32 s60, s60, {WS_AF}')
                for k in range(4): a(f'buffer_store_dwordx4 v[8:11], v6, s[40:43], s60 offen offset:{1024*k}')
            if not (self.latef and role == 'ffn'): zero_inbox(0)
            if self.latef and role == 'wq':
                Lz2 = self.lab('L_z2')
                a('s_cmp_ge_u32 s37, 7'); a(f's_cbranch_scc1 {Lz2}')
                zero_inbox(22)
                a.label(Lz2)
            if role == 'ffn':
                a('s_mul_i32 s60, s36, 7'); a('s_add_u32 s60, s60, s37'); a('s_sub_u32 s60, s60, 22'); a('s_lshl_b32 s60, s60, 11')
                a(f's_add_u32 s60, s60, {WS_E}')
                a('buffer_store_dwordx4 v[8:11], v6, s[40:43], s60 offen sc1')
                a('buffer_store_dwordx4 v[8:11], v6, s[40:43], s60 offen offset:1024 sc1')
            if role == 'wo':
                a('s_lshl_b32 s60, s36, 11'); a('s_sub_u32 s61, s37, 8'); a('s_lshl_b32 s61, s61, 8'); a('s_add_u32 s60, s60, s61')
                a(f's_add_u32 s60, s60, {WS_C}'); a('s_add_u32 s61, s60, 65536')
                a('v_lshlrev_b32 v6, 14, v2'); a('v_lshl_add_u32 v6, v1, 4, v6')
                a('buffer_store_dwordx4 v[8:11], v6, s[40:43], s60 offen sc1')
                a('buffer_store_dwordx4 v[8:11], v6, s[40:43], s61 offen sc1')
            a('s_mov_b64 exec, -1')
            a.label(L)
        def zsignal():
            L = h0_begin()
            a('s_waitcnt vmcnt(0)')
            a('s_lshl_b32 s60, s36, 7'); a('s_lshl_b32 s61, s37, 2'); a('s_add_u32 s60, s60, s61'); a(f's_add_u32 s60, s60, {WS_ZF}')
            a('s_mov_b64 exec, 1')
            a('v_mov_b32 v38, 0'); a('v_mov_b32 v39, s81')
            a('buffer_store_dword v39, v38, s[40:43], s60 offen sc1')
            a('s_mov_b64 exec, -1')
            a.label(L)
        def line_setup(ptr, size, rs, col_s):
            self.srd(48, ptr, size)
            a('v_lshrrev_b32 v158, 3, v0'); a(f's_mov_b32 s61, {rs}'); a('v_mul_lo_u32 v158, v158, s61')
            a('v_and_b32 v7, 7, v0'); a('v_lshl_add_u32 v158, v7, 4, v158')
            a(f's_mul_i32 s61, s38, {128*rs}'); a(f's_add_u32 s72, s{col_s}, s61')
            a('s_lshl_b32 s66, s38, 14'); a(f's_add_u32 s66, s66, {L_TILE}')
            def iss(role):
                if role in self.zfirst:
                    zero_stores(role); get_tag(); zsignal()
                if role not in self.late_k: barrier0()
                self.dma(48, 158, 72, 8 * rs, 16, 66, depth=self.depth.get(role, 64))
                if role in self.late_k: barrier0()
            return iss
        def line_finish():
            self.stamp(1)
            a('s_waitcnt vmcnt(0)')
            self.stamp(12)
            self.lds_sync(1)
            a('v_lshrrev_b32 v3, 2, v1'); a('v_lshl_add_u32 v3, v2, 3, v3'); a('v_lshlrev_b32 v3, 7, v3')
            a('v_and_b32 v7, 3, v0'); a('v_lshl_add_u32 v3, v7, 3, v3')
            a('s_lshl_b32 s61, s38, 5'); a(f's_add_u32 s61, s61, {L_TILE}'); a('v_add_u32 v3, s61, v3')
            self.tr_read(3, W1, 16, 4096, 512)
            a(f'v_mov_b32 v38, {L_CNT}'); a('v_mov_b32 v39, 1')
            a('s_mov_b64 exec, 1'); a('ds_add_u32 v38, v39'); a('s_mov_b64 exec, -1')
            self.stamp(14)
        def publish16(base_s, val, nl=0xffff):
            a(f'v_or_b32 v{val}, 1, v{val}')
            a('v_lshlrev_b32 v6, 2, v1')
            a(f's_mov_b64 exec, {nl}')
            a(f'buffer_store_dword v{val}, v6, s[40:43], s{base_s} offen sc1')
            a('s_mov_b64 exec, -1')
        def publish_tag(base_s, val):
            a(f'v_mov_b32_dpp v{val+1}, v{val} quad_perm:[1,1,3,3] {DPPF}')
            a(f'v_cvt_pk_bf16_f32 v{val}, v{val}, v{val+1}')
            a(f'v_mov_b32 v{val+1}, s81')
            a('v_lshlrev_b32 v6, 2, v1')
            a('s_mov_b64 exec, 0x5555')
            a(f'buffer_store_dwordx2 v[{val}:{val+1}], v6, s[40:43], s{base_s} offen sc1')
            a('s_mov_b64 exec, -1')
        def qgather_and_barrier1():
            L = h0_begin()
            a('s_lshl_b32 s61, s37, 7'); a('s_lshl_b32 s60, s36, 14'); a('s_add_u32 s61, s61, s60'); a(f's_add_u32 s61, s61, {WS_M + 4}')
            self.sentinel(61, 8, sleep=8)
            self.stamp(2)
            a('s_lshl_b32 s60, s36, 11'); a(f's_add_u32 s60, s60, {WS_Q}')
            Lp = self.lab('L_qp')
            a('v_lshlrev_b32 v6, 5, v0'); a('v_and_b32 v7, 31, v0'); a('v_lshlrev_b32 v7, 2, v7')
            a('s_lshl_b32 s61, s36, 7'); a(f's_add_u32 s61, s61, {WS_ZF}')
            a.label(Lp)
            a('buffer_load_dwordx4 v[8:11], v6, s[40:43], s60 offen sc1')
            a('buffer_load_dwordx4 v[12:15], v6, s[40:43], s60 offen offset:16 sc1')
            a('buffer_load_dword v17, v7, s[40:43], s61 offen sc1')
            a('s_waitcnt vmcnt(0)')
            self.tag_check([9, 11, 13, 15, 17], 16, Lp, sleep=self.qsleep)
            a('v_mov_b32 v9, v10'); a('v_mov_b32 v10, v12'); a('v_mov_b32 v11, v14')
            a('v_lshlrev_b32 v6, 4, v0'); a(f'v_add_u32 v6, {L_QL}, v6')
            a('ds_write_b128 v6, v[8:11]'); a('s_waitcnt lgkmcnt(0)')
            self.stamp(3)
            a.label(L)
            a('s_barrier')
        def two_path(issue, check):
            Ld = self.lab('L_tpd')
            if self.fast:
                Lf = self.lab('L_tpf'); Ls = self.lab('L_tps')
                a('s_mov_b32 s77, 0')
                a.label(Lf)
                issue(65, 'nt'); a('s_waitcnt vmcnt(0)'); check()
                if self.x_nopoll: a(f's_branch {Ld}')
                a('s_cmp_eq_u64 vcc, exec'); a(f's_cbranch_scc1 {Ld}')
                a('s_add_u32 s77, s77, 1'); a(f's_cmp_lt_u32 s77, {FAST_TRIES}'); a(f's_cbranch_scc1 {Lf}')
            Ls2 = self.lab('L_tps2')
            a.label(Ls2)
            issue(64, 'sc1'); a('s_waitcnt vmcnt(0)'); check()
            if not self.x_nopoll:
                a('s_add_u32 s80, s80, 1'); a(f's_cmp_gt_u32 s80, {POLL_LIMIT}'); a('s_cbranch_scc1 L_abort')
                a('s_cmp_eq_u64 vcc, exec'); a(f's_cbranch_scc0 {Ls2}')
            a.label(Ld)
        def t1_combine(own=True):
            if own: a('s_mov_b32 s78, s37')
            a('v_lshlrev_b32 v6, 7, v2'); a('v_lshl_add_u32 v6, v1, 3, v6')
            a('s_lshl_b32 s64, s36, 5'); a('s_add_u32 s64, s64, s78'); a('s_lshl_b32 s64, s64, 12'); a(f's_add_u32 s65, s64, {WS_AF}')
            a('s_lshl_b32 s62, s36, 12'); a('s_lshl_b32 s61, s78, 7'); a('s_add_u32 s62, s62, s61')
            a(f's_add_u32 s63, s62, {WS_BF}'); a(f's_add_u32 s62, s62, {WS_B}')
            def a_issue(sb, fl):
                for i in range(8): a(f'buffer_load_dwordx2 v[{8+2*i}:{9+2*i}], v6, s[40:43], s{sb} offen offset:{512*i} {fl}')
            def a_check():
                a('v_min3_u32 v24, v8, v9, v10')
                for r in range(11, 23, 2): a(f'v_min3_u32 v24, v24, v{r}, v{r+1}')
                a('v_min_u32 v24, v24, v23'); a('v_cmp_ne_u32 vcc, 0, v24')
            two_path(a_issue, a_check)
            self.stamp(6)
            a('v_max3_f32 v24, v9, v11, v13'); a('v_max3_f32 v24, v24, v15, v17'); a('v_max3_f32 v24, v24, v19, v21')
            a('v_max_f32 v24, v24, v23')
            self.allreduce([24], 'v_max_f32', 26, rows_only=True)
            for i in range(8): a(f'v_sub_f32 v{9+2*i}, v{9+2*i}, v24')
            for i in range(8): a(f'v_exp_f32 v{9+2*i}, v{9+2*i}')
            a('v_mul_f32 v24, v9, v8'); a('v_mov_b32 v25, v9')
            for i in range(1, 8):
                a(f'v_fmac_f32 v24, v{9+2*i}, v{8+2*i}'); a(f'v_add_f32 v25, v25, v{9+2*i}')
            self.allreduce([24, 25], 'v_add_f32', 26, rows_only=True)
            a('v_rcp_f32 v25, v25'); a('v_lshlrev_b32 v6, 3, v1'); a('v_mul_f32 v24, v24, v25'); a('v_mov_b32 v25, s81')
            a('s_mov_b64 exec, 0xffff')
            if self.fast: a('buffer_store_dwordx2 v[24:25], v6, s[40:43], s63 offen')
            a('buffer_store_dwordx2 v[24:25], v6, s[40:43], s62 offen sc1')
            a('s_mov_b64 exec, -1')
            self.stamp(7)

        a.label('L_role_wq')
        a('s_lshl_b32 s62, s36, 10'); a('s_lshl_b32 s61, s37, 7'); a('s_add_u32 s62, s62, s61')
        iss = line_setup(14, 512 * 4096 * 2, 8192, 62)
        self.srd(52, 8, 1024); a('v_lshlrev_b32 v7, 4, v0')
        a('buffer_load_dwordx4 v[12:15], v7, s[52:55], 0 offen')
        iss('wq'); line_finish(); zero_stores('wq'); get_tag()
        X = 16
        self.unpack8(12, X)
        a(f'v_add_f32 v24, v{X}, v{X+1}')
        for k in range(2, 8): a(f'v_add_f32 v24, v24, v{X+k}')
        self.allreduce([24], 'v_add_f32', 26)
        a(f'v_mul_f32 v24, {hexf(1/512)}, v24')
        for k in range(8): a(f'v_sub_f32 v{28+k}, v{X+k}, v24')
        a('v_mul_f32 v25, v28, v28')
        for k in range(1, 8): a(f'v_fmac_f32 v25, v{28+k}, v{28+k}')
        self.allreduce([25], 'v_add_f32', 26)
        a(f'v_mul_f32 v25, {hexf(1/512)}, v25')
        self.round_pair(24, 25, 26)
        a(f'v_add_f32 v25, {hexf(1e-5)}, v25'); self.round1(25, 26)
        a('v_sqrt_f32 v25, v25'); self.round1(25, 26)
        a('v_rcp_f32 v27, v25')
        for k in range(8): a(f'v_sub_f32 v{X+k}, v{X+k}, v24')
        self.round_list(list(range(X, X+8)), 28)
        for k in range(8): a(f'v_mul_f32 v{28+k}, v{X+k}, v27')
        for k in range(8): a(f'v_fma_f32 v{X+k}, -v{28+k}, v25, v{X+k}')
        for k in range(8): a(f'v_fma_f32 v{X+k}, v{X+k}, v27, v{28+k}')
        self.round_list(list(range(X, X+8)), 26)
        zsignal()
        self.stamp(4)
        Lp = self.lab('L_mp')
        a('v_lshlrev_b32 v6, 5, v0'); a('s_lshl_b32 s60, s36, 14'); a(f's_add_u32 s60, s60, {WS_M}')
        a.label(Lp)
        a('buffer_load_dwordx4 v[104:107], v6, s[40:43], s60 offen sc1')
        a('buffer_load_dwordx4 v[108:111], v6, s[40:43], s60 offen offset:16 sc1')
        a('buffer_load_dwordx4 v[112:115], v6, s[40:43], s60 offen offset:2048 sc1')
        a('buffer_load_dwordx4 v[116:119], v6, s[40:43], s60 offen offset:2064 sc1')
        a('s_waitcnt vmcnt(0)')
        self.tag_check([105, 107, 109, 111, 113, 115, 117, 119], 8, Lp, sleep=4)
        self.stamp(5)
        for k in range(8):
            a(f'v_lshlrev_b32 v{24+2*k}, 16, v{104+2*k}'); a(f'v_and_b32 v{25+2*k}, 0xffff0000, v{104+2*k}')
        for k in range(8): a(f'v_add_f32 v{32+k}, 1.0, v{32+k}')
        self.round_list(list(range(32, 40)), 8)
        for k in range(8): a(f'v_mul_f32 v{X+k}, v{X+k}, v{32+k}')
        self.round_list(list(range(X, X+8)), 8)
        for k in range(8): a(f'v_add_f32 v{X+k}, v{X+k}, v{24+k}')
        self.pack8(X, 8)
        a('ds_write_b128 v5, v[8:11]'); a('s_waitcnt lgkmcnt(0)')
        self.gemv(4, W1, 16, ACC)
        a('s_lshl_b32 s60, s36, 11'); a('s_lshl_b32 s61, s37, 8'); a('s_add_u32 s60, s60, s61')
        a('s_lshl_b32 s61, s38, 6'); a('s_add_u32 s60, s60, s61'); a(f's_add_u32 s60, s60, {WS_Q}')
        publish_tag(60, ACC)
        self.stamp(8)
        qgather_and_barrier1()
        a('s_branch L_tail_plain')

        a.label('L_role_wo')
        a('s_lshl_b32 s62, s36, 19'); a('s_sub_u32 s61, s37, 8'); a('s_lshl_b32 s61, s61, 7'); a('s_add_u32 s62, s62, s61')
        iss = line_setup(16, 4096 * 512 * 2, 1024, 62)
        iss('wo')
        if 'wo' not in self.zfirst: zero_stores('wo'); get_tag()
        line_finish()
        if 'wo' not in self.zfirst: zsignal()
        qgather_and_barrier1()
        a('s_barrier')
        L = h0_begin()
        t1_combine()
        a('v_lshlrev_b32 v6, 6, v0'); a('s_lshl_b32 s64, s36, 12'); a(f's_add_u32 s65, s64, {WS_BF}'); a(f's_add_u32 s64, s64, {WS_B}')
        def b_issue(sb, fl):
            for i in range(4): a(f'buffer_load_dwordx4 v[{8+4*i}:{11+4*i}], v6, s[40:43], s{sb} offen offset:{16*i} {fl}')
        def b_check():
            for r in range(9, 24, 2): a(f'v_xor_b32 v{r}, s81, v{r}')
            a('v_or3_b32 v24, v9, v11, v13'); a('v_or3_b32 v24, v24, v15, v17'); a('v_or3_b32 v24, v24, v19, v21'); a('v_or_b32 v24, v24, v23')
            a('v_cmp_eq_u32 vcc, 0, v24')
        two_path(b_issue, b_check)
        self.stamp(8)
        a('v_cvt_pk_bf16_f32 v16, v8, v10') if False else None
        a('v_cvt_pk_bf16_f32 v24, v8, v10'); a('v_cvt_pk_bf16_f32 v25, v12, v14'); a('v_cvt_pk_bf16_f32 v26, v16, v18'); a('v_cvt_pk_bf16_f32 v27, v20, v22')
        a('v_lshlrev_b32 v6, 4, v0'); a(f'v_add_u32 v6, {L_VEC}, v6')
        a('ds_write_b128 v6, v[24:27]'); a('s_waitcnt lgkmcnt(0)')
        a.label(L)
        a('v_lshlrev_b32 v4, 4, v2'); a(f'v_add_u32 v4, {L_VEC}, v4')
        a('s_lshl_b32 s60, s36, 11'); a('s_sub_u32 s61, s37, 8'); a('s_lshl_b32 s61, s61, 8'); a('s_add_u32 s60, s60, s61')
        a('s_lshl_b32 s61, s38, 6'); a('s_add_u32 s60, s60, s61'); a(f's_add_u32 s60, s60, {WS_C}')
        a('s_add_u32 s61, s60, 65536'); a('v_lshlrev_b32 v7, 14, v2'); a('v_lshl_add_u32 v7, v1, 2, v7')
        a('s_barrier')
        self.gemv(4, W1, 16, ACC)
        a(f'v_or_b32 v{ACC}, 1, v{ACC}')
        if self.wide:
            self.quad4(ACC, 8)
            a('s_mov_b32 exec_lo, 0x11111111'); a('s_mov_b32 exec_hi, 0x11111111')
            a('buffer_store_dwordx4 v[8:11], v7, s[40:43], s60 offen sc1')
            a('buffer_store_dwordx4 v[8:11], v7, s[40:43], s61 offen sc1')
        else:
            a(f'buffer_store_dword v{ACC}, v7, s[40:43], s60 offen sc1')
            a(f'buffer_store_dword v{ACC}, v7, s[40:43], s61 offen sc1')
        self.stamp(9)
        a('s_branch L_hend')

        a.label('L_role_mod')
        a('s_mul_i32 s62, s36, 768'); a('s_sub_u32 s61, s37, 16'); a('s_lshl_b32 s61, s61, 7'); a('s_add_u32 s62, s62, s61')
        a('s_lshr_b32 s68, s62, 1'); a('s_lshl_b32 s61, s38, 4'); a('s_add_u32 s68, s68, s61')
        iss = line_setup(28, 512 * 3072 * 2, 6144, 62)
        self.srd(52, 26, 1024); a('v_lshlrev_b32 v7, 4, v0')
        a('buffer_load_dwordx4 v[12:15], v7, s[52:55], 0 offen')
        iss('mod'); line_finish(); zero_stores('mod'); get_tag()
        X = 16
        self.unpack8(12, X)
        a(f's_mov_b32 s61, {hexf(-LOG2E)}')
        for k in range(8): a(f'v_mul_f32 v{24+k}, s61, v{X+k}')
        a(f's_mov_b32 s62, {hexf(126.0)}')
        for k in range(8): a(f'v_min_f32 v{24+k}, s62, v{24+k}')
        for k in range(8): a(f'v_exp_f32 v{24+k}, v{24+k}')
        for k in range(8): a(f'v_add_f32 v{24+k}, 1.0, v{24+k}')
        for k in range(8): a(f'v_rcp_f32 v{32+k}, v{24+k}')
        for k in range(8): a(f'v_fma_f32 v{24+k}, -v{24+k}, v{32+k}, 1.0')
        for k in range(8): a(f'v_fma_f32 v{24+k}, v{24+k}, v{32+k}, v{32+k}')
        for k in range(8): a(f'v_mul_f32 v{X+k}, v{X+k}, v{24+k}')
        self.pack8(X, 8)
        a('ds_write_b128 v5, v[8:11]'); a('s_waitcnt lgkmcnt(0)')
        self.gemv(4, W1, 16, ACC)
        a('s_lshl_b32 s60, s68, 2'); a(f's_add_u32 s60, s60, {WS_M}'); a('s_add_u32 s61, s60, 65536')
        a(f'v_mov_b32_dpp v{ACC+1}, v{ACC} quad_perm:[1,1,3,3] {DPPF}')
        a(f'v_cvt_pk_bf16_f32 v{ACC}, v{ACC}, v{ACC+1}')
        a(f'v_mov_b32 v{ACC+1}, s81')
        a('v_lshlrev_b32 v6, 14, v2'); a('v_lshl_add_u32 v6, v1, 2, v6')
        a('s_mov_b32 exec_lo, 0x55555555'); a('s_mov_b32 exec_hi, 0x55555555')
        a(f'buffer_store_dwordx2 v[{ACC}:{ACC+1}], v6, s[40:43], s60 offen sc1')
        a(f'buffer_store_dwordx2 v[{ACC}:{ACC+1}], v6, s[40:43], s61 offen sc1')
        a('s_mov_b64 exec, -1')
        self.stamp(8)
        zsignal()
        qgather_and_barrier1()
        a('s_mov_b32 s75, 3')
        a('s_cmp_eq_u32 s37, 21'); a('s_cbranch_scc1 L_fin_common')
        a('s_branch L_tail_plain')

        a.label('L_role_fin')
        if self.cpf:
            Lc = self.lab('L_nocpf'); Ll = self.lab('L_cpf')
            a('s_cmp_eq_u32 s38, 0'); a(f's_cbranch_scc1 {Lc}')
            a('s_getpc_b64 s[60:61]')
            a.label('L_pc_here')
            a(f's_sub_u32 s60, s60, L_pc_here-{KNAME}'); a('s_subb_u32 s61, s61, 0')
            a('s_sub_u32 s62, s38, 1'); a('s_lshl_b32 s62, s62, 12')
            a('v_lshlrev_b32 v6, 6, v0')
            a.label(Ll)
            a('v_add_u32 v7, s62, v6'); a(f'v_min_u32 v7, L_code_end-{KNAME}-4, v7')
            a('global_load_dword v8, v7, s[60:61]')
            a('s_add_u32 s62, s62, 12288'); a(f's_cmp_lt_u32 s62, L_code_end-{KNAME}'); a(f's_cbranch_scc1 {Ll}')
            a.label(Lc)
        if 'fin' in self.zfirst:
            zero_stores('fin'); get_tag(); zsignal(); barrier0()
        else:
            barrier0(); zero_stores('fin'); get_tag(); zsignal()
        qgather_and_barrier1()
        a('s_sub_u32 s75, s37, 29')
        a.label('L_fin_common')
        L = h0_begin()
        a('s_lshl_b32 s69, s36, 6'); a('s_lshl_b32 s61, s75, 4'); a('s_add_u32 s69, s69, s61')
        self.srd(52, 8, 1024)
        a('v_lshlrev_b32 v6, 1, v1'); a('s_lshl_b32 s60, s69, 1')
        a('buffer_load_ushort v160, v6, s[52:55], s60 offen')
        Lp = self.lab('L_gp')
        a('v_and_b32 v6, 14, v1'); a('v_lshlrev_b32 v6, 2, v6'); a('s_lshl_b32 s60, s69, 2'); a('s_lshl_b32 s61, s36, 14'); a('s_add_u32 s60, s60, s61'); a(f's_add_u32 s60, s60, {WS_M}')
        a(f's_add_u32 s61, s60, {1024*4}'); a(f's_add_u32 s60, s60, {2560*4}')
        a('v_lshrrev_b32 v7, 3, v0'); a('v_lshlrev_b32 v7, 7, v7'); a('v_and_b32 v8, 7, v0')
        a('v_min_u32 v9, 6, v8'); a('v_lshl_add_u32 v15, v9, 2, v7'); a('v_lshl_add_u32 v7, v8, 2, v7')
        a(f's_mov_b32 s62, {WS_ZF + 32}')
        a.label(Lp)
        a('buffer_load_dwordx2 v[8:9], v6, s[40:43], s61 offen sc1')
        a('buffer_load_dwordx2 v[10:11], v6, s[40:43], s60 offen sc1')
        a('buffer_load_dword v13, v7, s[40:43], s62 offen sc1')
        a('buffer_load_dword v14, v15, s[40:43], s62 offen offset:56 sc1')
        a('s_waitcnt vmcnt(0)')
        self.tag_check([9, 11, 13, 14], 12, Lp, sleep=8)
        a('v_lshlrev_b32 v160, 16, v160')
        a('v_and_b32 v12, 1, v0'); a('v_cmp_eq_u32 vcc, 1, v12')
        a('v_lshlrev_b32 v161, 16, v8'); a('v_and_b32 v8, 0xffff0000, v8'); a('v_cndmask_b32 v161, v161, v8, vcc')
        a('v_lshlrev_b32 v162, 16, v10'); a('v_and_b32 v10, 0xffff0000, v10'); a('v_cndmask_b32 v162, v162, v10, vcc')
        a.label(L)
        a('s_barrier')
        a('s_cmp_lg_u32 s38, 0'); a('s_cbranch_scc1 L_hend')
        t1_combine()
        Lp = self.lab('L_cp')
        a('v_lshlrev_b32 v6, 2, v1'); a('s_lshl_b32 s60, s69, 2'); a('s_lshl_b32 s61, s36, 14'); a('s_add_u32 s60, s60, s61'); a(f's_add_u32 s60, s60, {WS_C}')
        a(f's_add_u32 s61, s60, 4096'); a(f's_add_u32 s62, s60, 8192'); a(f's_add_u32 s63, s60, 12288')
        a.label(Lp)
        for gp in range(8): a(f'buffer_load_dword v{8+gp}, v6, s[40:43], s{60+gp//2} offen offset:{2048*(gp&1)} sc1')
        a('s_waitcnt vmcnt(0)')
        self.valid_check(range(8, 16), 16, Lp, sleep=2)
        a('v_add_f32 v8, v8, v9'); a('v_add_f32 v10, v10, v11'); a('v_add_f32 v12, v12, v13'); a('v_add_f32 v14, v14, v15')
        a('v_add_f32 v8, v8, v10'); a('v_add_f32 v12, v12, v14'); a('v_add_f32 v8, v8, v12')
        a('v_fmac_f32 v160, v161, v8')
        self.stamp(8)
        self.srd(52, 30, 1024)
        a('v_lshlrev_b32 v6, 11, v2'); a('v_lshl_add_u32 v6, v1, 2, v6')
        a('s_lshl_b32 s76, s69, 1')
        a('s_lshl_b32 s60, s69, 2'); a(f's_add_u32 s60, s60, {WS_E}')
        soffs = [60 + i if i < 10 else 72 + (i - 10) for i in range(14)]
        for i in range(1, 14): a(f's_add_u32 s{soffs[i]}, s60, {8192*i}')
        def e_issue(b):
            for i in range(14): a(f'buffer_load_dword v{b+i}, v6, s[40:43], s{soffs[i]} offen sc1')
        def e_use(b):
            def f():
                for st in ((0, 1), (2, 3), (4, 5), (6, 7), (8, 9), (10, 11), (12, 13), (0, 2), (4, 6), (8, 10), (0, 4), (8, 12)):
                    a(f'v_add_f32 v{b+st[0]}, v{b+st[0]}, v{b+st[1]}')
                a(f'v_add_f32 v148, v{b}, v{b+8}')
            return f
        if self.pipe:
            self.poll2(e_issue, 14, list(range(8, 22)), list(range(24, 38)), 150, e_use(8), e_use(24))
        else:
            Lp = self.lab('L_ep')
            a.label(Lp)
            e_issue(8)
            a('s_waitcnt vmcnt(0)')
            self.valid_check(range(8, 22), 24, Lp, sleep=self.psleep.get('E', 0))
            e_use(8)()
        self.stamp(9)
        self.allreduce([148], 'v_add_f32', 150, rows_only=True)
        self.round1(148, 149)
        a('v_fmac_f32 v160, v162, v148')
        a('v_cvt_pk_bf16_f32 v148, v160, v160')
        a('v_lshlrev_b32 v149, 1, v1')
        a('s_mov_b64 exec, 0xffff')
        a('buffer_store_short v148, v149, s[52:55], s76 offen')
        a('s_lshl_b32 s60, s37, 3'); a('s_add_u32 s60, s60, s36'); a('s_cmp_lg_u32 s60, 232'); a('s_cbranch_scc1 L_hend')
        a('s_add_u32 s83, s83, 1'); a('v_mov_b32 v151, s83'); a('v_mov_b32 v150, 0'); a(f's_mov_b32 s60, {WS_EPOCH}')
        a('s_mov_b64 exec, 1')
        a('buffer_store_dword v151, v150, s[40:43], s60 offen')
        self.stamp(10)
        a('s_branch L_hend')

        WD = 104
        a.label('L_role_ffn')
        if self.latef:
            zero_stores('ffn'); get_tag(); zsignal(); barrier0()
            qgather_and_barrier1()
            a('s_mul_i32 s56, s36, 448'); a('s_sub_u32 s61, s37, 22'); a('s_lshl_b32 s61, s61, 6'); a('s_add_u32 s56, s56, s61')
            a('s_lshr_b32 s68, s56, 1')
            a(f's_mul_i32 s61, s38, {128*3584}'); a('s_add_u32 s56, s56, s61'); a('s_mov_b32 s57, s56')
            a('s_lshl_b32 s58, s38, 13'); a(f's_add_u32 s58, s58, {L_TILE}'); a('s_add_u32 s59, s58, 32768')
            a('v_lshrrev_b32 v158, 2, v0'); a(f's_mov_b32 s61, 3584'); a('v_mul_lo_u32 v158, v158, s61')
            a('v_and_b32 v7, 3, v0'); a('v_lshl_add_u32 v158, v7, 4, v158')
            self.srd(52, 8, 1024)
            a('v_lshlrev_b32 v7, 2, v0'); a('s_lshl_b32 s60, s38, 8')
            a('buffer_load_dword v142, v7, s[52:55], s60 offen')
            Lp = self.lab('L_gp2')
            a('v_lshlrev_b32 v6, 3, v0'); a('s_lshl_b32 s60, s38, 9'); a('s_lshl_b32 s61, s36, 14'); a('s_add_u32 s60, s60, s61'); a(f's_add_u32 s60, s60, {WS_M + 1024*4}'); a('s_add_u32 s61, s60, 4096')
            a('v_lshrrev_b32 v7, 3, v0'); a('v_lshlrev_b32 v7, 7, v7'); a('v_and_b32 v8, 7, v0'); a('v_lshl_add_u32 v7, v8, 2, v7')
            a(f's_mov_b32 s62, {WS_ZF + 32}')
            a.label(Lp)
            a('buffer_load_dwordx2 v[8:9], v6, s[40:43], s60 offen sc1')
            a('buffer_load_dwordx2 v[10:11], v6, s[40:43], s60 offen offset:2048 sc1')
            a('buffer_load_dwordx2 v[12:13], v6, s[40:43], s61 offen sc1')
            a('buffer_load_dword v14, v7, s[40:43], s62 offen sc1')
            a('s_waitcnt vmcnt(0)')
            self.tag_check([9, 11, 13, 14], 16, Lp, sleep=8)
            for k, r in enumerate((8, 10, 12, 142)):
                a(f'v_and_b32 v{137+2*k}, 0xffff0000, v{r}'); a(f'v_lshlrev_b32 v{136+2*k}, 16, v{r}')
            a('v_add_f32 v140, 1.0, v140'); a('v_add_f32 v141, 1.0, v141'); self.round_pair(140, 141, 16)
            a('v_lshlrev_b32 v144, 3, v0'); a('s_lshl_b32 s72, s38, 9'); a('s_lshl_b32 s61, s36, 14'); a('s_add_u32 s72, s72, s61'); a(f's_add_u32 s72, s72, {WS_C}')
            a('s_add_u32 s73, s72, 4096'); a('s_add_u32 s74, s72, 8192'); a('s_add_u32 s75, s72, 12288')
            a('v_lshlrev_b32 v145, 2, v0'); a('s_lshl_b32 s61, s38, 8'); a(f's_add_u32 s61, s61, {L_VEC}'); a('v_add_u32 v145, s61, v145')
            a('v_lshlrev_b32 v4, 4, v2'); a(f'v_add_u32 v4, {L_VEC}, v4')
            a(f'v_mov_b32 v146, {L_ST}'); a('s_lshl_b32 s61, s38, 3'); a('v_add_u32 v147, s61, v146')
            self.srd(48, 20, 512 * 1792 * 2); self.srd(52, 22, 512 * 1792 * 2)
            Lw = self.lab('L_tw'); Lw2 = self.lab('L_tw2')
            a(f'v_mov_b32 v38, {L_MX + 36}'); a(f's_branch {Lw2}')
            a.label(Lw); a('s_sleep 2'); a.label(Lw2)
            a('ds_read_b32 v39, v38'); a('s_waitcnt lgkmcnt(0)'); a('v_readfirstlane_b32 s82, v39')
            a('s_add_u32 s80, s80, 1'); a(f's_cmp_gt_u32 s80, {POLL_LIMIT}'); a('s_cbranch_scc1 L_abort')
            a('s_cmp_eq_u32 s82, 0'); a(f's_cbranch_scc1 {Lw}')
            self.stamp(1)
            self.dma(48, 158, 56, 16 * 3584, 8, 58, nt=self.ffn_nt)
            self.dma(52, 158, 57, 16 * 3584, 8, 59, nt=self.ffn_nt)
            a('s_barrier')
            a('s_waitcnt vmcnt(0)')
            self.stamp(12)
            self.lds_sync(1)
            a('v_lshrrev_b32 v6, 2, v1'); a('v_lshl_add_u32 v6, v2, 3, v6'); a('v_lshlrev_b32 v6, 6, v6')
            a('v_and_b32 v7, 1, v0'); a('v_lshl_add_u32 v6, v7, 3, v6')
            a('v_bfe_u32 v7, v0, 1, 1'); a('v_lshl_add_u32 v6, v7, 15, v6')
            a('s_lshl_b32 s61, s38, 4'); a(f's_add_u32 s61, s61, {L_TILE}'); a('v_add_u32 v6, s61, v6')
            self.tr_read(6, W1, 16, 2048, 256)
            self.lds_sync(2)
            self.srd(48, 24, 1792 * 512 * 2)
            a('v_lshlrev_b32 v158, 4, v0')
            a('s_lshl_b32 s61, s38, 3'); a('s_add_u32 s56, s68, s61'); a('s_lshl_b32 s56, s56, 10')
            self.dma(48, 158, 56, 1024, 8, 58)
            a('v_lshrrev_b32 v6, 2, v1'); a('v_lshl_add_u32 v6, v2, 3, v6'); a('v_lshlrev_b32 v6, 10, v6')
            a('v_and_b32 v7, 3, v0'); a('v_lshl_add_u32 v6, v7, 3, v6')
            a('s_lshl_b32 s61, s38, 8'); a(f's_add_u32 s61, s61, {L_TILE}'); a('v_add_u32 v159, s61, v6')
            a('s_waitcnt vmcnt(0)')
            self.lds_sync(3)
            self.tr_read(159, WD, 8, 32, 4096)
            self.stamp(14)
        else:
            self.srd(48, 20, 512 * 1792 * 2); self.srd(52, 22, 512 * 1792 * 2)
            a('v_lshrrev_b32 v158, 2, v0'); a(f's_mov_b32 s61, 3584'); a('v_mul_lo_u32 v158, v158, s61')
            a('v_and_b32 v7, 3, v0'); a('v_lshl_add_u32 v158, v7, 4, v158')
            a('s_mul_i32 s72, s36, 448'); a('s_sub_u32 s61, s37, 22'); a('s_lshl_b32 s61, s61, 6'); a('s_add_u32 s72, s72, s61')
            a('s_lshr_b32 s68, s72, 1')
            a(f's_mul_i32 s61, s38, {128*3584}'); a('s_add_u32 s72, s72, s61'); a('s_mov_b32 s73, s72')
            a('s_lshl_b32 s66, s38, 13'); a(f's_add_u32 s66, s66, {L_TILE}'); a('s_add_u32 s74, s66, 32768')
            if 'ffn' in self.zfirst:
                zero_stores('ffn'); get_tag(); zsignal(); barrier0()
            else:
                barrier0(); zero_stores('ffn'); get_tag(); zsignal()
            dff = self.depth.get('ffn', 64)
            def ffn_issue(depth):
                self.dma(48, 158, 72, 16 * 3584, 8, 66, nt=self.ffn_nt, depth=depth)
                self.dma(52, 158, 73, 16 * 3584, 8, 74, nt=self.ffn_nt, depth=depth, first=(depth >= 16))
            L1 = self.lab('L_f1'); L2 = self.lab('L_f2')
            a('s_cmp_eq_u32 s38, 0'); a(f's_cbranch_scc1 {L1}')
            ffn_issue(dff)
            a(f's_branch {L2}')
            a.label(L1)
            ffn_issue(self.depth.get('ffn0', 8))
            a.label(L2)
            qgather_and_barrier1()
            self.stamp(1)
            a('s_waitcnt vmcnt(0)')
            self.stamp(12)
            self.lds_sync(1)
            a('v_lshrrev_b32 v6, 2, v1'); a('v_lshl_add_u32 v6, v2, 3, v6'); a('v_lshlrev_b32 v6, 6, v6')
            a('v_and_b32 v7, 1, v0'); a('v_lshl_add_u32 v6, v7, 3, v6')
            a('v_bfe_u32 v7, v0, 1, 1'); a('v_lshl_add_u32 v6, v7, 15, v6')
            a('s_lshl_b32 s61, s38, 4'); a(f's_add_u32 s61, s61, {L_TILE}'); a('v_add_u32 v6, s61, v6')
            self.tr_read(6, W1, 16, 2048, 256)
            self.stamp(14)
            self.lds_sync(2)
            self.srd(48, 24, 1792 * 512 * 2)
            a('v_lshlrev_b32 v158, 4, v0')
            a('s_lshl_b32 s61, s38, 3'); a('s_add_u32 s72, s68, s61'); a('s_lshl_b32 s72, s72, 10')
            a('s_lshl_b32 s66, s38, 13'); a(f's_add_u32 s66, s66, {L_TILE}')
            self.dma(48, 158, 72, 1024, 8, 66, depth=8)
            a('s_waitcnt vmcnt(0)')
            self.lds_sync(3)
            a('v_lshrrev_b32 v6, 2, v1'); a('v_lshl_add_u32 v6, v2, 3, v6'); a('v_lshlrev_b32 v6, 10, v6')
            a('v_and_b32 v7, 3, v0'); a('v_lshl_add_u32 v6, v7, 3, v6')
            a('s_lshl_b32 s61, s38, 8'); a(f's_add_u32 s61, s61, {L_TILE}'); a('v_add_u32 v6, s61, v6')
            self.tr_read(6, WD, 8, 32, 4096)
            self.srd(52, 8, 1024)
            a('v_lshlrev_b32 v7, 2, v0'); a('s_lshl_b32 s60, s38, 8')
            a('buffer_load_dword v142, v7, s[52:55], s60 offen')
            Lp = self.lab('L_gp2')
            a('v_lshlrev_b32 v6, 3, v0'); a('s_lshl_b32 s60, s38, 9'); a('s_lshl_b32 s61, s36, 14'); a('s_add_u32 s60, s60, s61'); a(f's_add_u32 s60, s60, {WS_M + 1024*4}'); a('s_add_u32 s61, s60, 4096')
            a('v_lshrrev_b32 v7, 3, v0'); a('v_lshlrev_b32 v7, 7, v7'); a('v_and_b32 v8, 7, v0'); a('v_lshl_add_u32 v7, v8, 2, v7')
            a(f's_mov_b32 s62, {WS_ZF + 32}')
            a.label(Lp)
            a('buffer_load_dwordx2 v[8:9], v6, s[40:43], s60 offen sc1')
            a('buffer_load_dwordx2 v[10:11], v6, s[40:43], s60 offen offset:2048 sc1')
            a('buffer_load_dwordx2 v[12:13], v6, s[40:43], s61 offen sc1')
            a('buffer_load_dword v14, v7, s[40:43], s62 offen sc1')
            a('s_waitcnt vmcnt(0)')
            self.tag_check([9, 11, 13, 14], 16, Lp, sleep=8)
            for k, r in enumerate((8, 10, 12, 142)):
                a(f'v_and_b32 v{137+2*k}, 0xffff0000, v{r}'); a(f'v_lshlrev_b32 v{136+2*k}, 16, v{r}')
            a('v_add_f32 v140, 1.0, v140'); a('v_add_f32 v141, 1.0, v141'); self.round_pair(140, 141, 16)
            a('v_lshlrev_b32 v144, 3, v0'); a('s_lshl_b32 s72, s38, 9'); a('s_lshl_b32 s61, s36, 14'); a('s_add_u32 s72, s72, s61'); a(f's_add_u32 s72, s72, {WS_C}')
            a('s_add_u32 s73, s72, 4096'); a('s_add_u32 s74, s72, 8192'); a('s_add_u32 s75, s72, 12288')
            a('v_lshlrev_b32 v145, 2, v0'); a('s_lshl_b32 s61, s38, 8'); a(f's_add_u32 s61, s61, {L_VEC}'); a('v_add_u32 v145, s61, v145')
            a('v_lshlrev_b32 v4, 4, v2'); a(f'v_add_u32 v4, {L_VEC}, v4')
            a(f'v_mov_b32 v146, {L_ST}'); a('s_lshl_b32 s61, s38, 3'); a('v_add_u32 v147, s61, v146')
            a('s_barrier')

        if not self.latef:
            L = h0_begin()
            t1_combine()
            a.label(L)
        def c_issue(b):
            for gp in range(8): a(f'buffer_load_dwordx2 v[{b+2*gp}:{b+1+2*gp}], v144, s[40:43], s{72+gp//2} offen offset:{2048*(gp&1)} sc1')
        def c_use(b):
            def f():
                for (x_, y_) in ((0, 2), (4, 6), (8, 10), (12, 14), (0, 4), (8, 12)):
                    a(f'v_add_f32 v{b+x_}, v{b+x_}, v{b+y_}'); a(f'v_add_f32 v{b+x_+1}, v{b+x_+1}, v{b+y_+1}')
                a(f'v_add_f32 v148, v{b}, v{b+8}'); a(f'v_add_f32 v149, v{b+1}, v{b+9}')
            return f
        if self.pipe:
            self.poll2(c_issue, 8, list(range(8, 24)), list(range(24, 40)), 150, c_use(8), c_use(24))
        else:
            Lp = self.lab('L_cp2')
            a.label(Lp)
            c_issue(8)
            a('s_waitcnt vmcnt(0)')
            self.valid_check(range(8, 24), 24, Lp, sleep=self.psleep.get('C', 0))
            c_use(8)()
        self.stamp(8)
        a('v_fmac_f32 v142, v136, v148'); a('v_fmac_f32 v143, v137, v149')
        a('v_add_f32 v150, v142, v143'); a('v_mul_f32 v151, v142, v142'); a('v_fmac_f32 v151, v143, v143')
        self.allreduce([150, 151], 'v_add_f32', 152)
        a('s_mov_b64 exec, 1'); a('ds_write_b64 v147, v[150:151]'); a('s_mov_b64 exec, -1')
        a('s_waitcnt lgkmcnt(0)')
        a('s_barrier')
        a('ds_read_b128 v[152:155], v146'); a('ds_read_b128 v[156:159], v146 offset:16')
        a('s_waitcnt lgkmcnt(0)')
        a('v_add_f32 v152, v152, v154'); a('v_add_f32 v153, v153, v155'); a('v_add_f32 v156, v156, v158'); a('v_add_f32 v157, v157, v159')
        a('v_add_f32 v152, v152, v156'); a('v_add_f32 v153, v153, v157')
        a(f'v_mul_f32 v152, {hexf(1/512)}, v152'); a(f'v_mul_f32 v153, {hexf(1/512)}, v153')
        a('v_fma_f32 v153, -v152, v152, v153'); a(f'v_add_f32 v153, {hexf(1e-5)}, v153'); a('v_rsq_f32 v153, v153')
        a('v_sub_f32 v142, v142, v152'); a('v_sub_f32 v143, v143, v152')
        a('v_mul_f32 v142, v142, v153'); a('v_mul_f32 v143, v143, v153')
        a('v_fma_f32 v142, v142, v140, v138'); a('v_fma_f32 v143, v143, v141, v139')
        a('v_cvt_pk_bf16_f32 v150, v142, v143')
        a('ds_write_b32 v145, v150'); a('s_waitcnt vmcnt(0) lgkmcnt(0)')
        a('s_barrier')
        self.stamp(9)
        ACC2 = 136
        self.gemv(4, W1, 16, ACC2)
        self.round1(ACC2, ACC2 + 1)
        a(f's_mov_b32 s61, {hexf(-LOG2E)}')
        a(f'v_mul_f32 v8, s61, v{ACC2}'); a(f'v_min_f32 v8, {hexf(126.0)}, v8'); a('v_exp_f32 v8, v8'); a('v_add_f32 v8, 1.0, v8'); a('v_rcp_f32 v9, v8')
        a('v_fma_f32 v8, -v8, v9, 1.0'); a('v_fma_f32 v8, v8, v9, v9')
        a(f'v_mul_f32 v8, v{ACC2}, v8'); self.round1(8, 9)
        a(f'v_mov_b32_dpp v9, v{ACC2} row_ror:8 {DPPF}')
        a('v_mul_f32 v8, v8, v9')
        a('v_cvt_pk_bf16_f32 v8, v8, v8')
        a('v_lshlrev_b32 v6, 1, v1'); a('s_lshl_b32 s61, s38, 4'); a(f's_add_u32 s61, s61, {L_AV}'); a('v_add_u32 v6, s61, v6')
        a('s_mov_b64 exec, 0xff'); a('ds_write_b16 v6, v8'); a('s_mov_b64 exec, -1')
        a('v_lshlrev_b32 v7, 4, v2'); a(f'v_add_u32 v7, {L_AV}, v7')
        a('s_mul_i32 s60, s36, 7'); a('s_add_u32 s60, s60, s37'); a('s_sub_u32 s60, s60, 22'); a('s_lshl_b32 s60, s60, 11')
        a('s_lshl_b32 s61, s38, 9'); a('s_add_u32 s60, s60, s61'); a(f's_add_u32 s60, s60, {WS_E}')
        a('s_mov_b32 s62, 0xffff0000'); a('s_mov_b32 s63, 0xffff0000'); a('s_mov_b32 s64, 0'); a('s_mov_b32 s65, -1')
        a('s_waitcnt lgkmcnt(0)')
        a('s_barrier')
        a('ds_read_b128 v[136:139], v7'); a('s_waitcnt lgkmcnt(0)')
        for jj in range(8):
            a(f'v_mfma_f32_16x16x32_bf16 v[{8+4*jj}:{11+4*jj}], v[136:139], v[{WD+4*jj}:{WD+4*jj+3}], 0')
        self.stamp(10)
        for half in range(2):
            b = 8 + 16 * half
            a(f'v_cndmask_b32 v{140+2*half}, v{b}, v{b+4}, s[62:63]'); a(f'v_cndmask_b32 v{141+2*half}, v{b+8}, v{b+12}, s[62:63]')
            a(f'v_cndmask_b32 v{140+2*half}, v{140+2*half}, v{141+2*half}, s[64:65]')
            a(f'v_or_b32 v{140+2*half}, 1, v{140+2*half}')
        a('v_lshlrev_b32 v6, 2, v0')
        if self.wide:
            self.quad4(140, 144); self.quad4(142, 148)
            a('s_mov_b32 exec_lo, 0x11111111'); a('s_mov_b32 exec_hi, 0x11111111')
            a('buffer_store_dwordx4 v[144:147], v6, s[40:43], s60 offen sc1')
            a('buffer_store_dwordx4 v[148:151], v6, s[40:43], s60 offen offset:256 sc1')
        else:
            a('buffer_store_dword v140, v6, s[40:43], s60 offen sc1')
            a('buffer_store_dword v142, v6, s[40:43], s60 offen offset:256 sc1')
        a('s_branch L_hend')

        a.label('L_tail_plain')
        a('s_mov_b32 s78, s37')
        if self.latef:
            Lq = self.lab('L_t1b')
            a('s_cmp_eq_u32 s38, 0'); a(f's_cbranch_scc1 {Lq}')
            a('s_add_u32 s78, s37, 22')
            a.label(Lq)
            a('s_barrier')
            Lg = self.lab('L_t1go')
            a('s_cmp_eq_u32 s38, 0'); a(f's_cbranch_scc1 {Lg}')
            a('s_cmp_lg_u32 s38, 1'); a('s_cbranch_scc1 L_hend')
            a('s_cmp_ge_u32 s37, 7'); a('s_cbranch_scc1 L_hend')
            a.label(Lg)
        else:
            a('s_barrier')
            a('s_cmp_lg_u32 s38, 0'); a('s_cbranch_scc1 L_hend')
        t1_combine(own=False)
        a.label('L_hend')
        self.stamp(11)
        self.stamp_flush(helper=True)
        a('s_endpgm')

    def build(self):
        a = self.a
        hdr = open('cdna_kernels/' + KNAME.replace('_kernel', '') + '.s.ref').read().split('\n')
        head = [l for l in hdr if l.startswith(';') and '@launch' not in l and 'Override' not in l and 'grid=ceil' not in l]
        a.raw('\n'.join(head))
        a.raw(f'; @launch grid=(256,1,1) block=(768,1,1) lds={LDS_SIZE}')
        a.raw('.amdgcn_target "amdgcn-amd-amdhsa--gfx950"\n.text')
        a.raw(f'.globl {KNAME}\n.p2align 8\n.type {KNAME},@function\n{KNAME}:')
        a('s_cmp_ge_u32 s2, 256'); a('s_cbranch_scc1 L_abort')
        a('s_load_dwordx16 s[8:23], s[0:1], 0'); a('s_load_dwordx8 s[24:31], s[0:1], 64'); a('s_load_dwordx4 s[32:35], s[0:1], 96')
        a('v_lshrrev_b32 v1, 6, v0'); a('v_readfirstlane_b32 s3, v1'); a('v_and_b32 v0, 63, v0')
        if self.remap:
            a('s_lshr_b32 s36, s2, 5'); a('s_and_b32 s37, s2, 31')
        else:
            a('s_and_b32 s36, s2, 7'); a('s_lshr_b32 s37, s2, 3')
        self.stamp_init()
        a('s_waitcnt lgkmcnt(0)')
        self.srd(40, 34, WS_SIZE)
        a('s_cmp_ge_u32 s3, 8'); a('s_cbranch_scc1 L_helper')
        self.attention()
        a.label('L_helper')
        self.helper()
        a.label('L_abort')
        a('s_endpgm')
        a.label('L_code_end')
        n = a.pad()
        a.raw('.section .rodata,"a"\n.p2align 6')
        a.raw(f'.amdhsa_kernel {KNAME}\n  .amdhsa_next_free_vgpr 168\n  .amdhsa_next_free_sgpr 102\n  .amdhsa_accum_offset 168\n'
              '  .amdhsa_group_segment_fixed_size 0\n  .amdhsa_kernarg_size 112\n  .amdhsa_user_sgpr_count 2\n'
              '  .amdhsa_user_sgpr_kernarg_segment_ptr 1\n  .amdhsa_system_sgpr_workgroup_id_x 1\n'
              '  .amdhsa_float_denorm_mode_32 3\n.end_amdhsa_kernel')
        return a.text(), n

if __name__ == '__main__':
    import argparse
    p = argparse.ArgumentParser()
    p.add_argument('-o', default='cdna_kernels/' + KNAME.replace('_kernel', '') + '.s')
    p.add_argument('--thr', type=int, default=2); p.add_argument('--thr-deep', type=int, default=3)
    p.add_argument('--stamps', action='store_true'); p.add_argument('--ffn-nt', action='store_true')
    p.add_argument('--deep', default='ffn'); p.add_argument('--x-notile', action='store_true'); p.add_argument('--x-nopoll', action='store_true')
    p.add_argument('--qsleep', type=int, default=4); p.add_argument('--x-nokv', action='store_true')
    p.add_argument('--depth', default=''); p.add_argument('--kthr', default=''); p.add_argument('--late', default=''); p.add_argument('--light', default=''); p.add_argument('--slow', type=int, default=0); p.add_argument('--slow-thr', type=int, default=0); p.add_argument('--boost', type=int, default=0); p.add_argument('--latef', action='store_true'); p.add_argument('--trig', type=int, default=2); p.add_argument('--nw', action='store_true'); p.add_argument('--nowide', action='store_true'); p.add_argument('--nopipe', action='store_true'); p.add_argument('--nocpf', action='store_true'); p.add_argument('--remap', action='store_true'); p.add_argument('--nofast', action='store_true'); p.add_argument('--ext', default=''); p.add_argument('--ng', default=''); p.add_argument('--psleep', default=''); p.add_argument('--dbgmode', action='store_true'); p.add_argument('--vthr', type=int, default=None); p.add_argument('--zfirst', default='')
    args = p.parse_args()
    kv = lambda t: {x.split('=')[0]: int(x.split('=')[1]) for x in t.split(',') if x}
    g = Gen(thr=args.thr, stamps=args.stamps, thr_deep=args.thr_deep, ffn_nt=args.ffn_nt, deep_roles=tuple(x for x in args.deep.split(',') if x),
            x_notile=args.x_notile, x_nopoll=args.x_nopoll, qsleep=args.qsleep, x_nokv=args.x_nokv, depth=kv(args.depth), kthr=kv(args.kthr), late_k=tuple(x for x in args.late.split(',') if x), vthr=args.vthr, zfirst=tuple(x for x in args.zfirst.split(',') if x), ngroups=kv(args.ng), psleep=kv(args.psleep), ext=kv(args.ext))
    g.light = (set(int(x) for x in args.light.split(',')) if args.light else None)
    g.slow = args.slow; g.slow_thr = args.slow_thr
    g.boost = args.boost
    g.latef = args.latef; g.trig_ahead = args.trig
    g.nw = args.nw
    g.wide = not args.nowide
    g.pipe = not args.nopipe
    g.cpf = not args.nocpf
    g.dbgmode = args.dbgmode; g.remap = args.remap; g.fast = not args.nofast
    t, n = g.build()
    open(args.o, 'w').write(t)
    print('wrote', args.o, 'lines', t.count('\n'), 'nops inserted', n)
```

```python
import sys, struct
sys.path.insert(0, 'gen')
from asmdsl import Asm

KNAME = 'adaLN_cond__gqa_block_cached__swiglu_ffn__decode_kernel'

WS_A = 0
WS_SM = 1 << 20
WS_AF = 5 << 20
WS_B = (2 << 20) + 131072
WS_BF = (2 << 20) + 196608
WS_C = WS_SM + 262144
WS_E = WS_SM + 32768
WS_M = (2 << 20) + 262144
WS_Q = (2 << 20) + 16384
WS_ZF = (2 << 20) + 65536
WS_EPOCH = (3 << 20)
WS_STAMP = 4 << 20
WS_SIZE = 8 << 20
L_TILE = 0
NVL = 10
L_VL = 65536
VLS = NVL * 1024
L_ML = L_VL + 8 * VLS
L_QL = L_ML + 256
L_VEC = L_QL + 1024
L_ST = L_VEC + 4096
L_AV = L_ST + 64
L_CNT = L_AV + 64
L_MX = L_CNT + 64
LDS_SIZE = L_MX + 64
assert LDS_SIZE <= 163840

LOG2E = 1.4426950408889634
def f2u(x): return struct.unpack('<I', struct.pack('<f', x))[0]
def hexf(x): return '0x%08x' % f2u(x)
DPPF = 'row_mask:0xf bank_mask:0xf'
POLL_LIMIT = 400000
FAST_TRIES = 64

class Gen:
    def __init__(self, thr=2, stamps=False, thr_deep=3, ffn_nt=False, qk_extra=True, deep_roles=('ffn',), x_notile=False, x_nopoll=False,
                 qsleep=4, x_nokv=False, depth=None, kthr=None, late_k=(), vthr=None, zfirst=(), ngroups=None, psleep=None, ext=None):
        self.a = Asm(); self.thr = thr; self.stamps = stamps; self.thr_deep = thr_deep; self.ffn_nt = ffn_nt
        self.qk_extra = qk_extra; self.deep_roles = deep_roles; self.x_notile = x_notile; self.x_nopoll = x_nopoll
        self.ext = ext or {}; self.psleep = psleep or {}; self.ngroups = ngroups or {}; self.vthr = vthr; self.zfirst = zfirst; self.depth = depth or {}; self.kthr = kthr or {}; self.late_k = late_k; self.qsleep = qsleep; self.x_nokv = x_nokv
        self.slow = 0; self.slow_thr = 0; self.tilelate = (); self.aflate = False; self.csent = False; self.csent_off = 448; self.bsent = 0; self.edelay = 0; self.finsent = False; self.asleep = 0; self.h0only = False; self.msleep = 4; self.ssleep = 8; self.qsent = 0; self.asent = 0; self.asent_thr = 24; self.msent = 0; self.boost = 0; self.latef = False; self.trig_ahead = 2; self.nw = False; self.wide = True; self.pipe = True; self.cpf = True; self.light = None; self.nlab = 0; self.dbgmode = False; self.remap = False; self.fast = True
    def lab(self, p='L'):
        self.nlab += 1
        return f'{p}_{self.nlab}'
    def srd(self, sd, sp, size):
        a = self.a
        a(f's_mov_b32 s{sd}, s{sp}'); a(f's_and_b32 s{sd+1}, s{sp+1}, 0xffff')
        a(f's_mov_b32 s{sd+2}, {size}'); a(f's_mov_b32 s{sd+3}, 0x00020000')
    def stamp(self, k):
        if not self.stamps: return
        if self.light is not None and k not in self.light: return
        a = self.a
        if self.nw:
            j = sorted(self.light).index(k)
            a(f's_memrealtime s[{84+2*j}:{85+2*j}]')
            return
        a('s_memrealtime s[70:71]'); a('s_waitcnt lgkmcnt(0)'); a(f's_mov_b32 s{84+k}, s70')
    def stamp_init(self):
        if not self.stamps: return
        for k in range(18 if self.nw else 16): self.a(f's_mov_b32 s{84+k}, 0')
    def stamp_flush(self, helper=False):
        if not self.stamps: return
        a = self.a
        if self.dbgmode:
            L = self.lab('L_nodbg')
            self.srd(44, 32, 256)
            a('s_mov_b64 exec, 1'); a('v_mov_b32 v1, 0')
            if helper:
                a('s_cmp_lg_u32 s2, 232'); a(f's_cbranch_scc1 {L}'); a('s_cmp_lg_u32 s3, 8'); a(f's_cbranch_scc1 {L}')
                lst = [(k, 8 + i) for i, k in enumerate((0, 2, 3, 6, 7, 8, 9, 11))]
            else:
                a('s_cmp_lg_u32 s2, 0'); a(f's_cbranch_scc1 {L}'); a('s_cmp_lg_u32 s3, 0'); a(f's_cbranch_scc1 {L}')
                lst = [(k, k) for k in range(8)]
            for k, slot in lst:
                a(f'v_mov_b32 v2, s{84+k}')
                a(f'buffer_store_dword v2, v1, s[44:47], 0 offen offset:{4*slot}')
            a('s_waitcnt vmcnt(0)')
            a.label(L)
            return
        a('s_mov_b64 exec, 1')
        a('s_mul_i32 s70, s2, 12'); a('s_add_u32 s70, s70, s3'); a('s_lshl_b32 s70, s70, 6')
        a(f's_add_u32 s70, s70, {WS_STAMP}')
        a('v_mov_b32 v1, 0')
        if self.nw:
            a('s_waitcnt lgkmcnt(0)')
            lst = sorted(self.light)
            for k in range(16):
                if k in lst: a(f'v_mov_b32 v2, s{84+2*lst.index(k)}')
                else: a('v_mov_b32 v2, 0')
                a(f'buffer_store_dword v2, v1, s[40:43], s70 offen offset:{4*k}')
        else:
            for k in range(16):
                a(f'v_mov_b32 v2, s{84+k}')
                a(f'buffer_store_dword v2, v1, s[40:43], s70 offen offset:{4*k}')
        a('s_waitcnt vmcnt(0)')
    def round_pair(self, x, y, t):
        a = self.a
        a(f'v_cvt_pk_bf16_f32 v{t}, v{x}, v{y}')
        a(f'v_lshlrev_b32 v{x}, 16, v{t}')
        a(f'v_and_b32 v{y}, 0xffff0000, v{t}')
    def round_list(self, regs, t):
        for i in range(0, len(regs), 2):
            self.round_pair(regs[i], regs[i+1], t + (i // 2) % 2)
    def round1(self, x, t):
        a = self.a
        a(f'v_cvt_pk_bf16_f32 v{t}, v{x}, v{x}')
        a(f'v_lshlrev_b32 v{x}, 16, v{t}')
    def allreduce(self, regs, op, t, rows_only=False, quad=True, row=True):
        a = self.a
        if not rows_only:
            steps = []
            if quad: steps += ['quad_perm:[1,0,3,2]', 'quad_perm:[2,3,0,1]']
            if row: steps += ['row_half_mirror', 'row_mirror']
            for st in steps:
                for r in regs: a(f'{op}_dpp v{r}, v{r}, v{r} {st} {DPPF}')
        for sw in ('v_permlane16_swap_b32', 'v_permlane32_swap_b32'):
            for k, r in enumerate(regs): a(f'v_mov_b32 v{t+k}, v{r}')
            for k, r in enumerate(regs): a(f'{sw} v{r}, v{t+k}')
            for k, r in enumerate(regs): a(f'{op} v{r}, v{r}, v{t+k}')
    def poll_tail(self, loop_label, sleep=0):
        a = self.a
        if self.x_nopoll: return
        a('s_add_u32 s80, s80, 1'); a(f's_cmp_gt_u32 s80, {POLL_LIMIT}'); a('s_cbranch_scc1 L_abort')
        a('s_cmp_eq_u64 vcc, exec')
        if sleep:
            L = self.lab('L_pk')
            a(f's_cbranch_scc1 {L}'); a(f's_sleep {sleep}'); a(f's_branch {loop_label}'); a.label(L)
        else:
            a(f's_cbranch_scc0 {loop_label}')
    def valid_check(self, regs, t, loop_label, sleep=0):
        a = self.a
        regs = list(regs); cur = regs[0]; i = 1
        while i < len(regs):
            if i + 1 < len(regs):
                a(f'v_min3_u32 v{t}, v{cur}, v{regs[i]}, v{regs[i+1]}'); i += 2
            else:
                a(f'v_min_u32 v{t}, v{cur}, v{regs[i]}'); i += 1
            cur = t
        a(f'v_cmp_ne_u32 vcc, 0, v{cur}')
        self.poll_tail(loop_label, sleep)
    def tag_check(self, regs, t, loop_label, sleep=0):
        a = self.a
        regs = list(regs)
        for r in regs: a(f'v_xor_b32 v{r}, s81, v{r}')
        cur = regs[0]; i = 1
        while i < len(regs):
            if i + 1 < len(regs):
                a(f'v_or3_b32 v{t}, v{cur}, v{regs[i]}, v{regs[i+1]}'); i += 2
            else:
                a(f'v_or_b32 v{t}, v{cur}, v{regs[i]}'); i += 1
            cur = t
        a(f'v_cmp_eq_u32 vcc, 0, v{cur}')
        self.poll_tail(loop_label, sleep)
    def sentinel(self, soff, t, sleep=6):
        a = self.a
        if self.x_nopoll: return
        L = self.lab('L_sn'); L2 = self.lab('L_sn2')
        a(f'v_mov_b32 v{t}, 0'); a(f's_branch {L2}')
        a.label(L); a(f's_sleep {sleep}'); a.label(L2)
        a(f'buffer_load_dword v{t+1}, v{t}, s[40:43], s{soff} offen sc1')
        a('s_waitcnt vmcnt(0)')
        a(f'v_readfirstlane_b32 s82, v{t+1}')
        a('s_add_u32 s80, s80, 1'); a(f's_cmp_gt_u32 s80, {POLL_LIMIT}'); a('s_cbranch_scc1 L_abort')
        a('s_cmp_eq_u32 s82, s81'); a(f's_cbranch_scc0 {L}')
    def poll2(self, issue, nld, regsA, regsB, t, useA, useB, stagger=8):
        a = self.a
        L = self.lab('L_p2'); LA = self.lab('L_p2a'); LB = self.lab('L_p2b'); LD = self.lab('L_p2d')
        def check(regs, ok_label):
            regs = list(regs); cur = regs[0]; i = 1
            while i < len(regs):
                if i + 1 < len(regs):
                    a(f'v_min3_u32 v{t}, v{cur}, v{regs[i]}, v{regs[i+1]}'); i += 2
                else:
                    a(f'v_min_u32 v{t}, v{cur}, v{regs[i]}'); i += 1
                cur = t
            a(f'v_cmp_ne_u32 vcc, 0, v{cur}')
            if self.x_nopoll:
                a(f's_branch {ok_label}'); return
            a('s_add_u32 s80, s80, 1'); a(f's_cmp_gt_u32 s80, {POLL_LIMIT}'); a('s_cbranch_scc1 L_abort')
            a('s_cmp_eq_u64 vcc, exec'); a(f's_cbranch_scc1 {ok_label}')
        issue(regsA[0]); a(f's_sleep {stagger}'); issue(regsB[0])
        a.label(L)
        a(f's_waitcnt vmcnt({nld})'); check(regsA, LA); issue(regsA[0])
        a(f's_waitcnt vmcnt({nld})'); check(regsB, LB); issue(regsB[0])
        a(f's_branch {L}')
        a.label(LA); useA(); a(f's_branch {LD}')
        a.label(LB); useB()
        a.label(LD)
    def quad4(self, src, dst):
        for j in range(4): self.a(f'v_mov_b32_dpp v{dst+j}, v{src} quad_perm:[{j},{j},{j},{j}] {DPPF}')
    def unpack8(self, src, dst):
        for k in range(4):
            self.a(f'v_lshlrev_b32 v{dst+2*k}, 16, v{src+k}')
            self.a(f'v_and_b32 v{dst+2*k+1}, 0xffff0000, v{src+k}')
    def pack8(self, src, dst):
        for k in range(4): self.a(f'v_cvt_pk_bf16_f32 v{dst+k}, v{src+2*k}, v{src+2*k+1}')
    def dma(self, srd, voff, soff, step, n, lds_s, nt=True, depth=64, first=True):
        a = self.a
        if self.x_notile: return
        ntf = ' nt' if nt else ''
        for i in range(n):
            if (i >= depth) or (not first): a(f's_waitcnt vmcnt({depth - 1})')
            a(f's_add_u32 m0, s{lds_s}, {i*1024}')
            a(f'buffer_load_dwordx4 v{voff}, s[{srd}:{srd+3}], s{soff} offen{ntf} lds')
            if i + 1 < n: a(f's_add_u32 s{soff}, s{soff}, {step}')
    def lds_sync(self, phase, sleep=0):
        a = self.a
        L = self.lab('L_ls')
        a(f'v_mov_b32 v38, {L_CNT}'); a('v_mov_b32 v39, 1')
        a('s_mov_b64 exec, 1'); a('ds_add_u32 v38, v39'); a('s_mov_b64 exec, -1')
        L2 = self.lab('L_ls2')
        if sleep: a(f's_branch {L2}')
        a.label(L)
        if sleep:
            a(f's_sleep {sleep}'); a.label(L2)
        a('ds_read_b32 v39, v38'); a('s_waitcnt lgkmcnt(0)'); a('v_readfirstlane_b32 s82, v39')
        a('s_add_u32 s80, s80, 1'); a(f's_cmp_gt_u32 s80, {POLL_LIMIT}'); a('s_cbranch_scc1 L_abort')
        a(f's_cmp_lt_u32 s82, {4*phase}'); a(f's_cbranch_scc1 {L}')
    def tr_read(self, vaddr, W, n, step, half):
        a = self.a
        for i in range(n):
            a(f'ds_read_b64_tr_b16 v[{W+4*i}:{W+4*i+1}], v{vaddr} offset:{i*step}')
            a(f'ds_read_b64_tr_b16 v[{W+4*i+2}:{W+4*i+3}], v{vaddr} offset:{i*step+half}')
            if (i % 5) == 4: a('s_waitcnt lgkmcnt(4)')
        a('s_waitcnt lgkmcnt(0)')
    def gemv(self, vaddr, W, n, acc, Areg=8, nsets=8):
        a = self.a
        issued = 0
        for i in range(min(nsets, n)):
            a(f'ds_read_b128 v[{Areg+4*i}:{Areg+4*i+3}], v{vaddr} offset:{i*64}'); issued += 1
        for i in range(n):
            a(f's_waitcnt lgkmcnt({issued - i - 1})')
            A = Areg + 4 * (i % nsets); c = acc + 4 * (i % 2)
            src = f'v[{c}:{c+3}]' if i >= 2 else '0'
            a(f'v_mfma_f32_16x16x32_bf16 v[{c}:{c+3}], v[{A}:{A+3}], v[{W+4*i}:{W+4*i+3}], {src}')
            if issued < n:
                a(f'ds_read_b128 v[{A}:{A+3}], v{vaddr} offset:{issued*64}'); issued += 1
        a(f'v_add_f32 v{acc}, v{acc}, v{acc+4}')

    ROLES = {'wq': (0, 8), 'wo': (8, 16), 'mod': (16, 22), 'ffn': (22, 29), 'fin': (29, 32)}
    def attention(self):
        a = self.a; thr = self.thr
        BUF = 40; Q = 8; D = 12; M0 = 3; M1 = 4; TMP = 36
        TREG = [28, 29, 30, 31, 32, 33, 34, 35, 7, 5]
        ng = {r: self.ngroups.get(r, 32) for r in self.ROLES}
        assert sum(ng[r] * (hi - lo) for r, (lo, hi) in self.ROLES.items()) == 1024, ng
        self.stamp(0)
        self.srd(48, 10, 0x4000000); self.srd(52, 12, 0x4000000)
        a('v_bfe_u32 v5, v0, 2, 2'); a('v_lshlrev_b32 v1, 8, v5')
        a('v_lshrrev_b32 v5, 4, v0'); a('v_lshl_add_u32 v1, v5, 6, v1')
        a('v_and_b32 v5, 3, v0'); a('v_lshl_add_u32 v1, v5, 4, v1')
        a('v_lshlrev_b32 v2, 4, v0')
        a(f'v_mov_b32 v{M0}, 0'); a(f'v_mov_b32 v{M1}, 0')
        a('v_mov_b32 v6, 0xffff'); a('v_mov_b32 v7, 0xffff0000')
        a('v_cmp_eq_u32 vcc, 0, v5'); a(f'v_cndmask_b32 v{M0}, v{M0}, v6, vcc')
        a('v_cmp_eq_u32 vcc, 1, v5'); a(f'v_cndmask_b32 v{M0}, v{M0}, v7, vcc')
        a('v_cmp_eq_u32 vcc, 2, v5'); a(f'v_cndmask_b32 v{M1}, v{M1}, v6, vcc')
        a('v_cmp_eq_u32 vcc, 3, v5'); a(f'v_cndmask_b32 v{M1}, v{M1}, v7, vcc')
        a('s_mov_b32 s56, 0xaaaaaaaa'); a('s_mov_b32 s57, 0xaaaaaaaa')
        a('s_mov_b32 s58, 0xcccccccc'); a('s_mov_b32 s59, 0xcccccccc')
        a(f'v_add_u32 v6, {L_QL}, v1')
        a(f's_mul_i32 s63, s3, {VLS}'); a(f's_add_u32 s63, s63, {L_VL}')
        a('s_mov_b32 s80, 0')
        Li = self.lab('L_noinit')
        a('s_cmp_lg_u32 s3, 0'); a(f's_cbranch_scc1 {Li}')
        for k in range(4): a(f'v_mov_b32 v{8+k}, 0')
        a('v_lshlrev_b32 v12, 2, v0'); a(f'v_add_u32 v12, {L_MX}, v12'); a('v_mov_b32 v13, 0xff800000')
        a('v_cmp_gt_u32 vcc, 4, v0'); a('v_cndmask_b32 v13, v8, v13, vcc')
        a('s_mov_b64 exec, 0x3ff'); a('ds_write_b32 v12, v13'); a('s_mov_b64 exec, -1')
        a('s_waitcnt lgkmcnt(0)')
        a.label(Li)
        variants = {}
        base = 0
        for r, (lo, hi) in self.ROLES.items():
            ext = self.ext.get(r, 0)
            key = (ng[r], self.kthr.get(r, thr), ext, int(ext > 0 and r != 'fin'), int(self.latef and r == 'ffn'))
            variants.setdefault(key, []).append((lo, hi, base))
            base += ng[r] * (hi - lo)
        keys = list(variants)
        nm = lambda key: 'L_att_' + '_'.join(str(x) for x in key)
        for key in keys:
            for (lo, hi, b0) in variants[key]:
                L = self.lab('L_nx')
                a(f's_sub_u32 s62, s37, {lo}'); a(f's_cmp_lt_u32 s62, {hi-lo}'); a(f's_cbranch_scc0 {L}')
                a(f's_mul_i32 s62, s62, {key[0]}'); a(f's_add_u32 s62, s62, {b0}')
                a(f's_branch {nm(key)}')
                a.label(L)
        a('s_branch L_abort')
        for key in keys:
            a.label(nm(key))
            self.att_body(key[0], key[1], BUF, Q, D, TREG, M0, M1, TMP, ext=key[2], chk=key[3], trig=key[4])
            if key != keys[-1]: a('s_branch L_att_done')
        a.label('L_att_done')
        ACC = 12
        self.stamp(5)
        for k in range(8): a(f'v_mul_f32 v{ACC+k}, v160, v{ACC+k}')
        a(f'ds_write_b128 v152, v[{ACC}:{ACC+3}]'); a(f'ds_write_b128 v152, v[{ACC+4}:{ACC+7}] offset:16')
        a('s_waitcnt lgkmcnt(0)')
        a('s_barrier')
        self.stamp(6)
        for i in range(4): a(f'ds_read_b64 v[{24+2*i}:{25+2*i}], v158 offset:{i*VLS}')
        a('ds_read_b32 v14, v159'); a('ds_read_b32 v15, v159 offset:16')
        a('s_waitcnt lgkmcnt(2)')
        a('v_add_f32 v24, v24, v26'); a('v_add_f32 v25, v25, v27'); a('v_add_f32 v28, v28, v30'); a('v_add_f32 v29, v29, v31')
        a('v_add_f32 v12, v24, v28'); a('v_add_f32 v13, v25, v29')
        a('v_mov_b32 v24, v12'); a('v_mov_b32 v25, v13')
        a('s_waitcnt lgkmcnt(0)')
        a('v_rcp_f32 v16, v15'); a('v_log_f32 v17, v15')
        a('v_permlane32_swap_b32 v12, v24'); a('v_permlane32_swap_b32 v13, v25')
        a('v_add_f32 v12, v12, v24'); a('v_add_f32 v13, v13, v25')
        a('s_mov_b32 exec_hi, 0')
        a('v_add_f32 v21, v17, v14'); a('v_mul_f32 v20, v12, v16'); a('v_mul_f32 v22, v13, v16')
        a('v_or_b32 v21, 1, v21'); a('v_or_b32 v20, 1, v20'); a('v_or_b32 v22, 1, v22'); a('v_mov_b32 v23, v21')
        if self.fast: a('buffer_store_dwordx4 v[20:23], v157, s[40:43], s67 offen')
        a('buffer_store_dwordx4 v[20:23], v157, s[40:43], s66 offen sc1')
        self.stamp(7)
        self.stamp_flush()
        a('s_endpgm')

    def att_body(self, n, kth, BUF, Q, D, TREG, M0, M1, TMP, ext=0, chk=0, trig=0):
        a = self.a; thr = self.thr
        nov = max(0, n - 32)
        NV = NVL - nov
        nt = (n + 3) // 4
        NL = NV + ext
        assert n - NL <= 28 and n <= 36 and NL <= n, 'V registers would run into the epilogue registers v152..'
        T = TREG[:nt]
        a('s_lshl_b32 s60, s36, 23'); a('s_lshl_b32 s61, s62, 13'); a('s_add_u32 s60, s60, s61')
        a('s_lshl_b32 s61, s3, 10'); a('s_add_u32 s60, s60, s61'); a('s_mov_b32 s61, s60')
        out = []
        def issue(tag, text):
            if not self.x_nokv: a(text)
            out.append(tag)
        def wait(tag):
            if tag in out:
                k = out.index(tag); m = len(out) - k - 1
                a(f's_waitcnt vmcnt({m})'); del out[:k+1]
        def waitn(m):
            if len(out) > m:
                a(f's_waitcnt vmcnt({m})'); del out[:len(out)-m]
        a('s_barrier')
        for i in range(n):
            if i < 32:
                issue(('K', i), f'buffer_load_dwordx4 v[{BUF+4*i}:{BUF+4*i+3}], v1, s[48:51], s60 offen nt')
            else:
                a(f's_add_u32 m0, s63, {(i-32)*1024}')
                issue(('K', i), f'buffer_load_dwordx4 v1, s[48:51], s60 offen nt lds')
            if i < n - 1: a('s_add_u32 s60, s60, 8192')
            waitn(self.slow_thr if i < self.slow else kth)
        for j in range(NV):
            a(f's_add_u32 m0, s63, {(nov+j)*1024}')
            issue(('V', j), f'buffer_load_dwordx4 v2, s[52:55], s61 offen nt lds')
            a('s_add_u32 s61, s61, 8192')
            waitn(thr if j >= NL - 2 else kth)
        if ext:
            if chk:
                Lc = self.lab('L_tf')
                a(f'v_mov_b32 v12, {L_CNT}')
                a.label(Lc)
                a('ds_read_b32 v13, v12'); a('s_waitcnt lgkmcnt(0)'); a('v_readfirstlane_b32 s62, v13')
                a('s_add_u32 s80, s80, 1'); a(f's_cmp_gt_u32 s80, {POLL_LIMIT}'); a('s_cbranch_scc1 L_abort')
                a('s_cmp_lt_u32 s62, 8'); a(f's_cbranch_scc1 {Lc}')
            a('s_lshl_b32 s65, s3, 13'); a(f's_add_u32 s65, s65, {L_TILE}')
            for e in range(ext):
                a(f's_add_u32 m0, s65, {e*1024}')
                issue(('V', NV + e), f'buffer_load_dwordx4 v2, s[52:55], s61 offen nt lds')
                a('s_add_u32 s61, s61, 8192')
                waitn(thr if NV + e >= NL - 2 else kth)
            a('v_add_u32 v11, s65, v2') if False else None
            a('s_mov_b32 s74, s65')
        self.stamp(1)
        a('s_barrier')
        self.stamp(2)
        a(f'ds_read_b128 v[{Q}:{Q+3}], v6')
        if nov:
            a('v_add_u32 v6, s63, v2')
            for k in range(nov): a(f'ds_read_b128 v[{D+4*k}:{D+4*k+3}], v6 offset:{k*1024}') if False else None
        a('s_waitcnt lgkmcnt(0)')
        nv = [NL]
        vreg = lambda j: BUF + 4 * (j - NL)
        def issueV():
            j = nv[0]
            if j >= n: return
            issue(('V', j), f'buffer_load_dwordx4 v[{vreg(j)}:{vreg(j)+3}], v2, s[52:55], s61 offen nt')
            if j < n - 1: a('s_add_u32 s61, s61, 8192')
            if trig and j == n - 1 - self.trig_ahead:
                Lt = self.lab('L_tg')
                a('s_cmp_lg_u32 s3, 0'); a(f's_cbranch_scc1 {Lt}')
                a('s_mov_b64 exec, 1'); a('ds_write_b32 v162, v163 offset:4'); a('s_mov_b64 exec, -1')
                a.label(Lt)
            nv[0] += 1
        vth = self.vthr if self.vthr is not None else thr
        boosted = [0]
        for t in range(nt):
            us = [u for u in range(4) if 4 * t + u < n]
            if t == 7 and nov:
                pass
            if t == 8:
                for u in us: a(f'ds_read_b128 v[{BUF+4*(28+u)}:{BUF+4*(28+u)+3}], v6 offset:{u*1024}')
                a('s_waitcnt lgkmcnt(0)')
            for u in us:
                i = 4 * t + u
                kr = BUF + 4 * i if i < 32 else BUF + 4 * (28 + u)
                a(f'v_mfma_f32_16x16x32_bf16 v[{D+4*u}:{D+4*u+3}], v[{kr}:{kr+3}], v[{Q}:{Q+3}], 0')
            if t == 0:
                for _ in range(min(4, vth + 1)): issueV()
            elif nv[0] - NL < vth + 1 + (1 if (t >= 4 and self.qk_extra) else 0): issueV()
            elif t in (2, 4, 6)[:self.boost]: issueV(); boosted[0] += 1
            Tt = T[t]
            for x in range(4):
                d = lambda v: D + 4 * (v ^ x) + v
                a(f'v_cndmask_b32 v{TMP+0}, v{d(0)}, v{d(1)}, s[56:57]')
                a(f'v_cndmask_b32 v{TMP+1}, v{d(2)}, v{d(3)}, s[56:57]')
                if x == 0:
                    a(f'v_cndmask_b32 v{Tt}, v{TMP+0}, v{TMP+1}, s[58:59]')
                else:
                    a(f'v_cndmask_b32 v{TMP+2+(x&1)}, v{TMP+0}, v{TMP+1}, s[58:59]')
                    qp = {1: '[1,0,3,2]', 2: '[2,3,0,1]', 3: '[3,2,1,0]'}[x]
                    a(f'v_add_f32_dpp v{Tt}, v{TMP+2+(x&1)}, v{Tt} quad_perm:{qp} {DPPF}')
            if len(us) < 4:
                m = {1: 0xeeeeeeee, 2: 0xcccccccc, 3: 0x88888888}[len(us)]
                a(f's_mov_b32 s64, {hex(m)}'); a(f's_mov_b32 s65, {hex(m)}')
                a(f'v_mov_b32 v{TMP}, 0xfe000000')
                a(f'v_cndmask_b32 v{Tt}, v{Tt}, v{TMP}, s[64:65]')
        self.stamp(3)
        def rnd(regs):
            for i in range(0, len(regs) - 1, 2): self.round_pair(regs[i], regs[i+1], TMP + (i // 2) % 2)
            if len(regs) % 2: self.round1(regs[-1], TMP)
        rnd(T)
        a(f's_mov_b32 s62, {hexf(128 ** -0.5)}')
        for r in T: a(f'v_mul_f32 v{r}, s62, v{r}')
        rnd(T)
        MX = 8; SUM = 9
        a(f'v_max_f32 v{MX}, v{T[0]}, v{T[1]}')
        rest = T[2:]
        for i in range(0, len(rest) - 1, 2): a(f'v_max3_f32 v{MX}, v{MX}, v{rest[i]}, v{rest[i+1]}')
        if len(rest) % 2: a(f'v_max_f32 v{MX}, v{MX}, v{rest[-1]}')
        self.allreduce([MX], 'v_max_f32', TMP, row=False)
        a(f's_mov_b32 s62, {hexf(LOG2E)}')
        a(f'v_mul_f32 v{MX}, s62, v{MX}')
        for r in T: a(f'v_fma_f32 v{r}, v{r}, s62, -v{MX}')
        for r in T: a(f'v_exp_f32 v{r}, v{r}')
        a(f'v_add_f32 v{SUM}, v{T[0]}, v{T[1]}')
        for r in T[2:]: a(f'v_add_f32 v{SUM}, v{SUM}, v{r}')
        for r in T: a(f'v_cvt_pk_bf16_f32 v{r}, v{r}, v{r}')
        self.allreduce([SUM], 'v_add_f32', TMP, row=False)
        a('v_lshlrev_b32 v152, 5, v0'); a('v_add_u32 v152, s63, v152')
        a('v_bfe_u32 v165, v0, 2, 2')
        a('s_lshl_b32 s62, s3, 2'); a(f's_add_u32 s62, s62, {L_ML}')
        a('v_lshlrev_b32 v153, 5, v165'); a('v_add_u32 v153, s62, v153')
        a('v_lshlrev_b32 v154, 2, v165'); a(f'v_add_u32 v154, {L_MX}, v154')
        a('v_lshrrev_b32 v165, 4, v0')
        a('v_lshlrev_b32 v155, 5, v165'); a('v_add_u32 v155, s62, v155')
        a('v_lshlrev_b32 v156, 2, v165'); a(f'v_add_u32 v156, {L_MX}, v156')
        a('v_and_b32 v166, 0x33, v0'); a('v_cmp_eq_u32 s[68:69], 0, v166')
        a(f'v_mov_b32 v162, {L_MX + 32}'); a('v_mov_b32 v163, 1')
        a('s_mov_b64 exec, s[68:69]')
        a(f'ds_write_b32 v153, v{MX}'); a(f'ds_max_f32 v154, v{MX}')
        a('s_mov_b64 exec, 1'); a('ds_add_u32 v162, v163'); a('s_mov_b64 exec, -1')
        a('v_and_b32 v166, 15, v0')
        a('v_lshrrev_b32 v157, 2, v166'); a('v_lshlrev_b32 v157, 12, v157')
        a('v_and_b32 v167, 3, v166'); a('v_lshl_add_u32 v157, v167, 5, v157'); a('v_and_b32 v164, 1, v165'); a('v_lshl_add_u32 v157, v164, 4, v157')
        a('v_and_b32 v158, 1, v166'); a('v_lshlrev_b32 v158, 4, v158'); a('v_lshl_add_u32 v158, v164, 3, v158')
        a('v_lshrrev_b32 v159, 2, v166'); a('v_lshl_add_u32 v158, v159, 6, v158')
        a('v_lshrrev_b32 v159, 1, v167'); a('v_lshl_add_u32 v158, v159, 5, v158')
        a('v_lshrrev_b32 v159, 5, v0'); a(f's_mov_b32 s62, {4*VLS}'); a('v_mul_lo_u32 v159, v159, s62'); a('v_add_u32 v158, v158, v159')
        a('s_lshr_b32 s62, s3, 1'); a('s_lshl_b32 s62, s62, 9'); a('s_and_b32 s64, s3, 1'); a('s_lshl_b32 s64, s64, 8'); a('s_add_u32 s62, s62, s64')
        a(f's_add_u32 s62, s62, {L_VL}'); a('v_add_u32 v158, s62, v158')
        a('s_lshr_b32 s62, s3, 1'); a('s_lshl_b32 s62, s62, 2'); a(f's_add_u32 s62, s62, {L_MX}'); a('v_mov_b32 v159, s62')
        a('s_lshl_b32 s66, s36, 5'); a('s_lshl_b32 s62, s3, 2'); a('s_add_u32 s66, s66, s62')
        a('s_lshl_b32 s66, s66, 5'); a('s_add_u32 s66, s66, s37'); a('s_lshl_b32 s66, s66, 7'); a(f's_add_u32 s67, s66, {WS_AF}')
        self.stamp(4)
        ACC = 12; AOP = 20; VT = [24, 36]; VA = 10
        a(f'v_add_u32 v{VA}, s63, v2')
        if ext: a('v_add_u32 v11, s74, v2')
        for j in range(NL): wait(('V', j))
        def lds_v(i, dst):
            if i < NV: a(f'ds_read_b128 v[{dst}:{dst+3}], v{VA} offset:{(nov+i)*1024}')
            else: a(f'ds_read_b128 v[{dst}:{dst+3}], v11 offset:{(i-NV)*1024}')
        lds_v(0, VT[0])
        istep = max(NL, n - 6)
        for i in range(n):
            t = i >> 2; u = i & 3
            A = AOP + 2 * (i & 1)
            if i == istep:
                Ls = self.lab('L_cm')
                a.label(Ls)
                a('ds_read_b32 v161, v162'); a('s_waitcnt lgkmcnt(0)'); a('v_readfirstlane_b32 s62, v161')
                a('s_add_u32 s80, s80, 1'); a(f's_cmp_gt_u32 s80, {POLL_LIMIT}'); a('s_cbranch_scc1 L_abort')
                a('s_cmp_lt_u32 s62, 8'); a(f's_cbranch_scc1 {Ls}')
                a('ds_read_b32 v160, v155'); a('ds_read_b32 v161, v156'); a('ds_read_b32 v164, v154'); a('s_waitcnt lgkmcnt(0)')
                a('v_sub_f32 v160, v160, v161'); a(f'v_sub_f32 v164, v{MX}, v164')
                a('v_exp_f32 v160, v160'); a('v_exp_f32 v164, v164')
                a(f'v_mul_f32 v164, v{SUM}, v164')
                a('s_mov_b64 exec, s[68:69]'); a('ds_add_f32 v154, v164 offset:16'); a('s_mov_b64 exec, -1')
            a(f'v_and_b32_dpp v{A}, v{T[t]}, v{M0} quad_perm:[{u},{u},{u},{u}] {DPPF}')
            a(f'v_and_b32_dpp v{A+1}, v{T[t]}, v{M1} quad_perm:[{u},{u},{u},{u}] {DPPF}')
            if i < NL:
                vb = VT[i & 1]
                if i + 1 < NL:
                    lds_v(i + 1, VT[(i + 1) & 1]); a('s_waitcnt lgkmcnt(1)')
                else:
                    a('s_waitcnt lgkmcnt(0)')
            else:
                wait(('V', i))
                if boosted[0] > 0: boosted[0] -= 1
                else: issueV()
                vb = vreg(i)
            c1 = f'v[{ACC}:{ACC+3}]' if i else '0'
            c2 = f'v[{ACC+4}:{ACC+7}]' if i else '0'
            a(f'v_mfma_f32_16x16x16_bf16 v[{ACC}:{ACC+3}], v[{A}:{A+1}], v[{vb}:{vb+1}], {c1}')
            a(f'v_mfma_f32_16x16x16_bf16 v[{ACC+4}:{ACC+7}], v[{A}:{A+1}], v[{vb+2}:{vb+3}], {c2}')

    def helper(self):
        a = self.a
        W1 = 40; W2 = 104; ACC = 104
        a('s_sub_u32 s38, s3, 8')
        self.stamp(0)
        a('s_mov_b32 s80, 0')
        a(f's_add_u32 s78, s34, {WS_EPOCH}'); a('s_addc_u32 s79, s35, 0')
        a('s_load_dword s83, s[78:79], 0')
        a('v_and_b32 v1, 15, v0'); a('v_lshrrev_b32 v2, 4, v0')
        Lz = self.lab('L_noinit')
        a('s_cmp_lg_u32 s38, 0'); a(f's_cbranch_scc1 {Lz}')
        a(f'v_mov_b32 v38, {L_CNT}'); a('v_mov_b32 v39, 0'); a('ds_write_b32 v38, v39')
        a.label(Lz)
        a('s_lshl_b32 s67, s38, 10'); a(f's_add_u32 s67, s67, {L_VEC}')
        a('v_lshlrev_b32 v4, 4, v2'); a('v_add_u32 v4, s67, v4')
        a('v_lshlrev_b32 v5, 4, v0'); a('v_add_u32 v5, s67, v5')
        a('s_cmp_lt_u32 s37, 8'); a('s_cbranch_scc1 L_role_wq')
        a('s_cmp_lt_u32 s37, 16'); a('s_cbranch_scc1 L_role_wo')
        a('s_cmp_lt_u32 s37, 22'); a('s_cbranch_scc1 L_role_mod')
        a('s_cmp_lt_u32 s37, 29'); a('s_cbranch_scc1 L_role_ffn')
        a('s_branch L_role_fin')

        def h0_begin():
            L = self.lab('L_h0e')
            a('s_cmp_lg_u32 s38, 0'); a(f's_cbranch_scc1 {L}')
            return L
        def barrier0():
            a('s_waitcnt lgkmcnt(0)')
            a('s_barrier')
        def get_tag():
            a('s_waitcnt lgkmcnt(0)')
            a('s_mul_i32 s81, s83, 0x9E3779B1'); a('s_add_u32 s81, s81, 0x7F4A7C15')
        def zero_stores(role):
            L = h0_begin()
            for k in range(4): a(f'v_mov_b32 v{8+k}, 0')
            a('v_lshlrev_b32 v6, 4, v0')
            def zero_inbox(add):
                a('s_lshl_b32 s60, s36, 5'); a('s_add_u32 s60, s60, s37')
                if add: a(f's_add_u32 s60, s60, {add}')
                a('s_lshl_b32 s60, s60, 12')
                for k in range(4): a(f'buffer_store_dwordx4 v[8:11], v6, s[40:43], s60 offen offset:{1024*k} sc1')
                if not self.aflate:
                    a(f's_add_u32 s60, s60, {WS_AF}')
                    for k in range(4): a(f'buffer_store_dwordx4 v[8:11], v6, s[40:43], s60 offen offset:{1024*k}')
            if not (self.latef and role == 'ffn'): zero_inbox(0)
            if self.latef and role == 'wq':
                Lz2 = self.lab('L_z2')
                a('s_cmp_ge_u32 s37, 7'); a(f's_cbranch_scc1 {Lz2}')
                zero_inbox(22)
                a.label(Lz2)
            if role == 'ffn':
                a('s_mul_i32 s60, s36, 7'); a('s_add_u32 s60, s60, s37'); a('s_sub_u32 s60, s60, 22'); a('s_lshl_b32 s60, s60, 11')
                a(f's_add_u32 s60, s60, {WS_E}')
                a('buffer_store_dwordx4 v[8:11], v6, s[40:43], s60 offen sc1')
                a('buffer_store_dwordx4 v[8:11], v6, s[40:43], s60 offen offset:1024 sc1')
            if role == 'wo':
                a('s_lshl_b32 s60, s36, 11'); a('s_sub_u32 s61, s37, 8'); a('s_lshl_b32 s61, s61, 8'); a('s_add_u32 s60, s60, s61')
                a(f's_add_u32 s60, s60, {WS_C}'); a('s_add_u32 s61, s60, 65536')
                a('v_lshlrev_b32 v6, 14, v2'); a('v_lshl_add_u32 v6, v1, 4, v6')
                a('buffer_store_dwordx4 v[8:11], v6, s[40:43], s60 offen sc1')
                a('buffer_store_dwordx4 v[8:11], v6, s[40:43], s61 offen sc1')
            a('s_mov_b64 exec, -1')
            a.label(L)
        def zsignal():
            L = h0_begin()
            a('s_waitcnt vmcnt(0)')
            a('s_lshl_b32 s60, s36, 7'); a('s_lshl_b32 s61, s37, 2'); a('s_add_u32 s60, s60, s61'); a(f's_add_u32 s60, s60, {WS_ZF}')
            a('s_mov_b64 exec, 1')
            a('v_mov_b32 v38, 0'); a('v_mov_b32 v39, s81')
            a('buffer_store_dword v39, v38, s[40:43], s60 offen sc1')
            a('s_mov_b64 exec, -1')
            a.label(L)
        def line_setup(ptr, size, rs, col_s):
            self.srd(48, ptr, size)
            a('v_lshrrev_b32 v158, 3, v0'); a(f's_mov_b32 s61, {rs}'); a('v_mul_lo_u32 v158, v158, s61')
            a('v_and_b32 v7, 7, v0'); a('v_lshl_add_u32 v158, v7, 4, v158')
            a(f's_mul_i32 s61, s38, {128*rs}'); a(f's_add_u32 s72, s{col_s}, s61')
            a('s_lshl_b32 s66, s38, 14'); a(f's_add_u32 s66, s66, {L_TILE}')
            def iss(role):
                if role in self.zfirst:
                    zero_stores(role); get_tag(); zsignal()
                if role not in self.late_k: barrier0()
                self.dma(48, 158, 72, 8 * rs, 16, 66, depth=self.depth.get(role, 64))
                if role in self.late_k: barrier0()
            return iss
        def line_finish():
            self.stamp(1)
            a('s_waitcnt vmcnt(0)')
            self.stamp(12)
            self.lds_sync(1)
            a('v_lshrrev_b32 v3, 2, v1'); a('v_lshl_add_u32 v3, v2, 3, v3'); a('v_lshlrev_b32 v3, 7, v3')
            a('v_and_b32 v7, 3, v0'); a('v_lshl_add_u32 v3, v7, 3, v3')
            a('s_lshl_b32 s61, s38, 5'); a(f's_add_u32 s61, s61, {L_TILE}'); a('v_add_u32 v3, s61, v3')
            self.tr_read(3, W1, 16, 4096, 512)
            a(f'v_mov_b32 v38, {L_CNT}'); a('v_mov_b32 v39, 1')
            a('s_mov_b64 exec, 1'); a('ds_add_u32 v38, v39'); a('s_mov_b64 exec, -1')
            self.stamp(14)
        def publish16(base_s, val, nl=0xffff):
            a(f'v_or_b32 v{val}, 1, v{val}')
            a('v_lshlrev_b32 v6, 2, v1')
            a(f's_mov_b64 exec, {nl}')
            a(f'buffer_store_dword v{val}, v6, s[40:43], s{base_s} offen sc1')
            a('s_mov_b64 exec, -1')
        def publish_tag(base_s, val):
            a(f'v_mov_b32_dpp v{val+1}, v{val} quad_perm:[1,1,3,3] {DPPF}')
            a(f'v_cvt_pk_bf16_f32 v{val}, v{val}, v{val+1}')
            a(f'v_mov_b32 v{val+1}, s81')
            a('v_lshlrev_b32 v6, 2, v1')
            a('s_mov_b64 exec, 0x5555')
            a(f'buffer_store_dwordx2 v[{val}:{val+1}], v6, s[40:43], s{base_s} offen sc1')
            a('s_mov_b64 exec, -1')
        def qgather_and_barrier1():
            L = h0_begin()
            a('s_lshl_b32 s61, s37, 7'); a('s_lshl_b32 s60, s36, 14'); a('s_add_u32 s61, s61, s60'); a(f's_add_u32 s61, s61, {WS_M + 4}')
            if self.ssleep: self.sentinel(61, 8, sleep=self.ssleep)
            if self.qsent:
                a('s_and_b32 s61, s37, 15'); a('s_lshl_b32 s61, s61, 7'); a('s_lshl_b32 s60, s36, 11'); a('s_add_u32 s61, s61, s60'); a(f's_add_u32 s61, s61, {WS_Q + 4}')
                self.sentinel(61, 8, sleep=self.qsent)
            self.stamp(2)
            a('s_lshl_b32 s60, s36, 11'); a(f's_add_u32 s60, s60, {WS_Q}')
            Lp = self.lab('L_qp')
            a('v_lshlrev_b32 v6, 5, v0'); a('v_and_b32 v7, 31, v0'); a('v_lshlrev_b32 v7, 2, v7')
            a('s_lshl_b32 s61, s36, 7'); a(f's_add_u32 s61, s61, {WS_ZF}')
            a.label(Lp)
            a('buffer_load_dwordx4 v[8:11], v6, s[40:43], s60 offen sc1')
            a('buffer_load_dwordx4 v[12:15], v6, s[40:43], s60 offen offset:16 sc1')
            a('buffer_load_dword v17, v7, s[40:43], s61 offen sc1')
            a('s_waitcnt vmcnt(0)')
            self.tag_check([9, 11, 13, 15, 17], 16, Lp, sleep=self.qsleep)
            a('v_mov_b32 v9, v10'); a('v_mov_b32 v10, v12'); a('v_mov_b32 v11, v14')
            a('v_lshlrev_b32 v6, 4, v0'); a(f'v_add_u32 v6, {L_QL}, v6')
            a('ds_write_b128 v6, v[8:11]')
            if self.aflate and self.fast:
                for k in range(4): a(f'v_mov_b32 v{12+k}, 0')
                a('v_lshlrev_b32 v7, 4, v0')
                a('s_lshl_b32 s60, s36, 5'); a('s_add_u32 s60, s60, s37'); a('s_lshl_b32 s60, s60, 12'); a(f's_add_u32 s60, s60, {WS_AF}')
                for k in range(4): a(f'buffer_store_dwordx4 v[12:15], v7, s[40:43], s60 offen offset:{1024*k}')
            a('s_waitcnt lgkmcnt(0)')
            self.stamp(3)
            a.label(L)
            a('s_barrier')
        def two_path(issue, check, fsleep=0):
            Ld = self.lab('L_tpd')
            if self.fast:
                Lf = self.lab('L_tpf'); Ls = self.lab('L_tps')
                a('s_mov_b32 s77, 0')
                a.label(Lf)
                issue(65, 'nt'); a('s_waitcnt vmcnt(0)'); check()
                if self.x_nopoll: a(f's_branch {Ld}')
                a('s_cmp_eq_u64 vcc, exec'); a(f's_cbranch_scc1 {Ld}')
                if fsleep: a(f's_sleep {fsleep}')
                a('s_add_u32 s77, s77, 1'); a(f's_cmp_lt_u32 s77, {FAST_TRIES}'); a(f's_cbranch_scc1 {Lf}')
            Ls2 = self.lab('L_tps2')
            a.label(Ls2)
            issue(64, 'sc1'); a('s_waitcnt vmcnt(0)'); check()
            if not self.x_nopoll:
                a('s_add_u32 s80, s80, 1'); a(f's_cmp_gt_u32 s80, {POLL_LIMIT}'); a('s_cbranch_scc1 L_abort')
                a('s_cmp_eq_u64 vcc, exec'); a(f's_cbranch_scc0 {Ls2}')
            a.label(Ld)
        def b_sentinel():
            if not (self.bsent and not self.x_nopoll and self.fast): return
            Lb = self.lab('L_bs'); Lb2 = self.lab('L_bs2'); Lbd = self.lab('L_bsd')
            a('v_and_b32 v28, 31, v0'); a('v_lshlrev_b32 v28, 7, v28'); a('v_add_u32 v28, 4, v28')
            a('s_lshl_b32 s76, s36, 12'); a(f's_add_u32 s76, s76, {WS_BF}'); a('s_mov_b32 s77, 0')
            a(f's_branch {Lb2}')
            a.label(Lb); a(f's_sleep {self.bsent}'); a.label(Lb2)
            a('buffer_load_dword v29, v28, s[40:43], s76 offen nt')
            a('s_waitcnt vmcnt(0)')
            a('v_cmp_eq_u32 vcc, s81, v29')
            a('s_cmp_eq_u64 vcc, exec'); a(f's_cbranch_scc1 {Lbd}')
            a('s_add_u32 s77, s77, 1'); a(f's_cmp_lt_u32 s77, {FAST_TRIES}'); a(f's_cbranch_scc1 {Lb}')
            a.label(Lbd)
        def t1_combine(own=True):
            if own: a('s_mov_b32 s78, s37')
            a('v_lshlrev_b32 v6, 7, v2'); a('v_lshl_add_u32 v6, v1, 3, v6')
            a('s_lshl_b32 s64, s36, 5'); a('s_add_u32 s64, s64, s78'); a('s_lshl_b32 s64, s64, 12'); a(f's_add_u32 s65, s64, {WS_AF}')
            a('s_lshl_b32 s62, s36, 12'); a('s_lshl_b32 s61, s78, 7'); a('s_add_u32 s62, s62, s61')
            a(f's_add_u32 s63, s62, {WS_BF}'); a(f's_add_u32 s62, s62, {WS_B}')
            def a_issue(sb, fl):
                for i in range(8): a(f'buffer_load_dwordx2 v[{8+2*i}:{9+2*i}], v6, s[40:43], s{sb} offen offset:{512*i} {fl}')
            def a_check():
                a('v_min3_u32 v24, v8, v9, v10')
                for r in range(11, 23, 2): a(f'v_min3_u32 v24, v24, v{r}, v{r+1}')
                a('v_min_u32 v24, v24, v23'); a('v_cmp_ne_u32 vcc, 0, v24')
            if self.asent and self.fast and not self.x_nopoll:
                La = self.lab('L_as'); Lad = self.lab('L_asd'); Lal = self.lab('L_asl')
                a('v_lshlrev_b32 v28, 7, v0'); a('v_add_u32 v28, 4, v28'); a('s_mov_b32 s77, 0')
                a('s_mov_b32 exec_hi, 0')
                a.label(La)
                a('buffer_load_dword v29, v28, s[40:43], s65 offen nt')
                a('s_waitcnt vmcnt(0)')
                a('v_cmp_ne_u32 vcc, 0, v29')
                a('s_add_u32 s77, s77, 1')
                a('s_bcnt1_i32_b64 s76, vcc')
                a('s_cmp_eq_u32 s76, 32'); a(f's_cbranch_scc1 {Lad}')
                a(f's_cmp_ge_u32 s77, {FAST_TRIES}'); a(f's_cbranch_scc1 {Lad}')
                a(f's_cmp_lt_u32 s76, {self.asent_thr}'); a(f's_cbranch_scc1 {Lal}')
                a('s_sleep 1'); a(f's_branch {La}')
                a.label(Lal)
                a(f's_sleep {self.asent}'); a(f's_branch {La}')
                a.label(Lad)
                a('s_mov_b64 exec, -1')
            two_path(a_issue, a_check, fsleep=self.asleep)
            self.stamp(6)
            a('v_max3_f32 v24, v9, v11, v13'); a('v_max3_f32 v24, v24, v15, v17'); a('v_max3_f32 v24, v24, v19, v21')
            a('v_max_f32 v24, v24, v23')
            self.allreduce([24], 'v_max_f32', 26, rows_only=True)
            for i in range(8): a(f'v_sub_f32 v{9+2*i}, v{9+2*i}, v24')
            for i in range(8): a(f'v_exp_f32 v{9+2*i}, v{9+2*i}')
            a('v_mul_f32 v24, v9, v8'); a('v_mov_b32 v25, v9')
            for i in range(1, 8):
                a(f'v_fmac_f32 v24, v{9+2*i}, v{8+2*i}'); a(f'v_add_f32 v25, v25, v{9+2*i}')
            self.allreduce([24, 25], 'v_add_f32', 26, rows_only=True)
            a('v_rcp_f32 v25, v25'); a('v_lshlrev_b32 v6, 3, v1'); a('v_mul_f32 v24, v24, v25'); a('v_mov_b32 v25, s81')
            a('s_mov_b64 exec, 0xffff')
            if self.fast: a('buffer_store_dwordx2 v[24:25], v6, s[40:43], s63 offen')
            a('buffer_store_dwordx2 v[24:25], v6, s[40:43], s62 offen sc1')
            a('s_mov_b64 exec, -1')
            self.stamp(7)

        a.label('L_role_wq')
        a('s_lshl_b32 s62, s36, 10'); a('s_lshl_b32 s61, s37, 7'); a('s_add_u32 s62, s62, s61')
        iss = line_setup(14, 512 * 4096 * 2, 8192, 62)
        self.srd(52, 8, 1024); a('v_lshlrev_b32 v7, 4, v0')
        a('buffer_load_dwordx4 v[12:15], v7, s[52:55], 0 offen')
        iss('wq'); line_finish(); zero_stores('wq'); get_tag()
        X = 16
        if self.h0only: Lh = h0_begin()
        self.unpack8(12, X)
        a(f'v_add_f32 v24, v{X}, v{X+1}')
        for k in range(2, 8): a(f'v_add_f32 v24, v24, v{X+k}')
        self.allreduce([24], 'v_add_f32', 26)
        a(f'v_mul_f32 v24, {hexf(1/512)}, v24')
        for k in range(8): a(f'v_sub_f32 v{28+k}, v{X+k}, v24')
        a('v_mul_f32 v25, v28, v28')
        for k in range(1, 8): a(f'v_fmac_f32 v25, v{28+k}, v{28+k}')
        self.allreduce([25], 'v_add_f32', 26)
        a(f'v_mul_f32 v25, {hexf(1/512)}, v25')
        self.round_pair(24, 25, 26)
        a(f'v_add_f32 v25, {hexf(1e-5)}, v25'); self.round1(25, 26)
        a('v_sqrt_f32 v25, v25'); self.round1(25, 26)
        a('v_rcp_f32 v27, v25')
        for k in range(8): a(f'v_sub_f32 v{X+k}, v{X+k}, v24')
        self.round_list(list(range(X, X+8)), 28)
        for k in range(8): a(f'v_mul_f32 v{28+k}, v{X+k}, v27')
        for k in range(8): a(f'v_fma_f32 v{X+k}, -v{28+k}, v25, v{X+k}')
        for k in range(8): a(f'v_fma_f32 v{X+k}, v{X+k}, v27, v{28+k}')
        self.round_list(list(range(X, X+8)), 26)
        zsignal()
        self.stamp(4)
        if self.msent:
            a('s_lshl_b32 s61, s37, 2'); a('s_add_u32 s61, s61, 3'); a('s_lshl_b32 s61, s61, 7'); a('s_lshl_b32 s60, s36, 14'); a('s_add_u32 s61, s61, s60'); a(f's_add_u32 s61, s61, {WS_M + 4}')
            self.sentinel(61, 8, sleep=self.msent)
        Lp = self.lab('L_mp')
        a('v_lshlrev_b32 v6, 5, v0'); a('s_lshl_b32 s60, s36, 14'); a(f's_add_u32 s60, s60, {WS_M}')
        a.label(Lp)
        a('buffer_load_dwordx4 v[104:107], v6, s[40:43], s60 offen sc1')
        a('buffer_load_dwordx4 v[108:111], v6, s[40:43], s60 offen offset:16 sc1')
        a('buffer_load_dwordx4 v[112:115], v6, s[40:43], s60 offen offset:2048 sc1')
        a('buffer_load_dwordx4 v[116:119], v6, s[40:43], s60 offen offset:2064 sc1')
        a('s_waitcnt vmcnt(0)')
        self.tag_check([105, 107, 109, 111, 113, 115, 117, 119], 8, Lp, sleep=self.msleep)
        self.stamp(5)
        for k in range(8):
            a(f'v_lshlrev_b32 v{24+2*k}, 16, v{104+2*k}'); a(f'v_and_b32 v{25+2*k}, 0xffff0000, v{104+2*k}')
        for k in range(8): a(f'v_add_f32 v{32+k}, 1.0, v{32+k}')
        self.round_list(list(range(32, 40)), 8)
        for k in range(8): a(f'v_mul_f32 v{X+k}, v{X+k}, v{32+k}')
        self.round_list(list(range(X, X+8)), 8)
        for k in range(8): a(f'v_add_f32 v{X+k}, v{X+k}, v{24+k}')
        self.pack8(X, 8)
        a('ds_write_b128 v5, v[8:11]'); a('s_waitcnt lgkmcnt(0)')
        if self.h0only:
            a.label(Lh)
            self.lds_sync(3, sleep=2)
            a('v_lshlrev_b32 v4, 4, v2'); a(f'v_add_u32 v4, {L_VEC}, v4')
        self.gemv(4, W1, 16, ACC)
        a('s_lshl_b32 s60, s36, 11'); a('s_lshl_b32 s61, s37, 8'); a('s_add_u32 s60, s60, s61')
        a('s_lshl_b32 s61, s38, 6'); a('s_add_u32 s60, s60, s61'); a(f's_add_u32 s60, s60, {WS_Q}')
        publish_tag(60, ACC)
        self.stamp(8)
        qgather_and_barrier1()
        a('s_branch L_tail_plain')

        a.label('L_role_wo')
        a('s_lshl_b32 s62, s36, 19'); a('s_sub_u32 s61, s37, 8'); a('s_lshl_b32 s61, s61, 7'); a('s_add_u32 s62, s62, s61')
        iss = line_setup(16, 4096 * 512 * 2, 1024, 62)
        if 'wo' in self.tilelate:
            barrier0(); zero_stores('wo'); get_tag(); zsignal()
            qgather_and_barrier1()
            self.dma(48, 158, 72, 8 * 1024, 16, 66, depth=self.depth.get('wo', 64))
            line_finish()
        else:
            iss('wo')
            if 'wo' not in self.zfirst: zero_stores('wo'); get_tag()
            line_finish()
            if 'wo' not in self.zfirst: zsignal()
            qgather_and_barrier1()
        a('s_barrier')
        L = h0_begin()
        t1_combine()
        a('v_lshlrev_b32 v6, 6, v0'); a('s_lshl_b32 s64, s36, 12'); a(f's_add_u32 s65, s64, {WS_BF}'); a(f's_add_u32 s64, s64, {WS_B}')
        def b_issue(sb, fl):
            for i in range(4): a(f'buffer_load_dwordx4 v[{8+4*i}:{11+4*i}], v6, s[40:43], s{sb} offen offset:{16*i} {fl}')
        def b_check():
            for r in range(9, 24, 2): a(f'v_xor_b32 v{r}, s81, v{r}')
            a('v_or3_b32 v24, v9, v11, v13'); a('v_or3_b32 v24, v24, v15, v17'); a('v_or3_b32 v24, v24, v19, v21'); a('v_or_b32 v24, v24, v23')
            a('v_cmp_eq_u32 vcc, 0, v24')
        two_path(b_issue, b_check)
        self.stamp(8)
        a('v_cvt_pk_bf16_f32 v16, v8, v10') if False else None
        a('v_cvt_pk_bf16_f32 v24, v8, v10'); a('v_cvt_pk_bf16_f32 v25, v12, v14'); a('v_cvt_pk_bf16_f32 v26, v16, v18'); a('v_cvt_pk_bf16_f32 v27, v20, v22')
        a('v_lshlrev_b32 v6, 4, v0'); a(f'v_add_u32 v6, {L_VEC}, v6')
        a('ds_write_b128 v6, v[24:27]'); a('s_waitcnt lgkmcnt(0)')
        a.label(L)
        a('v_lshlrev_b32 v4, 4, v2'); a(f'v_add_u32 v4, {L_VEC}, v4')
        a('s_lshl_b32 s60, s36, 11'); a('s_sub_u32 s61, s37, 8'); a('s_lshl_b32 s61, s61, 8'); a('s_add_u32 s60, s60, s61')
        a('s_lshl_b32 s61, s38, 6'); a('s_add_u32 s60, s60, s61'); a(f's_add_u32 s60, s60, {WS_C}')
        a('s_add_u32 s61, s60, 65536'); a('v_lshlrev_b32 v7, 14, v2'); a('v_lshl_add_u32 v7, v1, 2, v7')
        a('s_barrier')
        self.gemv(4, W1, 16, ACC)
        a(f'v_or_b32 v{ACC}, 1, v{ACC}')
        if self.wide:
            self.quad4(ACC, 8)
            a('s_mov_b32 exec_lo, 0x11111111'); a('s_mov_b32 exec_hi, 0x11111111')
            a('buffer_store_dwordx4 v[8:11], v7, s[40:43], s60 offen sc1')
            a('buffer_store_dwordx4 v[8:11], v7, s[40:43], s61 offen sc1')
        else:
            a(f'buffer_store_dword v{ACC}, v7, s[40:43], s60 offen sc1')
            a(f'buffer_store_dword v{ACC}, v7, s[40:43], s61 offen sc1')
        self.stamp(9)
        a('s_branch L_hend')

        a.label('L_role_mod')
        a('s_mul_i32 s62, s36, 768'); a('s_sub_u32 s61, s37, 16'); a('s_lshl_b32 s61, s61, 7'); a('s_add_u32 s62, s62, s61')
        a('s_lshr_b32 s68, s62, 1'); a('s_lshl_b32 s61, s38, 4'); a('s_add_u32 s68, s68, s61')
        iss = line_setup(28, 512 * 3072 * 2, 6144, 62)
        self.srd(52, 26, 1024); a('v_lshlrev_b32 v7, 4, v0')
        a('buffer_load_dwordx4 v[12:15], v7, s[52:55], 0 offen')
        iss('mod'); line_finish(); zero_stores('mod'); get_tag()
        X = 16
        self.unpack8(12, X)
        a(f's_mov_b32 s61, {hexf(-LOG2E)}')
        for k in range(8): a(f'v_mul_f32 v{24+k}, s61, v{X+k}')
        a(f's_mov_b32 s62, {hexf(126.0)}')
        for k in range(8): a(f'v_min_f32 v{24+k}, s62, v{24+k}')
        for k in range(8): a(f'v_exp_f32 v{24+k}, v{24+k}')
        for k in range(8): a(f'v_add_f32 v{24+k}, 1.0, v{24+k}')
        for k in range(8): a(f'v_rcp_f32 v{32+k}, v{24+k}')
        for k in range(8): a(f'v_fma_f32 v{24+k}, -v{24+k}, v{32+k}, 1.0')
        for k in range(8): a(f'v_fma_f32 v{24+k}, v{24+k}, v{32+k}, v{32+k}')
        for k in range(8): a(f'v_mul_f32 v{X+k}, v{X+k}, v{24+k}')
        self.pack8(X, 8)
        a('ds_write_b128 v5, v[8:11]'); a('s_waitcnt lgkmcnt(0)')
        self.gemv(4, W1, 16, ACC)
        a('s_lshl_b32 s60, s68, 2'); a(f's_add_u32 s60, s60, {WS_M}'); a('s_add_u32 s61, s60, 65536')
        a(f'v_mov_b32_dpp v{ACC+1}, v{ACC} quad_perm:[1,1,3,3] {DPPF}')
        a(f'v_cvt_pk_bf16_f32 v{ACC}, v{ACC}, v{ACC+1}')
        a(f'v_mov_b32 v{ACC+1}, s81')
        a('v_lshlrev_b32 v6, 14, v2'); a('v_lshl_add_u32 v6, v1, 2, v6')
        a('s_mov_b32 exec_lo, 0x55555555'); a('s_mov_b32 exec_hi, 0x55555555')
        a(f'buffer_store_dwordx2 v[{ACC}:{ACC+1}], v6, s[40:43], s60 offen sc1')
        a(f'buffer_store_dwordx2 v[{ACC}:{ACC+1}], v6, s[40:43], s61 offen sc1')
        a('s_mov_b64 exec, -1')
        self.stamp(8)
        zsignal()
        qgather_and_barrier1()
        a('s_mov_b32 s75, 3')
        a('s_cmp_eq_u32 s37, 21'); a('s_cbranch_scc1 L_fin_common')
        a('s_branch L_tail_plain')

        a.label('L_role_fin')
        if self.cpf:
            Lc = self.lab('L_nocpf'); Ll = self.lab('L_cpf')
            a('s_cmp_eq_u32 s38, 0'); a(f's_cbranch_scc1 {Lc}')
            a('s_getpc_b64 s[60:61]')
            a.label('L_pc_here')
            a(f's_sub_u32 s60, s60, L_pc_here-{KNAME}'); a('s_subb_u32 s61, s61, 0')
            a('s_sub_u32 s62, s38, 1'); a('s_lshl_b32 s62, s62, 12')
            a('v_lshlrev_b32 v6, 6, v0')
            a.label(Ll)
            a('v_add_u32 v7, s62, v6'); a(f'v_min_u32 v7, L_code_end-{KNAME}-4, v7')
            a('global_load_dword v8, v7, s[60:61]')
            a('s_add_u32 s62, s62, 12288'); a(f's_cmp_lt_u32 s62, L_code_end-{KNAME}'); a(f's_cbranch_scc1 {Ll}')
            a.label(Lc)
        if 'fin' in self.zfirst:
            zero_stores('fin'); get_tag(); zsignal(); barrier0()
        else:
            barrier0(); zero_stores('fin'); get_tag(); zsignal()
        qgather_and_barrier1()
        a('s_sub_u32 s75, s37, 29')
        a.label('L_fin_common')
        L = h0_begin()
        a('s_lshl_b32 s69, s36, 6'); a('s_lshl_b32 s61, s75, 4'); a('s_add_u32 s69, s69, s61')
        self.srd(52, 8, 1024)
        a('v_lshlrev_b32 v6, 1, v1'); a('s_lshl_b32 s60, s69, 1')
        a('buffer_load_ushort v160, v6, s[52:55], s60 offen')
        Lp = self.lab('L_gp')
        a('v_and_b32 v6, 14, v1'); a('v_lshlrev_b32 v6, 2, v6'); a('s_lshl_b32 s60, s69, 2'); a('s_lshl_b32 s61, s36, 14'); a('s_add_u32 s60, s60, s61'); a(f's_add_u32 s60, s60, {WS_M}')
        a(f's_add_u32 s61, s60, {1024*4}'); a(f's_add_u32 s60, s60, {2560*4}')
        a('v_lshrrev_b32 v7, 3, v0'); a('v_lshlrev_b32 v7, 7, v7'); a('v_and_b32 v8, 7, v0')
        a('v_min_u32 v9, 6, v8'); a('v_lshl_add_u32 v15, v9, 2, v7'); a('v_lshl_add_u32 v7, v8, 2, v7')
        a(f's_mov_b32 s62, {WS_ZF + 32}')
        a.label(Lp)
        a('buffer_load_dwordx2 v[8:9], v6, s[40:43], s61 offen sc1')
        a('buffer_load_dwordx2 v[10:11], v6, s[40:43], s60 offen sc1')
        a('buffer_load_dword v13, v7, s[40:43], s62 offen sc1')
        a('buffer_load_dword v14, v15, s[40:43], s62 offen offset:56 sc1')
        a('s_waitcnt vmcnt(0)')
        self.tag_check([9, 11, 13, 14], 12, Lp, sleep=8)
        a('v_lshlrev_b32 v160, 16, v160')
        a('v_and_b32 v12, 1, v0'); a('v_cmp_eq_u32 vcc, 1, v12')
        a('v_lshlrev_b32 v161, 16, v8'); a('v_and_b32 v8, 0xffff0000, v8'); a('v_cndmask_b32 v161, v161, v8, vcc')
        a('v_lshlrev_b32 v162, 16, v10'); a('v_and_b32 v10, 0xffff0000, v10'); a('v_cndmask_b32 v162, v162, v10, vcc')
        a.label(L)
        a('s_barrier')
        a('s_cmp_lg_u32 s38, 0'); a('s_cbranch_scc1 L_hend')
        t1_combine()
        if self.finsent: b_sentinel()
        Lp = self.lab('L_cp')
        a('v_lshlrev_b32 v6, 2, v1'); a('s_lshl_b32 s60, s69, 2'); a('s_lshl_b32 s61, s36, 14'); a('s_add_u32 s60, s60, s61'); a(f's_add_u32 s60, s60, {WS_C}')
        a(f's_add_u32 s61, s60, 4096'); a(f's_add_u32 s62, s60, 8192'); a(f's_add_u32 s63, s60, 12288')
        a.label(Lp)
        for gp in range(8): a(f'buffer_load_dword v{8+gp}, v6, s[40:43], s{60+gp//2} offen offset:{2048*(gp&1)} sc1')
        a('s_waitcnt vmcnt(0)')
        self.valid_check(range(8, 16), 16, Lp, sleep=2)
        a('v_add_f32 v8, v8, v9'); a('v_add_f32 v10, v10, v11'); a('v_add_f32 v12, v12, v13'); a('v_add_f32 v14, v14, v15')
        a('v_add_f32 v8, v8, v10'); a('v_add_f32 v12, v12, v14'); a('v_add_f32 v8, v8, v12')
        a('v_fmac_f32 v160, v161, v8')
        self.stamp(8)
        self.srd(52, 30, 1024)
        a('v_lshlrev_b32 v6, 11, v2'); a('v_lshl_add_u32 v6, v1, 2, v6')
        a('s_lshl_b32 s76, s69, 1')
        a('s_lshl_b32 s60, s69, 2'); a(f's_add_u32 s60, s60, {WS_E}')
        soffs = [60 + i if i < 10 else 72 + (i - 10) for i in range(14)]
        for i in range(1, 14): a(f's_add_u32 s{soffs[i]}, s60, {8192*i}')
        def e_issue(b):
            for i in range(14): a(f'buffer_load_dword v{b+i}, v6, s[40:43], s{soffs[i]} offen sc1')
        def e_use(b):
            def f():
                for st in ((0, 1), (2, 3), (4, 5), (6, 7), (8, 9), (10, 11), (12, 13), (0, 2), (4, 6), (8, 10), (0, 4), (8, 12)):
                    a(f'v_add_f32 v{b+st[0]}, v{b+st[0]}, v{b+st[1]}')
                a(f'v_add_f32 v148, v{b}, v{b+8}')
            return f
        if self.edelay: a(f's_sleep {self.edelay}')
        if self.pipe:
            self.poll2(e_issue, 14, list(range(8, 22)), list(range(24, 38)), 150, e_use(8), e_use(24))
        else:
            Lp = self.lab('L_ep')
            a.label(Lp)
            e_issue(8)
            a('s_waitcnt vmcnt(0)')
            self.valid_check(range(8, 22), 24, Lp, sleep=self.psleep.get('E', 0))
            e_use(8)()
        self.stamp(9)
        self.allreduce([148], 'v_add_f32', 150, rows_only=True)
        self.round1(148, 149)
        a('v_fmac_f32 v160, v162, v148')
        a('v_cvt_pk_bf16_f32 v148, v160, v160')
        a('v_lshlrev_b32 v149, 1, v1')
        a('s_mov_b64 exec, 0xffff')
        a('buffer_store_short v148, v149, s[52:55], s76 offen')
        a('s_lshl_b32 s60, s37, 3'); a('s_add_u32 s60, s60, s36'); a('s_cmp_lg_u32 s60, 232'); a('s_cbranch_scc1 L_hend')
        a('s_add_u32 s83, s83, 1'); a('v_mov_b32 v151, s83'); a('v_mov_b32 v150, 0'); a(f's_mov_b32 s60, {WS_EPOCH}')
        a('s_mov_b64 exec, 1')
        a('buffer_store_dword v151, v150, s[40:43], s60 offen')
        self.stamp(10)
        a('s_branch L_hend')

        WD = 104
        a.label('L_role_ffn')
        if self.latef:
            zero_stores('ffn'); get_tag(); zsignal(); barrier0()
            qgather_and_barrier1()
            a('s_mul_i32 s56, s36, 448'); a('s_sub_u32 s61, s37, 22'); a('s_lshl_b32 s61, s61, 6'); a('s_add_u32 s56, s56, s61')
            a('s_lshr_b32 s68, s56, 1')
            a(f's_mul_i32 s61, s38, {128*3584}'); a('s_add_u32 s56, s56, s61'); a('s_mov_b32 s57, s56')
            a('s_lshl_b32 s58, s38, 13'); a(f's_add_u32 s58, s58, {L_TILE}'); a('s_add_u32 s59, s58, 32768')
            a('v_lshrrev_b32 v158, 2, v0'); a(f's_mov_b32 s61, 3584'); a('v_mul_lo_u32 v158, v158, s61')
            a('v_and_b32 v7, 3, v0'); a('v_lshl_add_u32 v158, v7, 4, v158')
            self.srd(52, 8, 1024)
            a('v_lshlrev_b32 v7, 2, v0'); a('s_lshl_b32 s60, s38, 8')
            a('buffer_load_dword v142, v7, s[52:55], s60 offen')
            Lp = self.lab('L_gp2')
            a('v_lshlrev_b32 v6, 3, v0'); a('s_lshl_b32 s60, s38, 9'); a('s_lshl_b32 s61, s36, 14'); a('s_add_u32 s60, s60, s61'); a(f's_add_u32 s60, s60, {WS_M + 1024*4}'); a('s_add_u32 s61, s60, 4096')
            a('v_lshrrev_b32 v7, 3, v0'); a('v_lshlrev_b32 v7, 7, v7'); a('v_and_b32 v8, 7, v0'); a('v_lshl_add_u32 v7, v8, 2, v7')
            a(f's_mov_b32 s62, {WS_ZF + 32}')
            a.label(Lp)
            a('buffer_load_dwordx2 v[8:9], v6, s[40:43], s60 offen sc1')
            a('buffer_load_dwordx2 v[10:11], v6, s[40:43], s60 offen offset:2048 sc1')
            a('buffer_load_dwordx2 v[12:13], v6, s[40:43], s61 offen sc1')
            a('buffer_load_dword v14, v7, s[40:43], s62 offen sc1')
            a('s_waitcnt vmcnt(0)')
            self.tag_check([9, 11, 13, 14], 16, Lp, sleep=8)
            for k, r in enumerate((8, 10, 12, 142)):
                a(f'v_and_b32 v{137+2*k}, 0xffff0000, v{r}'); a(f'v_lshlrev_b32 v{136+2*k}, 16, v{r}')
            a('v_add_f32 v140, 1.0, v140'); a('v_add_f32 v141, 1.0, v141'); self.round_pair(140, 141, 16)
            a('v_lshlrev_b32 v144, 3, v0'); a('s_lshl_b32 s72, s38, 9'); a('s_lshl_b32 s61, s36, 14'); a('s_add_u32 s72, s72, s61'); a(f's_add_u32 s72, s72, {WS_C}')
            a('s_add_u32 s73, s72, 4096'); a('s_add_u32 s74, s72, 8192'); a('s_add_u32 s75, s72, 12288')
            a('v_lshlrev_b32 v145, 2, v0'); a('s_lshl_b32 s61, s38, 8'); a(f's_add_u32 s61, s61, {L_VEC}'); a('v_add_u32 v145, s61, v145')
            a('v_lshlrev_b32 v4, 4, v2'); a(f'v_add_u32 v4, {L_VEC}, v4')
            a(f'v_mov_b32 v146, {L_ST}'); a('s_lshl_b32 s61, s38, 3'); a('v_add_u32 v147, s61, v146')
            self.srd(48, 20, 512 * 1792 * 2); self.srd(52, 22, 512 * 1792 * 2)
            Lw = self.lab('L_tw'); Lw2 = self.lab('L_tw2')
            a(f'v_mov_b32 v38, {L_MX + 36}'); a(f's_branch {Lw2}')
            a.label(Lw); a('s_sleep 2'); a.label(Lw2)
            a('ds_read_b32 v39, v38'); a('s_waitcnt lgkmcnt(0)'); a('v_readfirstlane_b32 s82, v39')
            a('s_add_u32 s80, s80, 1'); a(f's_cmp_gt_u32 s80, {POLL_LIMIT}'); a('s_cbranch_scc1 L_abort')
            a('s_cmp_eq_u32 s82, 0'); a(f's_cbranch_scc1 {Lw}')
            self.stamp(1)
            self.dma(48, 158, 56, 16 * 3584, 8, 58, nt=self.ffn_nt)
            self.dma(52, 158, 57, 16 * 3584, 8, 59, nt=self.ffn_nt)
            a('s_barrier')
            a('s_waitcnt vmcnt(0)')
            self.stamp(12)
            self.lds_sync(1)
            a('v_lshrrev_b32 v6, 2, v1'); a('v_lshl_add_u32 v6, v2, 3, v6'); a('v_lshlrev_b32 v6, 6, v6')
            a('v_and_b32 v7, 1, v0'); a('v_lshl_add_u32 v6, v7, 3, v6')
            a('v_bfe_u32 v7, v0, 1, 1'); a('v_lshl_add_u32 v6, v7, 15, v6')
            a('s_lshl_b32 s61, s38, 4'); a(f's_add_u32 s61, s61, {L_TILE}'); a('v_add_u32 v6, s61, v6')
            self.tr_read(6, W1, 16, 2048, 256)
            self.lds_sync(2)
            self.srd(48, 24, 1792 * 512 * 2)
            a('v_lshlrev_b32 v158, 4, v0')
            a('s_lshl_b32 s61, s38, 3'); a('s_add_u32 s56, s68, s61'); a('s_lshl_b32 s56, s56, 10')
            self.dma(48, 158, 56, 1024, 8, 58)
            a('v_lshrrev_b32 v6, 2, v1'); a('v_lshl_add_u32 v6, v2, 3, v6'); a('v_lshlrev_b32 v6, 10, v6')
            a('v_and_b32 v7, 3, v0'); a('v_lshl_add_u32 v6, v7, 3, v6')
            a('s_lshl_b32 s61, s38, 8'); a(f's_add_u32 s61, s61, {L_TILE}'); a('v_add_u32 v159, s61, v6')
            a('s_waitcnt vmcnt(0)')
            self.lds_sync(3)
            self.tr_read(159, WD, 8, 32, 4096)
            self.stamp(14)
        else:
            self.srd(48, 20, 512 * 1792 * 2); self.srd(52, 22, 512 * 1792 * 2)
            a('v_lshrrev_b32 v158, 2, v0'); a(f's_mov_b32 s61, 3584'); a('v_mul_lo_u32 v158, v158, s61')
            a('v_and_b32 v7, 3, v0'); a('v_lshl_add_u32 v158, v7, 4, v158')
            a('s_mul_i32 s72, s36, 448'); a('s_sub_u32 s61, s37, 22'); a('s_lshl_b32 s61, s61, 6'); a('s_add_u32 s72, s72, s61')
            a('s_lshr_b32 s68, s72, 1')
            a(f's_mul_i32 s61, s38, {128*3584}'); a('s_add_u32 s72, s72, s61'); a('s_mov_b32 s73, s72')
            a('s_lshl_b32 s66, s38, 13'); a(f's_add_u32 s66, s66, {L_TILE}'); a('s_add_u32 s74, s66, 32768')
            if 'ffn' in self.zfirst:
                zero_stores('ffn'); get_tag(); zsignal(); barrier0()
            else:
                barrier0(); zero_stores('ffn'); get_tag(); zsignal()
            dff = self.depth.get('ffn', 64)
            def ffn_issue(depth):
                self.dma(48, 158, 72, 16 * 3584, 8, 66, nt=self.ffn_nt, depth=depth)
                self.dma(52, 158, 73, 16 * 3584, 8, 74, nt=self.ffn_nt, depth=depth, first=(depth >= 16))
            if 'ffn' in self.tilelate:
                qgather_and_barrier1()
                ffn_issue(dff)
            else:
                L1 = self.lab('L_f1'); L2 = self.lab('L_f2')
                a('s_cmp_eq_u32 s38, 0'); a(f's_cbranch_scc1 {L1}')
                ffn_issue(dff)
                a(f's_branch {L2}')
                a.label(L1)
                ffn_issue(self.depth.get('ffn0', 8))
                a.label(L2)
                qgather_and_barrier1()
            self.stamp(1)
            a('s_waitcnt vmcnt(0)')
            self.stamp(12)
            self.lds_sync(1)
            a('v_lshrrev_b32 v6, 2, v1'); a('v_lshl_add_u32 v6, v2, 3, v6'); a('v_lshlrev_b32 v6, 6, v6')
            a('v_and_b32 v7, 1, v0'); a('v_lshl_add_u32 v6, v7, 3, v6')
            a('v_bfe_u32 v7, v0, 1, 1'); a('v_lshl_add_u32 v6, v7, 15, v6')
            a('s_lshl_b32 s61, s38, 4'); a(f's_add_u32 s61, s61, {L_TILE}'); a('v_add_u32 v6, s61, v6')
            self.tr_read(6, W1, 16, 2048, 256)
            self.stamp(14)
            self.lds_sync(2)
            self.srd(48, 24, 1792 * 512 * 2)
            a('v_lshlrev_b32 v158, 4, v0')
            a('s_lshl_b32 s61, s38, 3'); a('s_add_u32 s72, s68, s61'); a('s_lshl_b32 s72, s72, 10')
            a('s_lshl_b32 s66, s38, 13'); a(f's_add_u32 s66, s66, {L_TILE}')
            self.dma(48, 158, 72, 1024, 8, 66, depth=8)
            a('s_waitcnt vmcnt(0)')
            self.lds_sync(3)
            a('v_lshrrev_b32 v6, 2, v1'); a('v_lshl_add_u32 v6, v2, 3, v6'); a('v_lshlrev_b32 v6, 10, v6')
            a('v_and_b32 v7, 3, v0'); a('v_lshl_add_u32 v6, v7, 3, v6')
            a('s_lshl_b32 s61, s38, 8'); a(f's_add_u32 s61, s61, {L_TILE}'); a('v_add_u32 v6, s61, v6')
            self.tr_read(6, WD, 8, 32, 4096)
            self.srd(52, 8, 1024)
            a('v_lshlrev_b32 v7, 2, v0'); a('s_lshl_b32 s60, s38, 8')
            a('buffer_load_dword v142, v7, s[52:55], s60 offen')
            Lp = self.lab('L_gp2')
            a('v_lshlrev_b32 v6, 3, v0'); a('s_lshl_b32 s60, s38, 9'); a('s_lshl_b32 s61, s36, 14'); a('s_add_u32 s60, s60, s61'); a(f's_add_u32 s60, s60, {WS_M + 1024*4}'); a('s_add_u32 s61, s60, 4096')
            a('v_lshrrev_b32 v7, 3, v0'); a('v_lshlrev_b32 v7, 7, v7'); a('v_and_b32 v8, 7, v0'); a('v_lshl_add_u32 v7, v8, 2, v7')
            a(f's_mov_b32 s62, {WS_ZF + 32}')
            a.label(Lp)
            a('buffer_load_dwordx2 v[8:9], v6, s[40:43], s60 offen sc1')
            a('buffer_load_dwordx2 v[10:11], v6, s[40:43], s60 offen offset:2048 sc1')
            a('buffer_load_dwordx2 v[12:13], v6, s[40:43], s61 offen sc1')
            a('buffer_load_dword v14, v7, s[40:43], s62 offen sc1')
            a('s_waitcnt vmcnt(0)')
            self.tag_check([9, 11, 13, 14], 16, Lp, sleep=8)
            for k, r in enumerate((8, 10, 12, 142)):
                a(f'v_and_b32 v{137+2*k}, 0xffff0000, v{r}'); a(f'v_lshlrev_b32 v{136+2*k}, 16, v{r}')
            a('v_add_f32 v140, 1.0, v140'); a('v_add_f32 v141, 1.0, v141'); self.round_pair(140, 141, 16)
            a('v_lshlrev_b32 v144, 3, v0'); a('s_lshl_b32 s72, s38, 9'); a('s_lshl_b32 s61, s36, 14'); a('s_add_u32 s72, s72, s61'); a(f's_add_u32 s72, s72, {WS_C}')
            a('s_add_u32 s73, s72, 4096'); a('s_add_u32 s74, s72, 8192'); a('s_add_u32 s75, s72, 12288')
            a('v_lshlrev_b32 v145, 2, v0'); a('s_lshl_b32 s61, s38, 8'); a(f's_add_u32 s61, s61, {L_VEC}'); a('v_add_u32 v145, s61, v145')
            a('v_lshlrev_b32 v4, 4, v2'); a(f'v_add_u32 v4, {L_VEC}, v4')
            a(f'v_mov_b32 v146, {L_ST}'); a('s_lshl_b32 s61, s38, 3'); a('v_add_u32 v147, s61, v146')
            a('s_barrier')

        if not self.latef:
            L = h0_begin()
            t1_combine()
            a.label(L)
        def c_issue(b):
            for gp in range(8): a(f'buffer_load_dwordx2 v[{b+2*gp}:{b+1+2*gp}], v144, s[40:43], s{72+gp//2} offen offset:{2048*(gp&1)} sc1')
        def c_use(b):
            def f():
                for (x_, y_) in ((0, 2), (4, 6), (8, 10), (12, 14), (0, 4), (8, 12)):
                    a(f'v_add_f32 v{b+x_}, v{b+x_}, v{b+y_}'); a(f'v_add_f32 v{b+x_+1}, v{b+x_+1}, v{b+y_+1}')
                a(f'v_add_f32 v148, v{b}, v{b+8}'); a(f'v_add_f32 v149, v{b+1}, v{b+9}')
            return f
        if self.pipe:
            self.poll2(c_issue, 8, list(range(8, 24)), list(range(24, 40)), 150, c_use(8), c_use(24))
        else:
            b_sentinel()
            if self.csent and not self.x_nopoll:
                Ls = self.lab('L_cs')
                a('v_and_b32 v28, 7, v0'); a('v_lshlrev_b32 v28, 11, v28'); a(f'v_add_u32 v28, {self.csent_off}, v28')
                a('s_mov_b64 exec, 0xff')
                a.label(Ls)
                a('buffer_load_dword v29, v28, s[40:43], s72 offen sc1')
                a('s_waitcnt vmcnt(0)')
                a('v_cmp_ne_u32 vcc, 0, v29')
                a('s_add_u32 s80, s80, 1'); a(f's_cmp_gt_u32 s80, {POLL_LIMIT}'); a('s_cbranch_scc1 L_abort')
                a('s_cmp_eq_u64 vcc, exec'); a(f's_cbranch_scc0 {Ls}')
                a('s_mov_b64 exec, -1')
            Lp = self.lab('L_cp2')
            a.label(Lp)
            c_issue(8)
            a('s_waitcnt vmcnt(0)')
            self.valid_check(range(8, 24), 24, Lp, sleep=self.psleep.get('C', 0))
            c_use(8)()
        self.stamp(8)
        a('v_fmac_f32 v142, v136, v148'); a('v_fmac_f32 v143, v137, v149')
        a('v_add_f32 v150, v142, v143'); a('v_mul_f32 v151, v142, v142'); a('v_fmac_f32 v151, v143, v143')
        self.allreduce([150, 151], 'v_add_f32', 152)
        a('s_mov_b64 exec, 1'); a('ds_write_b64 v147, v[150:151]'); a('s_mov_b64 exec, -1')
        a('s_waitcnt lgkmcnt(0)')
        a('s_barrier')
        a('ds_read_b128 v[152:155], v146'); a('ds_read_b128 v[156:159], v146 offset:16')
        a('s_waitcnt lgkmcnt(0)')
        a('v_add_f32 v152, v152, v154'); a('v_add_f32 v153, v153, v155'); a('v_add_f32 v156, v156, v158'); a('v_add_f32 v157, v157, v159')
        a('v_add_f32 v152, v152, v156'); a('v_add_f32 v153, v153, v157')
        a(f'v_mul_f32 v152, {hexf(1/512)}, v152'); a(f'v_mul_f32 v153, {hexf(1/512)}, v153')
        a('v_fma_f32 v153, -v152, v152, v153'); a(f'v_add_f32 v153, {hexf(1e-5)}, v153'); a('v_rsq_f32 v153, v153')
        a('v_sub_f32 v142, v142, v152'); a('v_sub_f32 v143, v143, v152')
        a('v_mul_f32 v142, v142, v153'); a('v_mul_f32 v143, v143, v153')
        a('v_fma_f32 v142, v142, v140, v138'); a('v_fma_f32 v143, v143, v141, v139')
        a('v_cvt_pk_bf16_f32 v150, v142, v143')
        a('ds_write_b32 v145, v150'); a('s_waitcnt vmcnt(0) lgkmcnt(0)')
        a('s_barrier')
        self.stamp(9)
        ACC2 = 136
        self.gemv(4, W1, 16, ACC2)
        self.round1(ACC2, ACC2 + 1)
        a(f's_mov_b32 s61, {hexf(-LOG2E)}')
        a(f'v_mul_f32 v8, s61, v{ACC2}'); a(f'v_min_f32 v8, {hexf(126.0)}, v8'); a('v_exp_f32 v8, v8'); a('v_add_f32 v8, 1.0, v8'); a('v_rcp_f32 v9, v8')
        a('v_fma_f32 v8, -v8, v9, 1.0'); a('v_fma_f32 v8, v8, v9, v9')
        a(f'v_mul_f32 v8, v{ACC2}, v8'); self.round1(8, 9)
        a(f'v_mov_b32_dpp v9, v{ACC2} row_ror:8 {DPPF}')
        a('v_mul_f32 v8, v8, v9')
        a('v_cvt_pk_bf16_f32 v8, v8, v8')
        a('v_lshlrev_b32 v6, 1, v1'); a('s_lshl_b32 s61, s38, 4'); a(f's_add_u32 s61, s61, {L_AV}'); a('v_add_u32 v6, s61, v6')
        a('s_mov_b64 exec, 0xff'); a('ds_write_b16 v6, v8'); a('s_mov_b64 exec, -1')
        a('v_lshlrev_b32 v7, 4, v2'); a(f'v_add_u32 v7, {L_AV}, v7')
        a('s_mul_i32 s60, s36, 7'); a('s_add_u32 s60, s60, s37'); a('s_sub_u32 s60, s60, 22'); a('s_lshl_b32 s60, s60, 11')
        a('s_lshl_b32 s61, s38, 9'); a('s_add_u32 s60, s60, s61'); a(f's_add_u32 s60, s60, {WS_E}')
        a('s_mov_b32 s62, 0xffff0000'); a('s_mov_b32 s63, 0xffff0000'); a('s_mov_b32 s64, 0'); a('s_mov_b32 s65, -1')
        a('s_waitcnt lgkmcnt(0)')
        a('s_barrier')
        a('ds_read_b128 v[136:139], v7'); a('s_waitcnt lgkmcnt(0)')
        for jj in range(8):
            a(f'v_mfma_f32_16x16x32_bf16 v[{8+4*jj}:{11+4*jj}], v[136:139], v[{WD+4*jj}:{WD+4*jj+3}], 0')
        self.stamp(10)
        for half in range(2):
            b = 8 + 16 * half
            a(f'v_cndmask_b32 v{140+2*half}, v{b}, v{b+4}, s[62:63]'); a(f'v_cndmask_b32 v{141+2*half}, v{b+8}, v{b+12}, s[62:63]')
            a(f'v_cndmask_b32 v{140+2*half}, v{140+2*half}, v{141+2*half}, s[64:65]')
            a(f'v_or_b32 v{140+2*half}, 1, v{140+2*half}')
        a('v_lshlrev_b32 v6, 2, v0')
        if self.wide:
            self.quad4(140, 144); self.quad4(142, 148)
            a('s_mov_b32 exec_lo, 0x11111111'); a('s_mov_b32 exec_hi, 0x11111111')
            a('buffer_store_dwordx4 v[144:147], v6, s[40:43], s60 offen sc1')
            a('buffer_store_dwordx4 v[148:151], v6, s[40:43], s60 offen offset:256 sc1')
        else:
            a('buffer_store_dword v140, v6, s[40:43], s60 offen sc1')
            a('buffer_store_dword v142, v6, s[40:43], s60 offen offset:256 sc1')
        a('s_branch L_hend')

        a.label('L_tail_plain')
        a('s_mov_b32 s78, s37')
        if self.latef:
            Lq = self.lab('L_t1b')
            a('s_cmp_eq_u32 s38, 0'); a(f's_cbranch_scc1 {Lq}')
            a('s_add_u32 s78, s37, 22')
            a.label(Lq)
            a('s_barrier')
            Lg = self.lab('L_t1go')
            a('s_cmp_eq_u32 s38, 0'); a(f's_cbranch_scc1 {Lg}')
            a('s_cmp_lg_u32 s38, 1'); a('s_cbranch_scc1 L_hend')
            a('s_cmp_ge_u32 s37, 7'); a('s_cbranch_scc1 L_hend')
            a.label(Lg)
        else:
            a('s_barrier')
            a('s_cmp_lg_u32 s38, 0'); a('s_cbranch_scc1 L_hend')
        t1_combine(own=False)
        a.label('L_hend')
        self.stamp(11)
        self.stamp_flush(helper=True)
        a('s_endpgm')

    def build(self):
        a = self.a
        hdr = open('cdna_kernels/' + KNAME.replace('_kernel', '') + '.s.ref').read().split('\n')
        head = [l for l in hdr if l.startswith(';') and '@launch' not in l and 'Override' not in l and 'grid=ceil' not in l]
        a.raw('\n'.join(head))
        a.raw(f'; @launch grid=(256,1,1) block=(768,1,1) lds={LDS_SIZE}')
        a.raw('.amdgcn_target "amdgcn-amd-amdhsa--gfx950"\n.text')
        a.raw(f'.globl {KNAME}\n.p2align 8\n.type {KNAME},@function\n{KNAME}:')
        a('s_cmp_ge_u32 s2, 256'); a('s_cbranch_scc1 L_abort')
        a('s_load_dwordx16 s[8:23], s[0:1], 0'); a('s_load_dwordx8 s[24:31], s[0:1], 64'); a('s_load_dwordx4 s[32:35], s[0:1], 96')
        a('v_lshrrev_b32 v1, 6, v0'); a('v_readfirstlane_b32 s3, v1'); a('v_and_b32 v0, 63, v0')
        if self.remap:
            a('s_lshr_b32 s36, s2, 5'); a('s_and_b32 s37, s2, 31')
        else:
            a('s_and_b32 s36, s2, 7'); a('s_lshr_b32 s37, s2, 3')
        self.stamp_init()
        a('s_waitcnt lgkmcnt(0)')
        self.srd(40, 34, WS_SIZE)
        a('s_cmp_ge_u32 s3, 8'); a('s_cbranch_scc1 L_helper')
        self.attention()
        a.label('L_helper')
        self.helper()
        a.label('L_abort')
        a('s_endpgm')
        a.label('L_code_end')
        n = a.pad()
        a.raw('.section .rodata,"a"\n.p2align 6')
        a.raw(f'.amdhsa_kernel {KNAME}\n  .amdhsa_next_free_vgpr 168\n  .amdhsa_next_free_sgpr 102\n  .amdhsa_accum_offset 168\n'
              '  .amdhsa_group_segment_fixed_size 0\n  .amdhsa_kernarg_size 112\n  .amdhsa_user_sgpr_count 2\n'
              '  .amdhsa_user_sgpr_kernarg_segment_ptr 1\n  .amdhsa_system_sgpr_workgroup_id_x 1\n'
              '  .amdhsa_float_denorm_mode_32 3\n.end_amdhsa_kernel')
        return a.text(), n

if __name__ == '__main__':
    import argparse
    p = argparse.ArgumentParser()
    p.add_argument('-o', default='cdna_kernels/' + KNAME.replace('_kernel', '') + '.s')
    p.add_argument('--thr', type=int, default=2); p.add_argument('--thr-deep', type=int, default=3)
    p.add_argument('--stamps', action='store_true'); p.add_argument('--ffn-nt', action='store_true')
    p.add_argument('--deep', default='ffn'); p.add_argument('--x-notile', action='store_true'); p.add_argument('--x-nopoll', action='store_true')
    p.add_argument('--qsleep', type=int, default=4); p.add_argument('--x-nokv', action='store_true')
    p.add_argument('--depth', default=''); p.add_argument('--kthr', default=''); p.add_argument('--late', default=''); p.add_argument('--light', default=''); p.add_argument('--slow', type=int, default=0); p.add_argument('--slow-thr', type=int, default=0); p.add_argument('--tilelate', default=''); p.add_argument('--aflate', action='store_true'); p.add_argument('--csent', action='store_true'); p.add_argument('--bsent', type=int, default=0); p.add_argument('--edelay', type=int, default=0); p.add_argument('--finsent', action='store_true'); p.add_argument('--asleep', type=int, default=0); p.add_argument('--h0only', action='store_true'); p.add_argument('--msleep', type=int, default=4); p.add_argument('--ssleep', type=int, default=8); p.add_argument('--qsent', type=int, default=0); p.add_argument('--asent', type=int, default=0); p.add_argument('--asent-thr', type=int, default=24); p.add_argument('--msent', type=int, default=0); p.add_argument('--boost', type=int, default=0); p.add_argument('--latef', action='store_true'); p.add_argument('--trig', type=int, default=2); p.add_argument('--nw', action='store_true'); p.add_argument('--nowide', action='store_true'); p.add_argument('--nopipe', action='store_true'); p.add_argument('--nocpf', action='store_true'); p.add_argument('--remap', action='store_true'); p.add_argument('--nofast', action='store_true'); p.add_argument('--ext', default=''); p.add_argument('--ng', default=''); p.add_argument('--psleep', default=''); p.add_argument('--dbgmode', action='store_true'); p.add_argument('--vthr', type=int, default=None); p.add_argument('--zfirst', default='')
    args = p.parse_args()
    kv = lambda t: {x.split('=')[0]: int(x.split('=')[1]) for x in t.split(',') if x}
    g = Gen(thr=args.thr, stamps=args.stamps, thr_deep=args.thr_deep, ffn_nt=args.ffn_nt, deep_roles=tuple(x for x in args.deep.split(',') if x),
            x_notile=args.x_notile, x_nopoll=args.x_nopoll, qsleep=args.qsleep, x_nokv=args.x_nokv, depth=kv(args.depth), kthr=kv(args.kthr), late_k=tuple(x for x in args.late.split(',') if x), vthr=args.vthr, zfirst=tuple(x for x in args.zfirst.split(',') if x), ngroups=kv(args.ng), psleep=kv(args.psleep), ext=kv(args.ext))
    g.light = (set(int(x) for x in args.light.split(',')) if args.light else None)
    g.slow = args.slow; g.slow_thr = args.slow_thr
    g.tilelate = tuple(x for x in args.tilelate.split(',') if x)
    g.aflate = args.aflate
    g.csent = args.csent
    g.bsent = args.bsent; g.edelay = args.edelay
    g.finsent = args.finsent
    g.asleep = args.asleep
    g.h0only = args.h0only; g.msleep = args.msleep
    g.ssleep = args.ssleep; g.qsent = args.qsent
    g.asent = args.asent; g.asent_thr = args.asent_thr; g.msent = args.msent
    g.boost = args.boost
    g.latef = args.latef; g.trig_ahead = args.trig
    g.nw = args.nw
    g.wide = not args.nowide
    g.pipe = not args.nopipe
    g.cpf = not args.nocpf
    g.dbgmode = args.dbgmode; g.remap = args.remap; g.fast = not args.nofast
    t, n = g.build()
    open(args.o, 'w').write(t)
    print('wrote', args.o, 'lines', t.count('\n'), 'nops inserted', n)
```

```python
import sys, struct
sys.path.insert(0, 'gen')
from asmdsl import Asm

KNAME = 'adaLN_cond__gqa_block_cached__swiglu_ffn__decode_kernel'

WS_A = 0
WS_SM = 1 << 20
WS_AF = 5 << 20
WS_B = (2 << 20) + 131072
WS_BF = (2 << 20) + 196608
WS_C = WS_SM + 262144
WS_E = WS_SM + 32768
WS_M = (2 << 20) + 262144
WS_Q = (2 << 20) + 16384
WS_ZF = (2 << 20) + 65536
WS_FA = (2 << 20) + 73728
WS_EPOCH = (3 << 20)
WS_STAMP = 4 << 20
WS_SIZE = 8 << 20
L_TILE = 0
NVL = 10
L_VL = 65536
VLS = NVL * 1024
L_ML = L_VL + 8 * VLS
L_QL = L_ML + 256
L_VEC = L_QL + 1024
L_ST = L_VEC + 4096
L_AV = L_ST + 64
L_CNT = L_AV + 64
L_MX = L_CNT + 64
LDS_SIZE = L_MX + 64
assert LDS_SIZE <= 163840

LOG2E = 1.4426950408889634
def f2u(x): return struct.unpack('<I', struct.pack('<f', x))[0]
def hexf(x): return '0x%08x' % f2u(x)
DPPF = 'row_mask:0xf bank_mask:0xf'
POLL_LIMIT = 400000
FAST_TRIES = 64

class Gen:
    def __init__(self, thr=2, stamps=False, thr_deep=3, ffn_nt=False, qk_extra=True, deep_roles=('ffn',), x_notile=False, x_nopoll=False,
                 qsleep=4, x_nokv=False, depth=None, kthr=None, late_k=(), vthr=None, zfirst=(), ngroups=None, psleep=None, ext=None):
        self.a = Asm(); self.thr = thr; self.stamps = stamps; self.thr_deep = thr_deep; self.ffn_nt = ffn_nt
        self.qk_extra = qk_extra; self.deep_roles = deep_roles; self.x_notile = x_notile; self.x_nopoll = x_nopoll
        self.ext = ext or {}; self.psleep = psleep or {}; self.ngroups = ngroups or {}; self.vthr = vthr; self.zfirst = zfirst; self.depth = depth or {}; self.kthr = kthr or {}; self.late_k = late_k; self.qsleep = qsleep; self.x_nokv = x_nokv
        self.slow = 0; self.slow_thr = 0; self.tilelate = (); self.aflate = False; self.csent = False; self.csent_off = 448; self.bsent = 0; self.edelay = 0; self.finsent = False; self.asleep = 0; self.h0only = False; self.msleep = 4; self.ssleep = 8; self.qsent = 0; self.asent = 0; self.asent_thr = 24; self.msent = 0; self.zshort = False; self.x_noslow = False; self.force_slow = False; self.mc = 8; self.cc = 8; self.boost = 0; self.latef = False; self.trig_ahead = 2; self.nw = False; self.wide = True; self.pipe = True; self.cpf = True; self.light = None; self.nlab = 0; self.dbgmode = False; self.remap = False; self.fast = True
    def lab(self, p='L'):
        self.nlab += 1
        return f'{p}_{self.nlab}'
    def srd(self, sd, sp, size):
        a = self.a
        a(f's_mov_b32 s{sd}, s{sp}'); a(f's_and_b32 s{sd+1}, s{sp+1}, 0xffff')
        a(f's_mov_b32 s{sd+2}, {size}'); a(f's_mov_b32 s{sd+3}, 0x00020000')
    def stamp(self, k):
        if not self.stamps: return
        if self.light is not None and k not in self.light: return
        a = self.a
        if self.nw:
            j = sorted(self.light).index(k)
            a(f's_memrealtime s[{84+2*j}:{85+2*j}]')
            return
        a('s_memrealtime s[70:71]'); a('s_waitcnt lgkmcnt(0)'); a(f's_mov_b32 s{84+k}, s70')
    def stamp_init(self):
        if not self.stamps: return
        for k in range(18 if self.nw else 16): self.a(f's_mov_b32 s{84+k}, 0')
    def stamp_flush(self, helper=False):
        if not self.stamps: return
        a = self.a
        if self.dbgmode:
            L = self.lab('L_nodbg')
            self.srd(44, 32, 256)
            a('s_mov_b64 exec, 1'); a('v_mov_b32 v1, 0')
            if helper:
                a('s_cmp_lg_u32 s2, 232'); a(f's_cbranch_scc1 {L}'); a('s_cmp_lg_u32 s3, 8'); a(f's_cbranch_scc1 {L}')
                lst = [(k, 8 + i) for i, k in enumerate((0, 2, 3, 6, 7, 8, 9, 11))]
            else:
                a('s_cmp_lg_u32 s2, 0'); a(f's_cbranch_scc1 {L}'); a('s_cmp_lg_u32 s3, 0'); a(f's_cbranch_scc1 {L}')
                lst = [(k, k) for k in range(8)]
            for k, slot in lst:
                a(f'v_mov_b32 v2, s{84+k}')
                a(f'buffer_store_dword v2, v1, s[44:47], 0 offen offset:{4*slot}')
            a('s_waitcnt vmcnt(0)')
            a.label(L)
            return
        a('s_mov_b64 exec, 1')
        a('s_mul_i32 s70, s2, 12'); a('s_add_u32 s70, s70, s3'); a('s_lshl_b32 s70, s70, 6')
        a(f's_add_u32 s70, s70, {WS_STAMP}')
        a('v_mov_b32 v1, 0')
        if self.nw:
            a('s_waitcnt lgkmcnt(0)')
            lst = sorted(self.light)
            for k in range(16):
                if k in lst: a(f'v_mov_b32 v2, s{84+2*lst.index(k)}')
                else: a('v_mov_b32 v2, 0')
                a(f'buffer_store_dword v2, v1, s[40:43], s70 offen offset:{4*k}')
        else:
            for k in range(16):
                a(f'v_mov_b32 v2, s{84+k}')
                a(f'buffer_store_dword v2, v1, s[40:43], s70 offen offset:{4*k}')
        a('s_waitcnt vmcnt(0)')
    def round_pair(self, x, y, t):
        a = self.a
        a(f'v_cvt_pk_bf16_f32 v{t}, v{x}, v{y}')
        a(f'v_lshlrev_b32 v{x}, 16, v{t}')
        a(f'v_and_b32 v{y}, 0xffff0000, v{t}')
    def round_list(self, regs, t):
        for i in range(0, len(regs), 2):
            self.round_pair(regs[i], regs[i+1], t + (i // 2) % 2)
    def round1(self, x, t):
        a = self.a
        a(f'v_cvt_pk_bf16_f32 v{t}, v{x}, v{x}')
        a(f'v_lshlrev_b32 v{x}, 16, v{t}')
    def allreduce(self, regs, op, t, rows_only=False, quad=True, row=True):
        a = self.a
        if not rows_only:
            steps = []
            if quad: steps += ['quad_perm:[1,0,3,2]', 'quad_perm:[2,3,0,1]']
            if row: steps += ['row_half_mirror', 'row_mirror']
            for st in steps:
                for r in regs: a(f'{op}_dpp v{r}, v{r}, v{r} {st} {DPPF}')
        for sw in ('v_permlane16_swap_b32', 'v_permlane32_swap_b32'):
            for k, r in enumerate(regs): a(f'v_mov_b32 v{t+k}, v{r}')
            for k, r in enumerate(regs): a(f'{sw} v{r}, v{t+k}')
            for k, r in enumerate(regs): a(f'{op} v{r}, v{r}, v{t+k}')
    def poll_tail(self, loop_label, sleep=0):
        a = self.a
        if self.x_nopoll: return
        a('s_add_u32 s80, s80, 1'); a(f's_cmp_gt_u32 s80, {POLL_LIMIT}'); a('s_cbranch_scc1 L_abort')
        a('s_cmp_eq_u64 vcc, exec')
        if sleep:
            L = self.lab('L_pk')
            a(f's_cbranch_scc1 {L}'); a(f's_sleep {sleep}'); a(f's_branch {loop_label}'); a.label(L)
        else:
            a(f's_cbranch_scc0 {loop_label}')
    def valid_check(self, regs, t, loop_label, sleep=0):
        a = self.a
        regs = list(regs); cur = regs[0]; i = 1
        while i < len(regs):
            if i + 1 < len(regs):
                a(f'v_min3_u32 v{t}, v{cur}, v{regs[i]}, v{regs[i+1]}'); i += 2
            else:
                a(f'v_min_u32 v{t}, v{cur}, v{regs[i]}'); i += 1
            cur = t
        a(f'v_cmp_ne_u32 vcc, 0, v{cur}')
        self.poll_tail(loop_label, sleep)
    def tag_check(self, regs, t, loop_label, sleep=0, zregs=(), keep=None):
        a = self.a
        regs = list(regs)
        for r in regs: a(f'v_xor_b32 v{r}, s81, v{r}')
        if keep is not None: a(f'v_mov_b32 v{keep[1]}, v{keep[0]}')
        for r in zregs: a(f'v_lshrrev_b32 v{r}, 4, v{r}')
        cur = regs[0]; i = 1
        while i < len(regs):
            if i + 1 < len(regs):
                a(f'v_or3_b32 v{t}, v{cur}, v{regs[i]}, v{regs[i+1]}'); i += 2
            else:
                a(f'v_or_b32 v{t}, v{cur}, v{regs[i]}'); i += 1
            cur = t
        a(f'v_cmp_eq_u32 vcc, 0, v{cur}')
        self.poll_tail(loop_label, sleep)
    def sentinel(self, soff, t, sleep=6):
        a = self.a
        if self.x_nopoll: return
        L = self.lab('L_sn'); L2 = self.lab('L_sn2')
        a(f'v_mov_b32 v{t}, 0'); a(f's_branch {L2}')
        a.label(L); a(f's_sleep {sleep}'); a.label(L2)
        a(f'buffer_load_dword v{t+1}, v{t}, s[40:43], s{soff} offen sc1')
        a('s_waitcnt vmcnt(0)')
        a(f'v_readfirstlane_b32 s82, v{t+1}')
        a('s_add_u32 s80, s80, 1'); a(f's_cmp_gt_u32 s80, {POLL_LIMIT}'); a('s_cbranch_scc1 L_abort')
        a('s_cmp_eq_u32 s82, s81'); a(f's_cbranch_scc0 {L}')
    def poll2(self, issue, nld, regsA, regsB, t, useA, useB, stagger=8):
        a = self.a
        L = self.lab('L_p2'); LA = self.lab('L_p2a'); LB = self.lab('L_p2b'); LD = self.lab('L_p2d')
        def check(regs, ok_label):
            regs = list(regs); cur = regs[0]; i = 1
            while i < len(regs):
                if i + 1 < len(regs):
                    a(f'v_min3_u32 v{t}, v{cur}, v{regs[i]}, v{regs[i+1]}'); i += 2
                else:
                    a(f'v_min_u32 v{t}, v{cur}, v{regs[i]}'); i += 1
                cur = t
            a(f'v_cmp_ne_u32 vcc, 0, v{cur}')
            if self.x_nopoll:
                a(f's_branch {ok_label}'); return
            a('s_add_u32 s80, s80, 1'); a(f's_cmp_gt_u32 s80, {POLL_LIMIT}'); a('s_cbranch_scc1 L_abort')
            a('s_cmp_eq_u64 vcc, exec'); a(f's_cbranch_scc1 {ok_label}')
        issue(regsA[0]); a(f's_sleep {stagger}'); issue(regsB[0])
        a.label(L)
        a(f's_waitcnt vmcnt({nld})'); check(regsA, LA); issue(regsA[0])
        a(f's_waitcnt vmcnt({nld})'); check(regsB, LB); issue(regsB[0])
        a(f's_branch {L}')
        a.label(LA); useA(); a(f's_branch {LD}')
        a.label(LB); useB()
        a.label(LD)
    def quad4(self, src, dst):
        for j in range(4): self.a(f'v_mov_b32_dpp v{dst+j}, v{src} quad_perm:[{j},{j},{j},{j}] {DPPF}')
    def copy_off(self, sreg, n):
        if n == 8: self.a(f's_lshl_b32 s{sreg}, s36, 14')
        elif n == 1: self.a(f's_mov_b32 s{sreg}, 0')
        else:
            self.a(f's_and_b32 s{sreg}, s36, {n-1}'); self.a(f's_lshl_b32 s{sreg}, s{sreg}, 14')
    def rows_exec(self, pat, n):
        r = min(n, 4)
        lo = pat | ((pat << 16) if r >= 2 else 0)
        hi = (pat | (pat << 16)) if r >= 4 else 0
        self.a(f's_mov_b32 exec_lo, {hex(lo)}'); self.a(f's_mov_b32 exec_hi, {hex(hi)}')
    def unpack8(self, src, dst):
        for k in range(4):
            self.a(f'v_lshlrev_b32 v{dst+2*k}, 16, v{src+k}')
            self.a(f'v_and_b32 v{dst+2*k+1}, 0xffff0000, v{src+k}')
    def pack8(self, src, dst):
        for k in range(4): self.a(f'v_cvt_pk_bf16_f32 v{dst+k}, v{src+2*k}, v{src+2*k+1}')
    def dma(self, srd, voff, soff, step, n, lds_s, nt=True, depth=64, first=True):
        a = self.a
        if self.x_notile: return
        ntf = ' nt' if nt else ''
        for i in range(n):
            if (i >= depth) or (not first): a(f's_waitcnt vmcnt({depth - 1})')
            a(f's_add_u32 m0, s{lds_s}, {i*1024}')
            a(f'buffer_load_dwordx4 v{voff}, s[{srd}:{srd+3}], s{soff} offen{ntf} lds')
            if i + 1 < n: a(f's_add_u32 s{soff}, s{soff}, {step}')
    def lds_sync(self, phase, sleep=0):
        a = self.a
        L = self.lab('L_ls')
        a(f'v_mov_b32 v38, {L_CNT}'); a('v_mov_b32 v39, 1')
        a('s_mov_b64 exec, 1'); a('ds_add_u32 v38, v39'); a('s_mov_b64 exec, -1')
        L2 = self.lab('L_ls2')
        if sleep: a(f's_branch {L2}')
        a.label(L)
        if sleep:
            a(f's_sleep {sleep}'); a.label(L2)
        a('ds_read_b32 v39, v38'); a('s_waitcnt lgkmcnt(0)'); a('v_readfirstlane_b32 s82, v39')
        a('s_add_u32 s80, s80, 1'); a(f's_cmp_gt_u32 s80, {POLL_LIMIT}'); a('s_cbranch_scc1 L_abort')
        a(f's_cmp_lt_u32 s82, {4*phase}'); a(f's_cbranch_scc1 {L}')
    def tr_read(self, vaddr, W, n, step, half):
        a = self.a
        for i in range(n):
            a(f'ds_read_b64_tr_b16 v[{W+4*i}:{W+4*i+1}], v{vaddr} offset:{i*step}')
            a(f'ds_read_b64_tr_b16 v[{W+4*i+2}:{W+4*i+3}], v{vaddr} offset:{i*step+half}')
            if (i % 5) == 4: a('s_waitcnt lgkmcnt(4)')
        a('s_waitcnt lgkmcnt(0)')
    def gemv(self, vaddr, W, n, acc, Areg=8, nsets=8):
        a = self.a
        issued = 0
        for i in range(min(nsets, n)):
            a(f'ds_read_b128 v[{Areg+4*i}:{Areg+4*i+3}], v{vaddr} offset:{i*64}'); issued += 1
        for i in range(n):
            a(f's_waitcnt lgkmcnt({issued - i - 1})')
            A = Areg + 4 * (i % nsets); c = acc + 4 * (i % 2)
            src = f'v[{c}:{c+3}]' if i >= 2 else '0'
            a(f'v_mfma_f32_16x16x32_bf16 v[{c}:{c+3}], v[{A}:{A+3}], v[{W+4*i}:{W+4*i+3}], {src}')
            if issued < n:
                a(f'ds_read_b128 v[{A}:{A+3}], v{vaddr} offset:{issued*64}'); issued += 1
        a(f'v_add_f32 v{acc}, v{acc}, v{acc+4}')

    ROLES = {'wq': (0, 8), 'wo': (8, 16), 'mod': (16, 22), 'ffn': (22, 29), 'fin': (29, 32)}
    def attention(self):
        a = self.a; thr = self.thr
        BUF = 40; Q = 8; D = 12; M0 = 3; M1 = 4; TMP = 36
        TREG = [28, 29, 30, 31, 32, 33, 34, 35, 7, 5]
        ng = {r: self.ngroups.get(r, 32) for r in self.ROLES}
        assert sum(ng[r] * (hi - lo) for r, (lo, hi) in self.ROLES.items()) == 1024, ng
        self.stamp(0)
        self.srd(48, 10, 0x4000000); self.srd(52, 12, 0x4000000)
        a('v_bfe_u32 v5, v0, 2, 2'); a('v_lshlrev_b32 v1, 8, v5')
        a('v_lshrrev_b32 v5, 4, v0'); a('v_lshl_add_u32 v1, v5, 6, v1')
        a('v_and_b32 v5, 3, v0'); a('v_lshl_add_u32 v1, v5, 4, v1')
        a('v_lshlrev_b32 v2, 4, v0')
        a(f'v_mov_b32 v{M0}, 0'); a(f'v_mov_b32 v{M1}, 0')
        a('v_mov_b32 v6, 0xffff'); a('v_mov_b32 v7, 0xffff0000')
        a('v_cmp_eq_u32 vcc, 0, v5'); a(f'v_cndmask_b32 v{M0}, v{M0}, v6, vcc')
        a('v_cmp_eq_u32 vcc, 1, v5'); a(f'v_cndmask_b32 v{M0}, v{M0}, v7, vcc')
        a('v_cmp_eq_u32 vcc, 2, v5'); a(f'v_cndmask_b32 v{M1}, v{M1}, v6, vcc')
        a('v_cmp_eq_u32 vcc, 3, v5'); a(f'v_cndmask_b32 v{M1}, v{M1}, v7, vcc')
        a('s_mov_b32 s56, 0xaaaaaaaa'); a('s_mov_b32 s57, 0xaaaaaaaa')
        a('s_mov_b32 s58, 0xcccccccc'); a('s_mov_b32 s59, 0xcccccccc')
        a(f'v_add_u32 v6, {L_QL}, v1')
        a(f's_mul_i32 s63, s3, {VLS}'); a(f's_add_u32 s63, s63, {L_VL}')
        a('s_mov_b32 s80, 0')
        a(f's_add_u32 s78, s34, {WS_EPOCH}'); a('s_addc_u32 s79, s35, 0'); a('s_load_dword s83, s[78:79], 0')
        Li = self.lab('L_noinit')
        a('s_cmp_lg_u32 s3, 0'); a(f's_cbranch_scc1 {Li}')
        for k in range(4): a(f'v_mov_b32 v{8+k}, 0')
        a('v_lshlrev_b32 v12, 2, v0'); a(f'v_add_u32 v12, {L_MX}, v12'); a('v_mov_b32 v13, 0xff800000')
        a('v_cmp_gt_u32 vcc, 4, v0'); a('v_cndmask_b32 v13, v8, v13, vcc')
        a('s_mov_b64 exec, 0x3ff'); a('ds_write_b32 v12, v13'); a('s_mov_b64 exec, -1')
        a('s_waitcnt lgkmcnt(0)')
        a.label(Li)
        variants = {}
        base = 0
        for r, (lo, hi) in self.ROLES.items():
            ext = self.ext.get(r, 0)
            key = (ng[r], self.kthr.get(r, thr), ext, int(ext > 0 and r != 'fin'), int(self.latef and r == 'ffn'))
            variants.setdefault(key, []).append((lo, hi, base))
            base += ng[r] * (hi - lo)
        keys = list(variants)
        nm = lambda key: 'L_att_' + '_'.join(str(x) for x in key)
        for key in keys:
            for (lo, hi, b0) in variants[key]:
                L = self.lab('L_nx')
                a(f's_sub_u32 s62, s37, {lo}'); a(f's_cmp_lt_u32 s62, {hi-lo}'); a(f's_cbranch_scc0 {L}')
                a(f's_mul_i32 s62, s62, {key[0]}'); a(f's_add_u32 s62, s62, {b0}')
                a(f's_branch {nm(key)}')
                a.label(L)
        a('s_branch L_abort')
        for key in keys:
            a.label(nm(key))
            self.att_body(key[0], key[1], BUF, Q, D, TREG, M0, M1, TMP, ext=key[2], chk=key[3], trig=key[4])
            if key != keys[-1]: a('s_branch L_att_done')
        a.label('L_att_done')
        ACC = 12
        self.stamp(5)
        for k in range(8): a(f'v_mul_f32 v{ACC+k}, v160, v{ACC+k}')
        a(f'ds_write_b128 v152, v[{ACC}:{ACC+3}]'); a(f'ds_write_b128 v152, v[{ACC+4}:{ACC+7}] offset:16')
        a('s_waitcnt lgkmcnt(0)')
        a('s_barrier')
        self.stamp(6)
        for i in range(4): a(f'ds_read_b64 v[{24+2*i}:{25+2*i}], v158 offset:{i*VLS}')
        a('ds_read_b32 v14, v159'); a('ds_read_b32 v15, v159 offset:16')
        a('s_waitcnt lgkmcnt(2)')
        a('v_add_f32 v24, v24, v26'); a('v_add_f32 v25, v25, v27'); a('v_add_f32 v28, v28, v30'); a('v_add_f32 v29, v29, v31')
        a('v_add_f32 v12, v24, v28'); a('v_add_f32 v13, v25, v29')
        a('v_mov_b32 v24, v12'); a('v_mov_b32 v25, v13')
        a('s_waitcnt lgkmcnt(0)')
        a('v_rcp_f32 v16, v15'); a('v_log_f32 v17, v15')
        a('v_permlane32_swap_b32 v12, v24'); a('v_permlane32_swap_b32 v13, v25')
        a('v_add_f32 v12, v12, v24'); a('v_add_f32 v13, v13, v25')
        a('s_mov_b32 exec_hi, 0')
        a('v_add_f32 v21, v17, v14'); a('v_mul_f32 v20, v12, v16'); a('v_mul_f32 v22, v13, v16')
        a('v_or_b32 v21, 1, v21'); a('v_or_b32 v20, 1, v20'); a('v_or_b32 v22, 1, v22'); a('v_mov_b32 v23, v21')
        Le = self.lab('L_eslow'); Le2 = self.lab('L_edone')
        a('s_cmp_eq_u32 s75, 0'); a(f's_cbranch_scc1 {Le}')
        a('buffer_store_dwordx4 v[20:23], v157, s[40:43], s67 offen')
        a(f's_branch {Le2}')
        a.label(Le)
        a('buffer_store_dwordx4 v[20:23], v157, s[40:43], s66 offen sc1')
        a('s_mul_i32 s81, s83, 0x9E3779B1'); a('s_add_u32 s81, s81, 0x7F4A7C15')
        a('s_lshl_b32 s62, s36, 3'); a('s_add_u32 s62, s62, s3'); a('s_lshl_b32 s62, s62, 7'); a('s_lshl_b32 s64, s37, 2'); a('s_add_u32 s62, s62, s64')
        a(f's_add_u32 s62, s62, {WS_FA}')
        a('s_waitcnt vmcnt(0)')
        a('s_mov_b64 exec, 1'); a('v_mov_b32 v24, 0'); a('v_mov_b32 v25, s81')
        a('buffer_store_dword v25, v24, s[40:43], s62 offen sc1')
        a.label(Le2)
        self.stamp(7)
        self.stamp_flush()
        a('s_endpgm')

    def att_body(self, n, kth, BUF, Q, D, TREG, M0, M1, TMP, ext=0, chk=0, trig=0):
        a = self.a; thr = self.thr
        nov = max(0, n - 32)
        NV = NVL - nov
        nt = (n + 3) // 4
        NL = NV + ext
        assert n - NL <= 28 and n <= 36 and NL <= n, 'V registers would run into the epilogue registers v152..'
        T = TREG[:nt]
        a('s_lshl_b32 s60, s36, 23'); a('s_lshl_b32 s61, s62, 13'); a('s_add_u32 s60, s60, s61')
        a('s_lshl_b32 s61, s3, 10'); a('s_add_u32 s60, s60, s61'); a('s_mov_b32 s61, s60')
        out = []
        def issue(tag, text):
            if not self.x_nokv: a(text)
            out.append(tag)
        def wait(tag):
            if tag in out:
                k = out.index(tag); m = len(out) - k - 1
                a(f's_waitcnt vmcnt({m})'); del out[:k+1]
        def waitn(m):
            if len(out) > m:
                a(f's_waitcnt vmcnt({m})'); del out[:len(out)-m]
        a('s_barrier')
        for i in range(n):
            if i < 32:
                issue(('K', i), f'buffer_load_dwordx4 v[{BUF+4*i}:{BUF+4*i+3}], v1, s[48:51], s60 offen nt')
            else:
                a(f's_add_u32 m0, s63, {(i-32)*1024}')
                issue(('K', i), f'buffer_load_dwordx4 v1, s[48:51], s60 offen nt lds')
            if i < n - 1: a('s_add_u32 s60, s60, 8192')
            waitn(self.slow_thr if i < self.slow else kth)
        for j in range(NV):
            a(f's_add_u32 m0, s63, {(nov+j)*1024}')
            issue(('V', j), f'buffer_load_dwordx4 v2, s[52:55], s61 offen nt lds')
            a('s_add_u32 s61, s61, 8192')
            waitn(thr if j >= NL - 2 else kth)
        if ext:
            if chk:
                Lc = self.lab('L_tf')
                a(f'v_mov_b32 v12, {L_CNT}')
                a.label(Lc)
                a('ds_read_b32 v13, v12'); a('s_waitcnt lgkmcnt(0)'); a('v_readfirstlane_b32 s62, v13')
                a('s_add_u32 s80, s80, 1'); a(f's_cmp_gt_u32 s80, {POLL_LIMIT}'); a('s_cbranch_scc1 L_abort')
                a('s_cmp_lt_u32 s62, 8'); a(f's_cbranch_scc1 {Lc}')
            a('s_lshl_b32 s65, s3, 13'); a(f's_add_u32 s65, s65, {L_TILE}')
            for e in range(ext):
                a(f's_add_u32 m0, s65, {e*1024}')
                issue(('V', NV + e), f'buffer_load_dwordx4 v2, s[52:55], s61 offen nt lds')
                a('s_add_u32 s61, s61, 8192')
                waitn(thr if NV + e >= NL - 2 else kth)
            a('v_add_u32 v11, s65, v2') if False else None
            a('s_mov_b32 s74, s65')
        self.stamp(1)
        a('s_barrier')
        self.stamp(2)
        a(f'ds_read_b128 v[{Q}:{Q+3}], v6')
        a(f'v_mov_b32 v12, {L_MX + 40}'); a('ds_read_b32 v13, v12')
        if nov:
            a('v_add_u32 v6, s63, v2')
            for k in range(nov): a(f'ds_read_b128 v[{D+4*k}:{D+4*k+3}], v6 offset:{k*1024}') if False else None
        a('s_waitcnt lgkmcnt(0)')
        a('v_readfirstlane_b32 s75, v13')
        nv = [NL]
        vreg = lambda j: BUF + 4 * (j - NL)
        def issueV():
            j = nv[0]
            if j >= n: return
            issue(('V', j), f'buffer_load_dwordx4 v[{vreg(j)}:{vreg(j)+3}], v2, s[52:55], s61 offen nt')
            if j < n - 1: a('s_add_u32 s61, s61, 8192')
            if trig and j == n - 1 - self.trig_ahead:
                Lt = self.lab('L_tg')
                a('s_cmp_lg_u32 s3, 0'); a(f's_cbranch_scc1 {Lt}')
                a('s_mov_b64 exec, 1'); a('ds_write_b32 v162, v163 offset:4'); a('s_mov_b64 exec, -1')
                a.label(Lt)
            nv[0] += 1
        vth = self.vthr if self.vthr is not None else thr
        boosted = [0]
        for t in range(nt):
            us = [u for u in range(4) if 4 * t + u < n]
            if t == 7 and nov:
                pass
            if t == 8:
                for u in us: a(f'ds_read_b128 v[{BUF+4*(28+u)}:{BUF+4*(28+u)+3}], v6 offset:{u*1024}')
                a('s_waitcnt lgkmcnt(0)')
            for u in us:
                i = 4 * t + u
                kr = BUF + 4 * i if i < 32 else BUF + 4 * (28 + u)
                a(f'v_mfma_f32_16x16x32_bf16 v[{D+4*u}:{D+4*u+3}], v[{kr}:{kr+3}], v[{Q}:{Q+3}], 0')
            if t == 0:
                for _ in range(min(4, vth + 1)): issueV()
            elif nv[0] - NL < vth + 1 + (1 if (t >= 4 and self.qk_extra) else 0): issueV()
            elif t in (2, 4, 6)[:self.boost]: issueV(); boosted[0] += 1
            Tt = T[t]
            for x in range(4):
                d = lambda v: D + 4 * (v ^ x) + v
                a(f'v_cndmask_b32 v{TMP+0}, v{d(0)}, v{d(1)}, s[56:57]')
                a(f'v_cndmask_b32 v{TMP+1}, v{d(2)}, v{d(3)}, s[56:57]')
                if x == 0:
                    a(f'v_cndmask_b32 v{Tt}, v{TMP+0}, v{TMP+1}, s[58:59]')
                else:
                    a(f'v_cndmask_b32 v{TMP+2+(x&1)}, v{TMP+0}, v{TMP+1}, s[58:59]')
                    qp = {1: '[1,0,3,2]', 2: '[2,3,0,1]', 3: '[3,2,1,0]'}[x]
                    a(f'v_add_f32_dpp v{Tt}, v{TMP+2+(x&1)}, v{Tt} quad_perm:{qp} {DPPF}')
            if len(us) < 4:
                m = {1: 0xeeeeeeee, 2: 0xcccccccc, 3: 0x88888888}[len(us)]
                a(f's_mov_b32 s64, {hex(m)}'); a(f's_mov_b32 s65, {hex(m)}')
                a(f'v_mov_b32 v{TMP}, 0xfe000000')
                a(f'v_cndmask_b32 v{Tt}, v{Tt}, v{TMP}, s[64:65]')
        self.stamp(3)
        def rnd(regs):
            for i in range(0, len(regs) - 1, 2): self.round_pair(regs[i], regs[i+1], TMP + (i // 2) % 2)
            if len(regs) % 2: self.round1(regs[-1], TMP)
        rnd(T)
        a(f's_mov_b32 s62, {hexf(128 ** -0.5)}')
        for r in T: a(f'v_mul_f32 v{r}, s62, v{r}')
        rnd(T)
        MX = 8; SUM = 9
        a(f'v_max_f32 v{MX}, v{T[0]}, v{T[1]}')
        rest = T[2:]
        for i in range(0, len(rest) - 1, 2): a(f'v_max3_f32 v{MX}, v{MX}, v{rest[i]}, v{rest[i+1]}')
        if len(rest) % 2: a(f'v_max_f32 v{MX}, v{MX}, v{rest[-1]}')
        self.allreduce([MX], 'v_max_f32', TMP, row=False)
        a(f's_mov_b32 s62, {hexf(LOG2E)}')
        a(f'v_mul_f32 v{MX}, s62, v{MX}')
        for r in T: a(f'v_fma_f32 v{r}, v{r}, s62, -v{MX}')
        for r in T: a(f'v_exp_f32 v{r}, v{r}')
        a(f'v_add_f32 v{SUM}, v{T[0]}, v{T[1]}')
        for r in T[2:]: a(f'v_add_f32 v{SUM}, v{SUM}, v{r}')
        for r in T: a(f'v_cvt_pk_bf16_f32 v{r}, v{r}, v{r}')
        self.allreduce([SUM], 'v_add_f32', TMP, row=False)
        a('v_lshlrev_b32 v152, 5, v0'); a('v_add_u32 v152, s63, v152')
        a('v_bfe_u32 v165, v0, 2, 2')
        a('s_lshl_b32 s62, s3, 2'); a(f's_add_u32 s62, s62, {L_ML}')
        a('v_lshlrev_b32 v153, 5, v165'); a('v_add_u32 v153, s62, v153')
        a('v_lshlrev_b32 v154, 2, v165'); a(f'v_add_u32 v154, {L_MX}, v154')
        a('v_lshrrev_b32 v165, 4, v0')
        a('v_lshlrev_b32 v155, 5, v165'); a('v_add_u32 v155, s62, v155')
        a('v_lshlrev_b32 v156, 2, v165'); a(f'v_add_u32 v156, {L_MX}, v156')
        a('v_and_b32 v166, 0x33, v0'); a('v_cmp_eq_u32 s[68:69], 0, v166')
        a(f'v_mov_b32 v162, {L_MX + 32}'); a('v_mov_b32 v163, 1')
        a('s_mov_b64 exec, s[68:69]')
        a(f'ds_write_b32 v153, v{MX}'); a(f'ds_max_f32 v154, v{MX}')
        a('s_mov_b64 exec, 1'); a('ds_add_u32 v162, v163'); a('s_mov_b64 exec, -1')
        a('v_and_b32 v166, 15, v0')
        a('v_lshrrev_b32 v157, 2, v166'); a('v_lshlrev_b32 v157, 12, v157')
        a('v_and_b32 v167, 3, v166'); a('v_lshl_add_u32 v157, v167, 5, v157'); a('v_and_b32 v164, 1, v165'); a('v_lshl_add_u32 v157, v164, 4, v157')
        a('v_and_b32 v158, 1, v166'); a('v_lshlrev_b32 v158, 4, v158'); a('v_lshl_add_u32 v158, v164, 3, v158')
        a('v_lshrrev_b32 v159, 2, v166'); a('v_lshl_add_u32 v158, v159, 6, v158')
        a('v_lshrrev_b32 v159, 1, v167'); a('v_lshl_add_u32 v158, v159, 5, v158')
        a('v_lshrrev_b32 v159, 5, v0'); a(f's_mov_b32 s62, {4*VLS}'); a('v_mul_lo_u32 v159, v159, s62'); a('v_add_u32 v158, v158, v159')
        a('s_lshr_b32 s62, s3, 1'); a('s_lshl_b32 s62, s62, 9'); a('s_and_b32 s64, s3, 1'); a('s_lshl_b32 s64, s64, 8'); a('s_add_u32 s62, s62, s64')
        a(f's_add_u32 s62, s62, {L_VL}'); a('v_add_u32 v158, s62, v158')
        a('s_lshr_b32 s62, s3, 1'); a('s_lshl_b32 s62, s62, 2'); a(f's_add_u32 s62, s62, {L_MX}'); a('v_mov_b32 v159, s62')
        a('s_lshl_b32 s66, s36, 5'); a('s_lshl_b32 s62, s3, 2'); a('s_add_u32 s66, s66, s62')
        a('s_lshl_b32 s66, s66, 5'); a('s_add_u32 s66, s66, s37'); a('s_lshl_b32 s66, s66, 7'); a(f's_add_u32 s67, s66, {WS_AF}')
        self.stamp(4)
        ACC = 12; AOP = 20; VT = [24, 36]; VA = 10
        a(f'v_add_u32 v{VA}, s63, v2')
        if ext: a('v_add_u32 v11, s74, v2')
        for j in range(NL): wait(('V', j))
        def lds_v(i, dst):
            if i < NV: a(f'ds_read_b128 v[{dst}:{dst+3}], v{VA} offset:{(nov+i)*1024}')
            else: a(f'ds_read_b128 v[{dst}:{dst+3}], v11 offset:{(i-NV)*1024}')
        lds_v(0, VT[0])
        istep = max(NL, n - 6)
        for i in range(n):
            t = i >> 2; u = i & 3
            A = AOP + 2 * (i & 1)
            if i == istep:
                Ls = self.lab('L_cm')
                a.label(Ls)
                a('ds_read_b32 v161, v162'); a('s_waitcnt lgkmcnt(0)'); a('v_readfirstlane_b32 s62, v161')
                a('s_add_u32 s80, s80, 1'); a(f's_cmp_gt_u32 s80, {POLL_LIMIT}'); a('s_cbranch_scc1 L_abort')
                a('s_cmp_lt_u32 s62, 8'); a(f's_cbranch_scc1 {Ls}')
                a('ds_read_b32 v160, v155'); a('ds_read_b32 v161, v156'); a('ds_read_b32 v164, v154'); a('s_waitcnt lgkmcnt(0)')
                a('v_sub_f32 v160, v160, v161'); a(f'v_sub_f32 v164, v{MX}, v164')
                a('v_exp_f32 v160, v160'); a('v_exp_f32 v164, v164')
                a(f'v_mul_f32 v164, v{SUM}, v164')
                a('s_mov_b64 exec, s[68:69]'); a('ds_add_f32 v154, v164 offset:16'); a('s_mov_b64 exec, -1')
            a(f'v_and_b32_dpp v{A}, v{T[t]}, v{M0} quad_perm:[{u},{u},{u},{u}] {DPPF}')
            a(f'v_and_b32_dpp v{A+1}, v{T[t]}, v{M1} quad_perm:[{u},{u},{u},{u}] {DPPF}')
            if i < NL:
                vb = VT[i & 1]
                if i + 1 < NL:
                    lds_v(i + 1, VT[(i + 1) & 1]); a('s_waitcnt lgkmcnt(1)')
                else:
                    a('s_waitcnt lgkmcnt(0)')
            else:
                wait(('V', i))
                if boosted[0] > 0: boosted[0] -= 1
                else: issueV()
                vb = vreg(i)
            c1 = f'v[{ACC}:{ACC+3}]' if i else '0'
            c2 = f'v[{ACC+4}:{ACC+7}]' if i else '0'
            a(f'v_mfma_f32_16x16x16_bf16 v[{ACC}:{ACC+3}], v[{A}:{A+1}], v[{vb}:{vb+1}], {c1}')
            a(f'v_mfma_f32_16x16x16_bf16 v[{ACC+4}:{ACC+7}], v[{A}:{A+1}], v[{vb+2}:{vb+3}], {c2}')

    def helper(self):
        a = self.a
        W1 = 40; W2 = 104; ACC = 104
        a('s_sub_u32 s38, s3, 8')
        self.stamp(0)
        a('s_mov_b32 s80, 0')
        a(f's_add_u32 s78, s34, {WS_EPOCH}'); a('s_addc_u32 s79, s35, 0')
        a('s_load_dword s83, s[78:79], 0')
        a('s_getreg_b32 s57, hwreg(HW_REG_XCC_ID)'); a('s_and_b32 s57, s57, 15')
        a('v_and_b32 v1, 15, v0'); a('v_lshrrev_b32 v2, 4, v0')
        Lz = self.lab('L_noinit')
        a('s_cmp_lg_u32 s38, 0'); a(f's_cbranch_scc1 {Lz}')
        a(f'v_mov_b32 v38, {L_CNT}'); a('v_mov_b32 v39, 0'); a('ds_write_b32 v38, v39')
        a.label(Lz)
        a('s_lshl_b32 s67, s38, 10'); a(f's_add_u32 s67, s67, {L_VEC}')
        a('v_lshlrev_b32 v4, 4, v2'); a('v_add_u32 v4, s67, v4')
        a('v_lshlrev_b32 v5, 4, v0'); a('v_add_u32 v5, s67, v5')
        a('s_cmp_lt_u32 s37, 8'); a('s_cbranch_scc1 L_role_wq')
        a('s_cmp_lt_u32 s37, 16'); a('s_cbranch_scc1 L_role_wo')
        a('s_cmp_lt_u32 s37, 22'); a('s_cbranch_scc1 L_role_mod')
        a('s_cmp_lt_u32 s37, 29'); a('s_cbranch_scc1 L_role_ffn')
        a('s_branch L_role_fin')

        def h0_begin():
            L = self.lab('L_h0e')
            a('s_cmp_lg_u32 s38, 0'); a(f's_cbranch_scc1 {L}')
            return L
        def barrier0():
            a('s_waitcnt lgkmcnt(0)')
            a('s_barrier')
        def get_tag():
            a('s_waitcnt lgkmcnt(0)')
            a('s_mul_i32 s81, s83, 0x9E3779B1'); a('s_add_u32 s81, s81, 0x7F4A7C15')
        def zero_stores(role):
            L = h0_begin()
            for k in range(4): a(f'v_mov_b32 v{8+k}, 0')
            a('v_lshlrev_b32 v6, 4, v0')
            def zero_inbox(add):
                a('s_lshl_b32 s60, s36, 5'); a('s_add_u32 s60, s60, s37')
                if add: a(f's_add_u32 s60, s60, {add}')
                a('s_lshl_b32 s60, s60, 12')
                a(f's_add_u32 s60, s60, {WS_AF}')
                for k in range(4): a(f'buffer_store_dwordx4 v[8:11], v6, s[40:43], s60 offen offset:{1024*k}')
            if not (self.latef and role == 'ffn'): zero_inbox(0)
            if self.latef and role == 'wq':
                Lz2 = self.lab('L_z2')
                a('s_cmp_ge_u32 s37, 7'); a(f's_cbranch_scc1 {Lz2}')
                zero_inbox(22)
                a.label(Lz2)
            if role == 'ffn':
                a('s_mul_i32 s60, s36, 7'); a('s_add_u32 s60, s60, s37'); a('s_sub_u32 s60, s60, 22'); a('s_lshl_b32 s60, s60, 11')
                a(f's_add_u32 s60, s60, {WS_E}')
                a('buffer_store_dwordx4 v[8:11], v6, s[40:43], s60 offen sc1')
                a('buffer_store_dwordx4 v[8:11], v6, s[40:43], s60 offen offset:1024 sc1')
            if role == 'wo':
                a('s_lshl_b32 s60, s36, 11'); a('s_sub_u32 s61, s37, 8'); a('s_lshl_b32 s61, s61, 8'); a('s_add_u32 s60, s60, s61')
                a(f's_add_u32 s60, s60, {WS_C}'); a('s_add_u32 s61, s60, 65536')
                a('v_lshlrev_b32 v6, 14, v2'); a('v_lshl_add_u32 v6, v1, 4, v6')
                self.rows_exec(0xffff, self.cc)
                a('buffer_store_dwordx4 v[8:11], v6, s[40:43], s60 offen sc1')
                if self.cc == 8: a('buffer_store_dwordx4 v[8:11], v6, s[40:43], s61 offen sc1')
            a('s_mov_b64 exec, -1')
            a.label(L)
        def zsignal():
            L = h0_begin()
            a('s_waitcnt vmcnt(0)')
            a('s_lshl_b32 s60, s36, 7'); a('s_lshl_b32 s61, s37, 2'); a('s_add_u32 s60, s60, s61'); a(f's_add_u32 s60, s60, {WS_ZF}')
            a('s_mov_b64 exec, 1')
            a('s_xor_b32 s61, s81, s57')
            a('v_mov_b32 v38, 0'); a('v_mov_b32 v39, s61')
            a('buffer_store_dword v39, v38, s[40:43], s60 offen sc1')
            a('s_mov_b64 exec, -1')
            a.label(L)
        def line_setup(ptr, size, rs, col_s):
            self.srd(48, ptr, size)
            a('v_lshrrev_b32 v158, 3, v0'); a(f's_mov_b32 s61, {rs}'); a('v_mul_lo_u32 v158, v158, s61')
            a('v_and_b32 v7, 7, v0'); a('v_lshl_add_u32 v158, v7, 4, v158')
            a(f's_mul_i32 s61, s38, {128*rs}'); a(f's_add_u32 s72, s{col_s}, s61')
            a('s_lshl_b32 s66, s38, 14'); a(f's_add_u32 s66, s66, {L_TILE}')
            def iss(role):
                if role in self.zfirst:
                    zero_stores(role); get_tag()
                    if not self.zshort: zsignal()
                if role not in self.late_k: barrier0()
                if role in self.zfirst and self.zshort: zsignal()
                self.dma(48, 158, 72, 8 * rs, 16, 66, depth=self.depth.get(role, 64))
                if role in self.late_k: barrier0()
            return iss
        def line_finish():
            self.stamp(1)
            a('s_waitcnt vmcnt(0)')
            self.stamp(12)
            self.lds_sync(1)
            a('v_lshrrev_b32 v3, 2, v1'); a('v_lshl_add_u32 v3, v2, 3, v3'); a('v_lshlrev_b32 v3, 7, v3')
            a('v_and_b32 v7, 3, v0'); a('v_lshl_add_u32 v3, v7, 3, v3')
            a('s_lshl_b32 s61, s38, 5'); a(f's_add_u32 s61, s61, {L_TILE}'); a('v_add_u32 v3, s61, v3')
            self.tr_read(3, W1, 16, 4096, 512)
            a(f'v_mov_b32 v38, {L_CNT}'); a('v_mov_b32 v39, 1')
            a('s_mov_b64 exec, 1'); a('ds_add_u32 v38, v39'); a('s_mov_b64 exec, -1')
            self.stamp(14)
        def publish16(base_s, val, nl=0xffff):
            a(f'v_or_b32 v{val}, 1, v{val}')
            a('v_lshlrev_b32 v6, 2, v1')
            a(f's_mov_b64 exec, {nl}')
            a(f'buffer_store_dword v{val}, v6, s[40:43], s{base_s} offen sc1')
            a('s_mov_b64 exec, -1')
        def publish_tag(base_s, val):
            a(f'v_mov_b32_dpp v{val+1}, v{val} quad_perm:[1,1,3,3] {DPPF}')
            a(f'v_cvt_pk_bf16_f32 v{val}, v{val}, v{val+1}')
            a(f'v_mov_b32 v{val+1}, s81')
            a('v_lshlrev_b32 v6, 2, v1')
            a('s_mov_b64 exec, 0x5555')
            a(f'buffer_store_dwordx2 v[{val}:{val+1}], v6, s[40:43], s{base_s} offen sc1')
            a('s_mov_b64 exec, -1')
        def qgather_and_barrier1():
            L = h0_begin()
            a('s_lshl_b32 s61, s37, 7'); self.copy_off(60, self.mc); a('s_add_u32 s61, s61, s60'); a(f's_add_u32 s61, s61, {WS_M + 4}')
            if self.ssleep: self.sentinel(61, 8, sleep=self.ssleep)
            if self.qsent:
                a('s_and_b32 s61, s37, 15'); a('s_lshl_b32 s61, s61, 7'); a('s_lshl_b32 s60, s36, 11'); a('s_add_u32 s61, s61, s60'); a(f's_add_u32 s61, s61, {WS_Q + 4}')
                self.sentinel(61, 8, sleep=self.qsent)
            self.stamp(2)
            a('s_lshl_b32 s60, s36, 11'); a(f's_add_u32 s60, s60, {WS_Q}')
            Lp = self.lab('L_qp')
            a('v_lshlrev_b32 v6, 5, v0'); a('v_and_b32 v7, 31, v0'); a('v_lshlrev_b32 v7, 2, v7')
            a('s_lshl_b32 s61, s36, 7'); a(f's_add_u32 s61, s61, {WS_ZF}')
            a.label(Lp)
            a('buffer_load_dwordx4 v[8:11], v6, s[40:43], s60 offen sc1')
            a('buffer_load_dwordx4 v[12:15], v6, s[40:43], s60 offen offset:16 sc1')
            a('buffer_load_dword v17, v7, s[40:43], s61 offen sc1')
            a('s_waitcnt vmcnt(0)')
            self.tag_check([9, 11, 13, 15, 17], 16, Lp, sleep=self.qsleep, zregs=(17,), keep=(17, 18))
            a('v_cmp_eq_u32 vcc, s57, v18'); a('s_cmp_eq_u64 vcc, exec'); a('s_cselect_b32 s58, 1, 0')
            if self.force_slow: a('s_mov_b32 s58, 0')
            a('v_mov_b32 v9, v10'); a('v_mov_b32 v10, v12'); a('v_mov_b32 v11, v14')
            a('v_lshlrev_b32 v6, 4, v0'); a(f'v_add_u32 v6, {L_QL}, v6')
            a('ds_write_b128 v6, v[8:11]')
            a(f'v_mov_b32 v12, {L_MX + 40}'); a('v_mov_b32 v13, s58'); a('s_mov_b64 exec, 1'); a('ds_write_b32 v12, v13'); a('s_mov_b64 exec, -1')
            a('s_waitcnt lgkmcnt(0)')
            self.stamp(3)
            a.label(L)
            a('s_barrier')
            a(f'v_mov_b32 v38, {L_MX + 40}'); a('ds_read_b32 v39, v38'); a('s_waitcnt lgkmcnt(0)'); a('v_readfirstlane_b32 s58, v39')
        def two_path(issue, check, fsleep=0, pre_slow=None):
            Ld = self.lab('L_tpd'); Lf = self.lab('L_tpf'); Ls = self.lab('L_tps'); Ls2 = self.lab('L_tps2')
            a('s_cmp_eq_u32 s58, 0'); a(f's_cbranch_scc1 {Ls}')
            a.label(Lf)
            issue(65, 'nt'); a('s_waitcnt vmcnt(0)'); check()
            if not self.x_nopoll:
                a('s_add_u32 s80, s80, 1'); a(f's_cmp_gt_u32 s80, {POLL_LIMIT}'); a('s_cbranch_scc1 L_abort')
                a('s_cmp_eq_u64 vcc, exec'); a(f's_cbranch_scc0 {Lf}')
            a(f's_branch {Ld}')
            a.label(Ls)
            if pre_slow: pre_slow()
            a.label(Ls2)
            issue(64, 'sc1'); a('s_waitcnt vmcnt(0)'); check()
            if not self.x_nopoll:
                a('s_add_u32 s80, s80, 1'); a(f's_cmp_gt_u32 s80, {POLL_LIMIT}'); a('s_cbranch_scc1 L_abort')
                a('s_cmp_eq_u64 vcc, exec'); a(f's_cbranch_scc0 {Ls2}')
            a.label(Ld)
        def b_sentinel():
            if not (self.bsent and not self.x_nopoll and self.fast): return
            Lb = self.lab('L_bs'); Lb2 = self.lab('L_bs2'); Lbd = self.lab('L_bsd')
            a('s_cmp_eq_u32 s58, 0'); a(f's_cbranch_scc1 {Lbd}')
            a('v_and_b32 v28, 31, v0'); a('v_lshlrev_b32 v28, 7, v28'); a('v_add_u32 v28, 4, v28')
            a('s_lshl_b32 s76, s36, 12'); a(f's_add_u32 s76, s76, {WS_BF}'); a('s_mov_b32 s77, 0')
            a(f's_branch {Lb2}')
            a.label(Lb); a(f's_sleep {self.bsent}'); a.label(Lb2)
            a('buffer_load_dword v29, v28, s[40:43], s76 offen nt')
            a('s_waitcnt vmcnt(0)')
            a('v_cmp_eq_u32 vcc, s81, v29')
            a('s_cmp_eq_u64 vcc, exec'); a(f's_cbranch_scc1 {Lbd}')
            a('s_add_u32 s77, s77, 1'); a(f's_cmp_lt_u32 s77, {FAST_TRIES}'); a(f's_cbranch_scc1 {Lb}')
            a.label(Lbd)
        def t1_combine(own=True):
            if own: a('s_mov_b32 s78, s37')
            a('v_lshlrev_b32 v6, 7, v2'); a('v_lshl_add_u32 v6, v1, 3, v6')
            a('s_lshl_b32 s64, s36, 5'); a('s_add_u32 s64, s64, s78'); a('s_lshl_b32 s64, s64, 12'); a(f's_add_u32 s65, s64, {WS_AF}')
            a('s_lshl_b32 s62, s36, 12'); a('s_lshl_b32 s61, s78, 7'); a('s_add_u32 s62, s62, s61')
            a(f's_add_u32 s63, s62, {WS_BF}'); a(f's_add_u32 s62, s62, {WS_B}')
            def a_issue(sb, fl):
                for i in range(8): a(f'buffer_load_dwordx2 v[{8+2*i}:{9+2*i}], v6, s[40:43], s{sb} offen offset:{512*i} {fl}')
            def a_check():
                a('v_min3_u32 v24, v8, v9, v10')
                for r in range(11, 23, 2): a(f'v_min3_u32 v24, v24, v{r}, v{r+1}')
                a('v_min_u32 v24, v24, v23'); a('v_cmp_ne_u32 vcc, 0, v24')
            if self.asent and self.fast and not self.x_nopoll:
                La = self.lab('L_as'); Lad = self.lab('L_asd'); Lal = self.lab('L_asl')
                a('s_cmp_eq_u32 s58, 0'); a(f's_cbranch_scc1 {Lad}')
                a('v_lshlrev_b32 v28, 7, v0'); a('v_add_u32 v28, 4, v28'); a('s_mov_b32 s77, 0')
                a('s_mov_b32 exec_hi, 0')
                a.label(La)
                a('buffer_load_dword v29, v28, s[40:43], s65 offen nt')
                a('s_waitcnt vmcnt(0)')
                a('v_cmp_ne_u32 vcc, 0, v29')
                a('s_add_u32 s77, s77, 1')
                a('s_bcnt1_i32_b64 s76, vcc')
                a(f's_cmp_ge_u32 s76, {self.asent_thr}'); a(f's_cbranch_scc1 {Lad}')
                a(f's_cmp_gt_u32 s77, {POLL_LIMIT}'); a('s_cbranch_scc1 L_abort')
                a(f's_sleep {self.asent}'); a(f's_branch {La}')
                a.label(Lad)
                a('s_mov_b64 exec, -1')
            def a_flags():
                Lq = self.lab('L_fa')
                a('s_lshl_b32 s76, s36, 3'); a('s_lshr_b32 s77, s78, 2'); a('s_add_u32 s76, s76, s77'); a('s_lshl_b32 s76, s76, 7'); a(f's_add_u32 s76, s76, {WS_FA}')
                a('v_and_b32 v28, 31, v0'); a('v_lshlrev_b32 v28, 2, v28')
                a.label(Lq)
                a('buffer_load_dword v29, v28, s[40:43], s76 offen sc1'); a('s_waitcnt vmcnt(0)')
                a('v_cmp_eq_u32 vcc, s81, v29')
                if not self.x_nopoll:
                    a('s_add_u32 s80, s80, 1'); a(f's_cmp_gt_u32 s80, {POLL_LIMIT}'); a('s_cbranch_scc1 L_abort')
                    a('s_cmp_eq_u64 vcc, exec'); a(f's_cbranch_scc0 {Lq}')
            two_path(a_issue, a_check, pre_slow=a_flags)
            self.stamp(6)
            a('v_max3_f32 v24, v9, v11, v13'); a('v_max3_f32 v24, v24, v15, v17'); a('v_max3_f32 v24, v24, v19, v21')
            a('v_max_f32 v24, v24, v23')
            self.allreduce([24], 'v_max_f32', 26, rows_only=True)
            for i in range(8): a(f'v_sub_f32 v{9+2*i}, v{9+2*i}, v24')
            for i in range(8): a(f'v_exp_f32 v{9+2*i}, v{9+2*i}')
            a('v_mul_f32 v24, v9, v8'); a('v_mov_b32 v25, v9')
            for i in range(1, 8):
                a(f'v_fmac_f32 v24, v{9+2*i}, v{8+2*i}'); a(f'v_add_f32 v25, v25, v{9+2*i}')
            self.allreduce([24, 25], 'v_add_f32', 26, rows_only=True)
            a('v_rcp_f32 v25, v25'); a('v_lshlrev_b32 v6, 3, v1'); a('v_mul_f32 v24, v24, v25'); a('v_mov_b32 v25, s81')
            a('s_mov_b64 exec, 0xffff')
            Lp1 = self.lab('L_tb'); Lp2 = self.lab('L_tb2')
            a('s_cmp_eq_u32 s58, 0'); a(f's_cbranch_scc1 {Lp1}')
            a('buffer_store_dwordx2 v[24:25], v6, s[40:43], s63 offen'); a(f's_branch {Lp2}')
            a.label(Lp1)
            a('buffer_store_dwordx2 v[24:25], v6, s[40:43], s62 offen sc1')
            a.label(Lp2)
            a('s_mov_b64 exec, -1')
            self.stamp(7)

        a.label('L_role_wq')
        a('s_lshl_b32 s62, s36, 10'); a('s_lshl_b32 s61, s37, 7'); a('s_add_u32 s62, s62, s61')
        iss = line_setup(14, 512 * 4096 * 2, 8192, 62)
        self.srd(52, 8, 1024); a('v_lshlrev_b32 v7, 4, v0')
        a('buffer_load_dwordx4 v[12:15], v7, s[52:55], 0 offen')
        iss('wq'); line_finish(); zero_stores('wq'); get_tag()
        X = 16
        if self.h0only: Lh = h0_begin()
        self.unpack8(12, X)
        a(f'v_add_f32 v24, v{X}, v{X+1}')
        for k in range(2, 8): a(f'v_add_f32 v24, v24, v{X+k}')
        self.allreduce([24], 'v_add_f32', 26)
        a(f'v_mul_f32 v24, {hexf(1/512)}, v24')
        for k in range(8): a(f'v_sub_f32 v{28+k}, v{X+k}, v24')
        a('v_mul_f32 v25, v28, v28')
        for k in range(1, 8): a(f'v_fmac_f32 v25, v{28+k}, v{28+k}')
        self.allreduce([25], 'v_add_f32', 26)
        a(f'v_mul_f32 v25, {hexf(1/512)}, v25')
        self.round_pair(24, 25, 26)
        a(f'v_add_f32 v25, {hexf(1e-5)}, v25'); self.round1(25, 26)
        a('v_sqrt_f32 v25, v25'); self.round1(25, 26)
        a('v_rcp_f32 v27, v25')
        for k in range(8): a(f'v_sub_f32 v{X+k}, v{X+k}, v24')
        self.round_list(list(range(X, X+8)), 28)
        for k in range(8): a(f'v_mul_f32 v{28+k}, v{X+k}, v27')
        for k in range(8): a(f'v_fma_f32 v{X+k}, -v{28+k}, v25, v{X+k}')
        for k in range(8): a(f'v_fma_f32 v{X+k}, v{X+k}, v27, v{28+k}')
        self.round_list(list(range(X, X+8)), 26)
        zsignal()
        self.stamp(4)
        if self.msent:
            a('s_lshl_b32 s61, s37, 2'); a('s_add_u32 s61, s61, 3'); a('s_lshl_b32 s61, s61, 7'); self.copy_off(60, self.mc); a('s_add_u32 s61, s61, s60'); a(f's_add_u32 s61, s61, {WS_M + 4}')
            self.sentinel(61, 8, sleep=self.msent)
        Lp = self.lab('L_mp')
        a('v_lshlrev_b32 v6, 5, v0'); self.copy_off(60, self.mc); a(f's_add_u32 s60, s60, {WS_M}')
        a.label(Lp)
        a('buffer_load_dwordx4 v[104:107], v6, s[40:43], s60 offen sc1')
        a('buffer_load_dwordx4 v[108:111], v6, s[40:43], s60 offen offset:16 sc1')
        a('buffer_load_dwordx4 v[112:115], v6, s[40:43], s60 offen offset:2048 sc1')
        a('buffer_load_dwordx4 v[116:119], v6, s[40:43], s60 offen offset:2064 sc1')
        a('s_waitcnt vmcnt(0)')
        self.tag_check([105, 107, 109, 111, 113, 115, 117, 119], 8, Lp, sleep=self.msleep)
        self.stamp(5)
        for k in range(8):
            a(f'v_lshlrev_b32 v{24+2*k}, 16, v{104+2*k}'); a(f'v_and_b32 v{25+2*k}, 0xffff0000, v{104+2*k}')
        for k in range(8): a(f'v_add_f32 v{32+k}, 1.0, v{32+k}')
        self.round_list(list(range(32, 40)), 8)
        for k in range(8): a(f'v_mul_f32 v{X+k}, v{X+k}, v{32+k}')
        self.round_list(list(range(X, X+8)), 8)
        for k in range(8): a(f'v_add_f32 v{X+k}, v{X+k}, v{24+k}')
        self.pack8(X, 8)
        a('ds_write_b128 v5, v[8:11]'); a('s_waitcnt lgkmcnt(0)')
        if self.h0only:
            a.label(Lh)
            self.lds_sync(3, sleep=2)
            a('v_lshlrev_b32 v4, 4, v2'); a(f'v_add_u32 v4, {L_VEC}, v4')
        self.gemv(4, W1, 16, ACC)
        a('s_lshl_b32 s60, s36, 11'); a('s_lshl_b32 s61, s37, 8'); a('s_add_u32 s60, s60, s61')
        a('s_lshl_b32 s61, s38, 6'); a('s_add_u32 s60, s60, s61'); a(f's_add_u32 s60, s60, {WS_Q}')
        publish_tag(60, ACC)
        self.stamp(8)
        qgather_and_barrier1()
        a('s_branch L_tail_plain')

        a.label('L_role_wo')
        a('s_lshl_b32 s62, s36, 19'); a('s_sub_u32 s61, s37, 8'); a('s_lshl_b32 s61, s61, 7'); a('s_add_u32 s62, s62, s61')
        iss = line_setup(16, 4096 * 512 * 2, 1024, 62)
        if 'wo' in self.tilelate:
            barrier0(); zero_stores('wo'); get_tag(); zsignal()
            qgather_and_barrier1()
            self.dma(48, 158, 72, 8 * 1024, 16, 66, depth=self.depth.get('wo', 64))
            line_finish()
        else:
            iss('wo')
            if 'wo' not in self.zfirst: zero_stores('wo'); get_tag()
            line_finish()
            if 'wo' not in self.zfirst: zsignal()
            qgather_and_barrier1()
        a('s_barrier')
        L = h0_begin()
        t1_combine()
        a('v_lshlrev_b32 v6, 6, v0'); a('s_lshl_b32 s64, s36, 12'); a(f's_add_u32 s65, s64, {WS_BF}'); a(f's_add_u32 s64, s64, {WS_B}')
        def b_issue(sb, fl):
            for i in range(4): a(f'buffer_load_dwordx4 v[{8+4*i}:{11+4*i}], v6, s[40:43], s{sb} offen offset:{16*i} {fl}')
        def b_check():
            for r in range(9, 24, 2): a(f'v_xor_b32 v{r}, s81, v{r}')
            a('v_or3_b32 v24, v9, v11, v13'); a('v_or3_b32 v24, v24, v15, v17'); a('v_or3_b32 v24, v24, v19, v21'); a('v_or_b32 v24, v24, v23')
            a('v_cmp_eq_u32 vcc, 0, v24')
        two_path(b_issue, b_check)
        self.stamp(8)
        a('v_cvt_pk_bf16_f32 v16, v8, v10') if False else None
        a('v_cvt_pk_bf16_f32 v24, v8, v10'); a('v_cvt_pk_bf16_f32 v25, v12, v14'); a('v_cvt_pk_bf16_f32 v26, v16, v18'); a('v_cvt_pk_bf16_f32 v27, v20, v22')
        a('v_lshlrev_b32 v6, 4, v0'); a(f'v_add_u32 v6, {L_VEC}, v6')
        a('ds_write_b128 v6, v[24:27]'); a('s_waitcnt lgkmcnt(0)')
        a.label(L)
        a('v_lshlrev_b32 v4, 4, v2'); a(f'v_add_u32 v4, {L_VEC}, v4')
        a('s_lshl_b32 s60, s36, 11'); a('s_sub_u32 s61, s37, 8'); a('s_lshl_b32 s61, s61, 8'); a('s_add_u32 s60, s60, s61')
        a('s_lshl_b32 s61, s38, 6'); a('s_add_u32 s60, s60, s61'); a(f's_add_u32 s60, s60, {WS_C}')
        a('s_add_u32 s61, s60, 65536'); a('v_lshlrev_b32 v7, 14, v2'); a('v_lshl_add_u32 v7, v1, 2, v7')
        a('s_barrier')
        self.gemv(4, W1, 16, ACC)
        a(f'v_or_b32 v{ACC}, 1, v{ACC}')
        if self.wide:
            self.quad4(ACC, 8)
            self.rows_exec(0x1111, self.cc)
            a('buffer_store_dwordx4 v[8:11], v7, s[40:43], s60 offen sc1')
            if self.cc == 8: a('buffer_store_dwordx4 v[8:11], v7, s[40:43], s61 offen sc1')
        else:
            a(f'buffer_store_dword v{ACC}, v7, s[40:43], s60 offen sc1')
            a(f'buffer_store_dword v{ACC}, v7, s[40:43], s61 offen sc1')
        self.stamp(9)
        a('s_branch L_hend')

        a.label('L_role_mod')
        a('s_mul_i32 s62, s36, 768'); a('s_sub_u32 s61, s37, 16'); a('s_lshl_b32 s61, s61, 7'); a('s_add_u32 s62, s62, s61')
        a('s_lshr_b32 s68, s62, 1'); a('s_lshl_b32 s61, s38, 4'); a('s_add_u32 s68, s68, s61')
        iss = line_setup(28, 512 * 3072 * 2, 6144, 62)
        self.srd(52, 26, 1024); a('v_lshlrev_b32 v7, 4, v0')
        a('buffer_load_dwordx4 v[12:15], v7, s[52:55], 0 offen')
        iss('mod'); line_finish(); zero_stores('mod'); get_tag()
        X = 16
        self.unpack8(12, X)
        a(f's_mov_b32 s61, {hexf(-LOG2E)}')
        for k in range(8): a(f'v_mul_f32 v{24+k}, s61, v{X+k}')
        a(f's_mov_b32 s62, {hexf(126.0)}')
        for k in range(8): a(f'v_min_f32 v{24+k}, s62, v{24+k}')
        for k in range(8): a(f'v_exp_f32 v{24+k}, v{24+k}')
        for k in range(8): a(f'v_add_f32 v{24+k}, 1.0, v{24+k}')
        for k in range(8): a(f'v_rcp_f32 v{32+k}, v{24+k}')
        for k in range(8): a(f'v_fma_f32 v{24+k}, -v{24+k}, v{32+k}, 1.0')
        for k in range(8): a(f'v_fma_f32 v{24+k}, v{24+k}, v{32+k}, v{32+k}')
        for k in range(8): a(f'v_mul_f32 v{X+k}, v{X+k}, v{24+k}')
        self.pack8(X, 8)
        a('ds_write_b128 v5, v[8:11]'); a('s_waitcnt lgkmcnt(0)')
        self.gemv(4, W1, 16, ACC)
        a('s_lshl_b32 s60, s68, 2'); a(f's_add_u32 s60, s60, {WS_M}'); a('s_add_u32 s61, s60, 65536')
        a(f'v_mov_b32_dpp v{ACC+1}, v{ACC} quad_perm:[1,1,3,3] {DPPF}')
        a(f'v_cvt_pk_bf16_f32 v{ACC}, v{ACC}, v{ACC+1}')
        a(f'v_mov_b32 v{ACC+1}, s81')
        a('v_lshlrev_b32 v6, 14, v2'); a('v_lshl_add_u32 v6, v1, 2, v6')
        self.rows_exec(0x5555, self.mc)
        a(f'buffer_store_dwordx2 v[{ACC}:{ACC+1}], v6, s[40:43], s60 offen sc1')
        if self.mc == 8: a(f'buffer_store_dwordx2 v[{ACC}:{ACC+1}], v6, s[40:43], s61 offen sc1')
        a('s_mov_b64 exec, -1')
        self.stamp(8)
        zsignal()
        qgather_and_barrier1()
        a('s_mov_b32 s75, 3')
        a('s_cmp_eq_u32 s37, 21'); a('s_cbranch_scc1 L_fin_common')
        a('s_branch L_tail_plain')

        a.label('L_role_fin')
        if self.cpf:
            Lc = self.lab('L_nocpf'); Ll = self.lab('L_cpf')
            a('s_cmp_eq_u32 s38, 0'); a(f's_cbranch_scc1 {Lc}')
            a('s_getpc_b64 s[60:61]')
            a.label('L_pc_here')
            a(f's_sub_u32 s60, s60, L_pc_here-{KNAME}'); a('s_subb_u32 s61, s61, 0')
            a('s_sub_u32 s62, s38, 1'); a('s_lshl_b32 s62, s62, 12')
            a('v_lshlrev_b32 v6, 6, v0')
            a.label(Ll)
            a('v_add_u32 v7, s62, v6'); a(f'v_min_u32 v7, L_code_end-{KNAME}-4, v7')
            a('global_load_dword v8, v7, s[60:61]')
            a('s_add_u32 s62, s62, 12288'); a(f's_cmp_lt_u32 s62, L_code_end-{KNAME}'); a(f's_cbranch_scc1 {Ll}')
            a.label(Lc)
        if 'fin' in self.zfirst and self.zshort:
            zero_stores('fin'); get_tag(); barrier0(); zsignal()
        elif 'fin' in self.zfirst:
            zero_stores('fin'); get_tag(); zsignal(); barrier0()
        else:
            barrier0(); zero_stores('fin'); get_tag(); zsignal()
        qgather_and_barrier1()
        a('s_sub_u32 s75, s37, 29')
        a.label('L_fin_common')
        L = h0_begin()
        a('s_lshl_b32 s69, s36, 6'); a('s_lshl_b32 s61, s75, 4'); a('s_add_u32 s69, s69, s61')
        self.srd(52, 8, 1024)
        a('v_lshlrev_b32 v6, 1, v1'); a('s_lshl_b32 s60, s69, 1')
        a('buffer_load_ushort v160, v6, s[52:55], s60 offen')
        Lp = self.lab('L_gp')
        a('v_and_b32 v6, 14, v1'); a('v_lshlrev_b32 v6, 2, v6'); a('s_lshl_b32 s60, s69, 2'); self.copy_off(61, self.mc); a('s_add_u32 s60, s60, s61'); a(f's_add_u32 s60, s60, {WS_M}')
        a(f's_add_u32 s61, s60, {1024*4}'); a(f's_add_u32 s60, s60, {2560*4}')
        a('v_lshrrev_b32 v7, 3, v0'); a('v_lshlrev_b32 v7, 7, v7'); a('v_and_b32 v8, 7, v0')
        a('v_min_u32 v9, 6, v8'); a('v_lshl_add_u32 v15, v9, 2, v7'); a('v_lshl_add_u32 v7, v8, 2, v7')
        a(f's_mov_b32 s62, {WS_ZF + 32}')
        a.label(Lp)
        a('buffer_load_dwordx2 v[8:9], v6, s[40:43], s61 offen sc1')
        a('buffer_load_dwordx2 v[10:11], v6, s[40:43], s60 offen sc1')
        a('buffer_load_dword v13, v7, s[40:43], s62 offen sc1')
        a('buffer_load_dword v14, v15, s[40:43], s62 offen offset:56 sc1')
        a('s_waitcnt vmcnt(0)')
        self.tag_check([9, 11, 13, 14], 12, Lp, sleep=8, zregs=(13, 14))
        a('v_lshlrev_b32 v160, 16, v160')
        a('v_and_b32 v12, 1, v0'); a('v_cmp_eq_u32 vcc, 1, v12')
        a('v_lshlrev_b32 v161, 16, v8'); a('v_and_b32 v8, 0xffff0000, v8'); a('v_cndmask_b32 v161, v161, v8, vcc')
        a('v_lshlrev_b32 v162, 16, v10'); a('v_and_b32 v10, 0xffff0000, v10'); a('v_cndmask_b32 v162, v162, v10, vcc')
        a.label(L)
        a('s_barrier')
        a('s_cmp_lg_u32 s38, 0'); a('s_cbranch_scc1 L_hend')
        t1_combine()
        if self.finsent: b_sentinel()
        Lp = self.lab('L_cp')
        a('v_lshlrev_b32 v6, 2, v1'); a('s_lshl_b32 s60, s69, 2'); self.copy_off(61, self.cc); a('s_add_u32 s60, s60, s61'); a(f's_add_u32 s60, s60, {WS_C}')
        a(f's_add_u32 s61, s60, 4096'); a(f's_add_u32 s62, s60, 8192'); a(f's_add_u32 s63, s60, 12288')
        a.label(Lp)
        for gp in range(8): a(f'buffer_load_dword v{8+gp}, v6, s[40:43], s{60+gp//2} offen offset:{2048*(gp&1)} sc1')
        a('s_waitcnt vmcnt(0)')
        self.valid_check(range(8, 16), 16, Lp, sleep=2)
        a('v_add_f32 v8, v8, v9'); a('v_add_f32 v10, v10, v11'); a('v_add_f32 v12, v12, v13'); a('v_add_f32 v14, v14, v15')
        a('v_add_f32 v8, v8, v10'); a('v_add_f32 v12, v12, v14'); a('v_add_f32 v8, v8, v12')
        a('v_fmac_f32 v160, v161, v8')
        self.stamp(8)
        self.srd(52, 30, 1024)
        a('v_lshlrev_b32 v6, 11, v2'); a('v_lshl_add_u32 v6, v1, 2, v6')
        a('s_lshl_b32 s76, s69, 1')
        a('s_lshl_b32 s60, s69, 2'); a(f's_add_u32 s60, s60, {WS_E}')
        soffs = [60 + i if i < 10 else 72 + (i - 10) for i in range(14)]
        for i in range(1, 14): a(f's_add_u32 s{soffs[i]}, s60, {8192*i}')
        def e_issue(b):
            for i in range(14): a(f'buffer_load_dword v{b+i}, v6, s[40:43], s{soffs[i]} offen sc1')
        def e_use(b):
            def f():
                for st in ((0, 1), (2, 3), (4, 5), (6, 7), (8, 9), (10, 11), (12, 13), (0, 2), (4, 6), (8, 10), (0, 4), (8, 12)):
                    a(f'v_add_f32 v{b+st[0]}, v{b+st[0]}, v{b+st[1]}')
                a(f'v_add_f32 v148, v{b}, v{b+8}')
            return f
        if self.edelay: a(f's_sleep {self.edelay}')
        if self.pipe:
            self.poll2(e_issue, 14, list(range(8, 22)), list(range(24, 38)), 150, e_use(8), e_use(24))
        else:
            Lp = self.lab('L_ep')
            a.label(Lp)
            e_issue(8)
            a('s_waitcnt vmcnt(0)')
            self.valid_check(range(8, 22), 24, Lp, sleep=self.psleep.get('E', 0))
            e_use(8)()
        self.stamp(9)
        self.allreduce([148], 'v_add_f32', 150, rows_only=True)
        self.round1(148, 149)
        a('v_fmac_f32 v160, v162, v148')
        a('v_cvt_pk_bf16_f32 v148, v160, v160')
        a('v_lshlrev_b32 v149, 1, v1')
        a('s_mov_b64 exec, 0xffff')
        a('buffer_store_short v148, v149, s[52:55], s76 offen')
        a('s_lshl_b32 s60, s37, 3'); a('s_add_u32 s60, s60, s36'); a('s_cmp_lg_u32 s60, 232'); a('s_cbranch_scc1 L_hend')
        a('s_add_u32 s83, s83, 1'); a('v_mov_b32 v151, s83'); a('v_mov_b32 v150, 0'); a(f's_mov_b32 s60, {WS_EPOCH}')
        a('s_mov_b64 exec, 1')
        a('buffer_store_dword v151, v150, s[40:43], s60 offen')
        self.stamp(10)
        a('s_branch L_hend')

        WD = 104
        a.label('L_role_ffn')
        if self.latef:
            zero_stores('ffn'); get_tag(); zsignal(); barrier0()
            qgather_and_barrier1()
            a('s_mul_i32 s56, s36, 448'); a('s_sub_u32 s61, s37, 22'); a('s_lshl_b32 s61, s61, 6'); a('s_add_u32 s56, s56, s61')
            a('s_lshr_b32 s68, s56, 1')
            a(f's_mul_i32 s61, s38, {128*3584}'); a('s_add_u32 s56, s56, s61'); a('s_mov_b32 s57, s56')
            a('s_lshl_b32 s58, s38, 13'); a(f's_add_u32 s58, s58, {L_TILE}'); a('s_add_u32 s59, s58, 32768')
            a('v_lshrrev_b32 v158, 2, v0'); a(f's_mov_b32 s61, 3584'); a('v_mul_lo_u32 v158, v158, s61')
            a('v_and_b32 v7, 3, v0'); a('v_lshl_add_u32 v158, v7, 4, v158')
            self.srd(52, 8, 1024)
            a('v_lshlrev_b32 v7, 2, v0'); a('s_lshl_b32 s60, s38, 8')
            a('buffer_load_dword v142, v7, s[52:55], s60 offen')
            Lp = self.lab('L_gp2')
            a('v_lshlrev_b32 v6, 3, v0'); a('s_lshl_b32 s60, s38, 9'); self.copy_off(61, self.mc); a('s_add_u32 s60, s60, s61'); a(f's_add_u32 s60, s60, {WS_M + 1024*4}'); a('s_add_u32 s61, s60, 4096')
            a('v_lshrrev_b32 v7, 3, v0'); a('v_lshlrev_b32 v7, 7, v7'); a('v_and_b32 v8, 7, v0'); a('v_lshl_add_u32 v7, v8, 2, v7')
            a(f's_mov_b32 s62, {WS_ZF + 32}')
            a.label(Lp)
            a('buffer_load_dwordx2 v[8:9], v6, s[40:43], s60 offen sc1')
            a('buffer_load_dwordx2 v[10:11], v6, s[40:43], s60 offen offset:2048 sc1')
            a('buffer_load_dwordx2 v[12:13], v6, s[40:43], s61 offen sc1')
            a('buffer_load_dword v14, v7, s[40:43], s62 offen sc1')
            a('s_waitcnt vmcnt(0)')
            self.tag_check([9, 11, 13, 14], 16, Lp, sleep=8, zregs=(14,))
            for k, r in enumerate((8, 10, 12, 142)):
                a(f'v_and_b32 v{137+2*k}, 0xffff0000, v{r}'); a(f'v_lshlrev_b32 v{136+2*k}, 16, v{r}')
            a('v_add_f32 v140, 1.0, v140'); a('v_add_f32 v141, 1.0, v141'); self.round_pair(140, 141, 16)
            a('v_lshlrev_b32 v144, 3, v0'); a('s_lshl_b32 s72, s38, 9'); self.copy_off(61, self.cc); a('s_add_u32 s72, s72, s61'); a(f's_add_u32 s72, s72, {WS_C}')
            a('s_add_u32 s73, s72, 4096'); a('s_add_u32 s74, s72, 8192'); a('s_add_u32 s75, s72, 12288')
            a('v_lshlrev_b32 v145, 2, v0'); a('s_lshl_b32 s61, s38, 8'); a(f's_add_u32 s61, s61, {L_VEC}'); a('v_add_u32 v145, s61, v145')
            a('v_lshlrev_b32 v4, 4, v2'); a(f'v_add_u32 v4, {L_VEC}, v4')
            a(f'v_mov_b32 v146, {L_ST}'); a('s_lshl_b32 s61, s38, 3'); a('v_add_u32 v147, s61, v146')
            self.srd(48, 20, 512 * 1792 * 2); self.srd(52, 22, 512 * 1792 * 2)
            Lw = self.lab('L_tw'); Lw2 = self.lab('L_tw2')
            a(f'v_mov_b32 v38, {L_MX + 36}'); a(f's_branch {Lw2}')
            a.label(Lw); a('s_sleep 2'); a.label(Lw2)
            a('ds_read_b32 v39, v38'); a('s_waitcnt lgkmcnt(0)'); a('v_readfirstlane_b32 s82, v39')
            a('s_add_u32 s80, s80, 1'); a(f's_cmp_gt_u32 s80, {POLL_LIMIT}'); a('s_cbranch_scc1 L_abort')
            a('s_cmp_eq_u32 s82, 0'); a(f's_cbranch_scc1 {Lw}')
            self.stamp(1)
            self.dma(48, 158, 56, 16 * 3584, 8, 58, nt=self.ffn_nt)
            self.dma(52, 158, 57, 16 * 3584, 8, 59, nt=self.ffn_nt)
            a('s_barrier')
            a('s_waitcnt vmcnt(0)')
            self.stamp(12)
            self.lds_sync(1)
            a('v_lshrrev_b32 v6, 2, v1'); a('v_lshl_add_u32 v6, v2, 3, v6'); a('v_lshlrev_b32 v6, 6, v6')
            a('v_and_b32 v7, 1, v0'); a('v_lshl_add_u32 v6, v7, 3, v6')
            a('v_bfe_u32 v7, v0, 1, 1'); a('v_lshl_add_u32 v6, v7, 15, v6')
            a('s_lshl_b32 s61, s38, 4'); a(f's_add_u32 s61, s61, {L_TILE}'); a('v_add_u32 v6, s61, v6')
            self.tr_read(6, W1, 16, 2048, 256)
            self.lds_sync(2)
            self.srd(48, 24, 1792 * 512 * 2)
            a('v_lshlrev_b32 v158, 4, v0')
            a('s_lshl_b32 s61, s38, 3'); a('s_add_u32 s56, s68, s61'); a('s_lshl_b32 s56, s56, 10')
            self.dma(48, 158, 56, 1024, 8, 58)
            a('v_lshrrev_b32 v6, 2, v1'); a('v_lshl_add_u32 v6, v2, 3, v6'); a('v_lshlrev_b32 v6, 10, v6')
            a('v_and_b32 v7, 3, v0'); a('v_lshl_add_u32 v6, v7, 3, v6')
            a('s_lshl_b32 s61, s38, 8'); a(f's_add_u32 s61, s61, {L_TILE}'); a('v_add_u32 v159, s61, v6')
            a('s_waitcnt vmcnt(0)')
            self.lds_sync(3)
            self.tr_read(159, WD, 8, 32, 4096)
            self.stamp(14)
        else:
            self.srd(48, 20, 512 * 1792 * 2); self.srd(52, 22, 512 * 1792 * 2)
            a('v_lshrrev_b32 v158, 2, v0'); a(f's_mov_b32 s61, 3584'); a('v_mul_lo_u32 v158, v158, s61')
            a('v_and_b32 v7, 3, v0'); a('v_lshl_add_u32 v158, v7, 4, v158')
            a('s_mul_i32 s72, s36, 448'); a('s_sub_u32 s61, s37, 22'); a('s_lshl_b32 s61, s61, 6'); a('s_add_u32 s72, s72, s61')
            a('s_lshr_b32 s68, s72, 1')
            a(f's_mul_i32 s61, s38, {128*3584}'); a('s_add_u32 s72, s72, s61'); a('s_mov_b32 s73, s72')
            a('s_lshl_b32 s66, s38, 13'); a(f's_add_u32 s66, s66, {L_TILE}'); a('s_add_u32 s74, s66, 32768')
            if 'ffn' in self.zfirst and self.zshort:
                zero_stores('ffn'); get_tag(); barrier0(); zsignal()
            elif 'ffn' in self.zfirst:
                zero_stores('ffn'); get_tag(); zsignal(); barrier0()
            else:
                barrier0(); zero_stores('ffn'); get_tag(); zsignal()
            dff = self.depth.get('ffn', 64)
            def ffn_issue(depth):
                self.dma(48, 158, 72, 16 * 3584, 8, 66, nt=self.ffn_nt, depth=depth)
                self.dma(52, 158, 73, 16 * 3584, 8, 74, nt=self.ffn_nt, depth=depth, first=(depth >= 16))
            if 'ffn' in self.tilelate:
                qgather_and_barrier1()
                ffn_issue(dff)
            else:
                L1 = self.lab('L_f1'); L2 = self.lab('L_f2')
                a('s_cmp_eq_u32 s38, 0'); a(f's_cbranch_scc1 {L1}')
                ffn_issue(dff)
                a(f's_branch {L2}')
                a.label(L1)
                ffn_issue(self.depth.get('ffn0', 8))
                a.label(L2)
                qgather_and_barrier1()
            self.stamp(1)
            a('s_waitcnt vmcnt(0)')
            self.stamp(12)
            self.lds_sync(1)
            a('v_lshrrev_b32 v6, 2, v1'); a('v_lshl_add_u32 v6, v2, 3, v6'); a('v_lshlrev_b32 v6, 6, v6')
            a('v_and_b32 v7, 1, v0'); a('v_lshl_add_u32 v6, v7, 3, v6')
            a('v_bfe_u32 v7, v0, 1, 1'); a('v_lshl_add_u32 v6, v7, 15, v6')
            a('s_lshl_b32 s61, s38, 4'); a(f's_add_u32 s61, s61, {L_TILE}'); a('v_add_u32 v6, s61, v6')
            self.tr_read(6, W1, 16, 2048, 256)
            self.stamp(14)
            self.lds_sync(2)
            self.srd(48, 24, 1792 * 512 * 2)
            a('v_lshlrev_b32 v158, 4, v0')
            a('s_lshl_b32 s61, s38, 3'); a('s_add_u32 s72, s68, s61'); a('s_lshl_b32 s72, s72, 10')
            a('s_lshl_b32 s66, s38, 13'); a(f's_add_u32 s66, s66, {L_TILE}')
            self.dma(48, 158, 72, 1024, 8, 66, depth=8)
            a('s_waitcnt vmcnt(0)')
            self.lds_sync(3)
            a('v_lshrrev_b32 v6, 2, v1'); a('v_lshl_add_u32 v6, v2, 3, v6'); a('v_lshlrev_b32 v6, 10, v6')
            a('v_and_b32 v7, 3, v0'); a('v_lshl_add_u32 v6, v7, 3, v6')
            a('s_lshl_b32 s61, s38, 8'); a(f's_add_u32 s61, s61, {L_TILE}'); a('v_add_u32 v6, s61, v6')
            self.tr_read(6, WD, 8, 32, 4096)
            self.srd(52, 8, 1024)
            a('v_lshlrev_b32 v7, 2, v0'); a('s_lshl_b32 s60, s38, 8')
            a('buffer_load_dword v142, v7, s[52:55], s60 offen')
            Lp = self.lab('L_gp2')
            a('v_lshlrev_b32 v6, 3, v0'); a('s_lshl_b32 s60, s38, 9'); self.copy_off(61, self.mc); a('s_add_u32 s60, s60, s61'); a(f's_add_u32 s60, s60, {WS_M + 1024*4}'); a('s_add_u32 s61, s60, 4096')
            a('v_lshrrev_b32 v7, 3, v0'); a('v_lshlrev_b32 v7, 7, v7'); a('v_and_b32 v8, 7, v0'); a('v_lshl_add_u32 v7, v8, 2, v7')
            a(f's_mov_b32 s62, {WS_ZF + 32}')
            a.label(Lp)
            a('buffer_load_dwordx2 v[8:9], v6, s[40:43], s60 offen sc1')
            a('buffer_load_dwordx2 v[10:11], v6, s[40:43], s60 offen offset:2048 sc1')
            a('buffer_load_dwordx2 v[12:13], v6, s[40:43], s61 offen sc1')
            a('buffer_load_dword v14, v7, s[40:43], s62 offen sc1')
            a('s_waitcnt vmcnt(0)')
            self.tag_check([9, 11, 13, 14], 16, Lp, sleep=8, zregs=(14,))
            for k, r in enumerate((8, 10, 12, 142)):
                a(f'v_and_b32 v{137+2*k}, 0xffff0000, v{r}'); a(f'v_lshlrev_b32 v{136+2*k}, 16, v{r}')
            a('v_add_f32 v140, 1.0, v140'); a('v_add_f32 v141, 1.0, v141'); self.round_pair(140, 141, 16)
            a('v_lshlrev_b32 v144, 3, v0'); a('s_lshl_b32 s72, s38, 9'); self.copy_off(61, self.cc); a('s_add_u32 s72, s72, s61'); a(f's_add_u32 s72, s72, {WS_C}')
            a('s_add_u32 s73, s72, 4096'); a('s_add_u32 s74, s72, 8192'); a('s_add_u32 s75, s72, 12288')
            a('v_lshlrev_b32 v145, 2, v0'); a('s_lshl_b32 s61, s38, 8'); a(f's_add_u32 s61, s61, {L_VEC}'); a('v_add_u32 v145, s61, v145')
            a('v_lshlrev_b32 v4, 4, v2'); a(f'v_add_u32 v4, {L_VEC}, v4')
            a(f'v_mov_b32 v146, {L_ST}'); a('s_lshl_b32 s61, s38, 3'); a('v_add_u32 v147, s61, v146')
            a('s_barrier')

        if not self.latef:
            L = h0_begin()
            t1_combine()
            a.label(L)
        def c_issue(b):
            for gp in range(8): a(f'buffer_load_dwordx2 v[{b+2*gp}:{b+1+2*gp}], v144, s[40:43], s{72+gp//2} offen offset:{2048*(gp&1)} sc1')
        def c_use(b):
            def f():
                for (x_, y_) in ((0, 2), (4, 6), (8, 10), (12, 14), (0, 4), (8, 12)):
                    a(f'v_add_f32 v{b+x_}, v{b+x_}, v{b+y_}'); a(f'v_add_f32 v{b+x_+1}, v{b+x_+1}, v{b+y_+1}')
                a(f'v_add_f32 v148, v{b}, v{b+8}'); a(f'v_add_f32 v149, v{b+1}, v{b+9}')
            return f
        if self.pipe:
            self.poll2(c_issue, 8, list(range(8, 24)), list(range(24, 40)), 150, c_use(8), c_use(24))
        else:
            b_sentinel()
            if self.csent and not self.x_nopoll:
                Ls = self.lab('L_cs')
                a('v_and_b32 v28, 7, v0'); a('v_lshlrev_b32 v28, 11, v28'); a(f'v_add_u32 v28, {self.csent_off}, v28')
                a('s_mov_b64 exec, 0xff')
                a.label(Ls)
                a('buffer_load_dword v29, v28, s[40:43], s72 offen sc1')
                a('s_waitcnt vmcnt(0)')
                a('v_cmp_ne_u32 vcc, 0, v29')
                a('s_add_u32 s80, s80, 1'); a(f's_cmp_gt_u32 s80, {POLL_LIMIT}'); a('s_cbranch_scc1 L_abort')
                a('s_cmp_eq_u64 vcc, exec'); a(f's_cbranch_scc0 {Ls}')
                a('s_mov_b64 exec, -1')
            Lp = self.lab('L_cp2')
            a.label(Lp)
            c_issue(8)
            a('s_waitcnt vmcnt(0)')
            self.valid_check(range(8, 24), 24, Lp, sleep=self.psleep.get('C', 0))
            c_use(8)()
        self.stamp(8)
        a('v_fmac_f32 v142, v136, v148'); a('v_fmac_f32 v143, v137, v149')
        a('v_add_f32 v150, v142, v143'); a('v_mul_f32 v151, v142, v142'); a('v_fmac_f32 v151, v143, v143')
        self.allreduce([150, 151], 'v_add_f32', 152)
        a('s_mov_b64 exec, 1'); a('ds_write_b64 v147, v[150:151]'); a('s_mov_b64 exec, -1')
        a('s_waitcnt lgkmcnt(0)')
        a('s_barrier')
        a('ds_read_b128 v[152:155], v146'); a('ds_read_b128 v[156:159], v146 offset:16')
        a('s_waitcnt lgkmcnt(0)')
        a('v_add_f32 v152, v152, v154'); a('v_add_f32 v153, v153, v155'); a('v_add_f32 v156, v156, v158'); a('v_add_f32 v157, v157, v159')
        a('v_add_f32 v152, v152, v156'); a('v_add_f32 v153, v153, v157')
        a(f'v_mul_f32 v152, {hexf(1/512)}, v152'); a(f'v_mul_f32 v153, {hexf(1/512)}, v153')
        a('v_fma_f32 v153, -v152, v152, v153'); a(f'v_add_f32 v153, {hexf(1e-5)}, v153'); a('v_rsq_f32 v153, v153')
        a('v_sub_f32 v142, v142, v152'); a('v_sub_f32 v143, v143, v152')
        a('v_mul_f32 v142, v142, v153'); a('v_mul_f32 v143, v143, v153')
        a('v_fma_f32 v142, v142, v140, v138'); a('v_fma_f32 v143, v143, v141, v139')
        a('v_cvt_pk_bf16_f32 v150, v142, v143')
        a('ds_write_b32 v145, v150'); a('s_waitcnt vmcnt(0) lgkmcnt(0)')
        a('s_barrier')
        self.stamp(9)
        ACC2 = 136
        self.gemv(4, W1, 16, ACC2)
        self.round1(ACC2, ACC2 + 1)
        a(f's_mov_b32 s61, {hexf(-LOG2E)}')
        a(f'v_mul_f32 v8, s61, v{ACC2}'); a(f'v_min_f32 v8, {hexf(126.0)}, v8'); a('v_exp_f32 v8, v8'); a('v_add_f32 v8, 1.0, v8'); a('v_rcp_f32 v9, v8')
        a('v_fma_f32 v8, -v8, v9, 1.0'); a('v_fma_f32 v8, v8, v9, v9')
        a(f'v_mul_f32 v8, v{ACC2}, v8'); self.round1(8, 9)
        a(f'v_mov_b32_dpp v9, v{ACC2} row_ror:8 {DPPF}')
        a('v_mul_f32 v8, v8, v9')
        a('v_cvt_pk_bf16_f32 v8, v8, v8')
        a('v_lshlrev_b32 v6, 1, v1'); a('s_lshl_b32 s61, s38, 4'); a(f's_add_u32 s61, s61, {L_AV}'); a('v_add_u32 v6, s61, v6')
        a('s_mov_b64 exec, 0xff'); a('ds_write_b16 v6, v8'); a('s_mov_b64 exec, -1')
        a('v_lshlrev_b32 v7, 4, v2'); a(f'v_add_u32 v7, {L_AV}, v7')
        a('s_mul_i32 s60, s36, 7'); a('s_add_u32 s60, s60, s37'); a('s_sub_u32 s60, s60, 22'); a('s_lshl_b32 s60, s60, 11')
        a('s_lshl_b32 s61, s38, 9'); a('s_add_u32 s60, s60, s61'); a(f's_add_u32 s60, s60, {WS_E}')
        a('s_mov_b32 s62, 0xffff0000'); a('s_mov_b32 s63, 0xffff0000'); a('s_mov_b32 s64, 0'); a('s_mov_b32 s65, -1')
        a('s_waitcnt lgkmcnt(0)')
        a('s_barrier')
        a('ds_read_b128 v[136:139], v7'); a('s_waitcnt lgkmcnt(0)')
        for jj in range(8):
            a(f'v_mfma_f32_16x16x32_bf16 v[{8+4*jj}:{11+4*jj}], v[136:139], v[{WD+4*jj}:{WD+4*jj+3}], 0')
        self.stamp(10)
        for half in range(2):
            b = 8 + 16 * half
            a(f'v_cndmask_b32 v{140+2*half}, v{b}, v{b+4}, s[62:63]'); a(f'v_cndmask_b32 v{141+2*half}, v{b+8}, v{b+12}, s[62:63]')
            a(f'v_cndmask_b32 v{140+2*half}, v{140+2*half}, v{141+2*half}, s[64:65]')
            a(f'v_or_b32 v{140+2*half}, 1, v{140+2*half}')
        a('v_lshlrev_b32 v6, 2, v0')
        if self.wide:
            self.quad4(140, 144); self.quad4(142, 148)
            a('s_mov_b32 exec_lo, 0x11111111'); a('s_mov_b32 exec_hi, 0x11111111')
            a('buffer_store_dwordx4 v[144:147], v6, s[40:43], s60 offen sc1')
            a('buffer_store_dwordx4 v[148:151], v6, s[40:43], s60 offen offset:256 sc1')
        else:
            a('buffer_store_dword v140, v6, s[40:43], s60 offen sc1')
            a('buffer_store_dword v142, v6, s[40:43], s60 offen offset:256 sc1')
        a('s_branch L_hend')

        a.label('L_tail_plain')
        a('s_mov_b32 s78, s37')
        if self.latef:
            Lq = self.lab('L_t1b')
            a('s_cmp_eq_u32 s38, 0'); a(f's_cbranch_scc1 {Lq}')
            a('s_add_u32 s78, s37, 22')
            a.label(Lq)
            a('s_barrier')
            Lg = self.lab('L_t1go')
            a('s_cmp_eq_u32 s38, 0'); a(f's_cbranch_scc1 {Lg}')
            a('s_cmp_lg_u32 s38, 1'); a('s_cbranch_scc1 L_hend')
            a('s_cmp_ge_u32 s37, 7'); a('s_cbranch_scc1 L_hend')
            a.label(Lg)
        else:
            a('s_barrier')
            a('s_cmp_lg_u32 s38, 0'); a('s_cbranch_scc1 L_hend')
        t1_combine(own=False)
        a.label('L_hend')
        self.stamp(11)
        self.stamp_flush(helper=True)
        a('s_endpgm')

    def build(self):
        a = self.a
        hdr = open('cdna_kernels/' + KNAME.replace('_kernel', '') + '.s.ref').read().split('\n')
        head = [l for l in hdr if l.startswith(';') and '@launch' not in l and 'Override' not in l and 'grid=ceil' not in l]
        a.raw('\n'.join(head))
        a.raw(f'; @launch grid=(256,1,1) block=(768,1,1) lds={LDS_SIZE}')
        a.raw('.amdgcn_target "amdgcn-amd-amdhsa--gfx950"\n.text')
        a.raw(f'.globl {KNAME}\n.p2align 8\n.type {KNAME},@function\n{KNAME}:')
        a('s_cmp_ge_u32 s2, 256'); a('s_cbranch_scc1 L_abort')
        a('s_load_dwordx16 s[8:23], s[0:1], 0'); a('s_load_dwordx8 s[24:31], s[0:1], 64'); a('s_load_dwordx4 s[32:35], s[0:1], 96')
        a('v_lshrrev_b32 v1, 6, v0'); a('v_readfirstlane_b32 s3, v1'); a('v_and_b32 v0, 63, v0')
        if self.remap:
            a('s_lshr_b32 s36, s2, 5'); a('s_and_b32 s37, s2, 31')
        else:
            a('s_and_b32 s36, s2, 7'); a('s_lshr_b32 s37, s2, 3')
        self.stamp_init()
        a('s_waitcnt lgkmcnt(0)')
        self.srd(40, 34, WS_SIZE)
        a('s_cmp_ge_u32 s3, 8'); a('s_cbranch_scc1 L_helper')
        self.attention()
        a.label('L_helper')
        self.helper()
        a.label('L_abort')
        a('s_endpgm')
        a.label('L_code_end')
        n = a.pad()
        a.raw('.section .rodata,"a"\n.p2align 6')
        a.raw(f'.amdhsa_kernel {KNAME}\n  .amdhsa_next_free_vgpr 168\n  .amdhsa_next_free_sgpr 102\n  .amdhsa_accum_offset 168\n'
              '  .amdhsa_group_segment_fixed_size 0\n  .amdhsa_kernarg_size 112\n  .amdhsa_user_sgpr_count 2\n'
              '  .amdhsa_user_sgpr_kernarg_segment_ptr 1\n  .amdhsa_system_sgpr_workgroup_id_x 1\n'
              '  .amdhsa_float_denorm_mode_32 3\n.end_amdhsa_kernel')
        return a.text(), n

if __name__ == '__main__':
    import argparse
    p = argparse.ArgumentParser()
    p.add_argument('-o', default='cdna_kernels/' + KNAME.replace('_kernel', '') + '.s')
    p.add_argument('--thr', type=int, default=2); p.add_argument('--thr-deep', type=int, default=3)
    p.add_argument('--stamps', action='store_true'); p.add_argument('--ffn-nt', action='store_true')
    p.add_argument('--deep', default='ffn'); p.add_argument('--x-notile', action='store_true'); p.add_argument('--x-nopoll', action='store_true')
    p.add_argument('--qsleep', type=int, default=4); p.add_argument('--x-nokv', action='store_true')
    p.add_argument('--depth', default=''); p.add_argument('--kthr', default=''); p.add_argument('--late', default=''); p.add_argument('--light', default=''); p.add_argument('--slow', type=int, default=0); p.add_argument('--slow-thr', type=int, default=0); p.add_argument('--tilelate', default=''); p.add_argument('--aflate', action='store_true'); p.add_argument('--csent', action='store_true'); p.add_argument('--bsent', type=int, default=0); p.add_argument('--edelay', type=int, default=0); p.add_argument('--finsent', action='store_true'); p.add_argument('--asleep', type=int, default=0); p.add_argument('--h0only', action='store_true'); p.add_argument('--msleep', type=int, default=4); p.add_argument('--ssleep', type=int, default=8); p.add_argument('--qsent', type=int, default=0); p.add_argument('--asent', type=int, default=0); p.add_argument('--asent-thr', type=int, default=24); p.add_argument('--msent', type=int, default=0); p.add_argument('--zshort', action='store_true'); p.add_argument('--x-noslow', action='store_true'); p.add_argument('--force-slow', action='store_true'); p.add_argument('--mc', type=int, default=8); p.add_argument('--cc', type=int, default=8); p.add_argument('--boost', type=int, default=0); p.add_argument('--latef', action='store_true'); p.add_argument('--trig', type=int, default=2); p.add_argument('--nw', action='store_true'); p.add_argument('--nowide', action='store_true'); p.add_argument('--nopipe', action='store_true'); p.add_argument('--nocpf', action='store_true'); p.add_argument('--remap', action='store_true'); p.add_argument('--nofast', action='store_true'); p.add_argument('--ext', default=''); p.add_argument('--ng', default=''); p.add_argument('--psleep', default=''); p.add_argument('--dbgmode', action='store_true'); p.add_argument('--vthr', type=int, default=None); p.add_argument('--zfirst', default='')
    args = p.parse_args()
    kv = lambda t: {x.split('=')[0]: int(x.split('=')[1]) for x in t.split(',') if x}
    g = Gen(thr=args.thr, stamps=args.stamps, thr_deep=args.thr_deep, ffn_nt=args.ffn_nt, deep_roles=tuple(x for x in args.deep.split(',') if x),
            x_notile=args.x_notile, x_nopoll=args.x_nopoll, qsleep=args.qsleep, x_nokv=args.x_nokv, depth=kv(args.depth), kthr=kv(args.kthr), late_k=tuple(x for x in args.late.split(',') if x), vthr=args.vthr, zfirst=tuple(x for x in args.zfirst.split(',') if x), ngroups=kv(args.ng), psleep=kv(args.psleep), ext=kv(args.ext))
    g.light = (set(int(x) for x in args.light.split(',')) if args.light else None)
    g.slow = args.slow; g.slow_thr = args.slow_thr
    g.tilelate = tuple(x for x in args.tilelate.split(',') if x)
    g.aflate = args.aflate
    g.csent = args.csent
    g.bsent = args.bsent; g.edelay = args.edelay
    g.finsent = args.finsent
    g.asleep = args.asleep
    g.h0only = args.h0only; g.msleep = args.msleep
    g.ssleep = args.ssleep; g.qsent = args.qsent
    g.asent = args.asent; g.asent_thr = args.asent_thr; g.msent = args.msent
    g.zshort = args.zshort
    g.x_noslow = args.x_noslow
    g.force_slow = args.force_slow
    g.mc = args.mc; g.cc = args.cc
    g.boost = args.boost
    g.latef = args.latef; g.trig_ahead = args.trig
    g.nw = args.nw
    g.wide = not args.nowide
    g.pipe = not args.nopipe
    g.cpf = not args.nocpf
    g.dbgmode = args.dbgmode; g.remap = args.remap; g.fast = not args.nofast
    t, n = g.build()
    open(args.o, 'w').write(t)
    print('wrote', args.o, 'lines', t.count('\n'), 'nops inserted', n)
```

```python
import sys, struct
sys.path.insert(0, 'gen')
from asmdsl import Asm

KNAME = 'adaLN_cond__gqa_block_cached__swiglu_ffn__decode_kernel'

WS_A = 0
WS_SM = 1 << 20
WS_AF = 5 << 20
WS_B = (2 << 20) + 131072
WS_BF = (2 << 20) + 196608
WS_C = WS_SM + 262144
WS_E = WS_SM + 32768
WS_M = (2 << 20) + 262144
WS_Q = (2 << 20) + 16384
WS_ZF = (2 << 20) + 65536
WS_FA = (2 << 20) + 73728
WS_EPOCH = (3 << 20)
WS_STAMP = 4 << 20
WS_SIZE = 8 << 20
L_TILE = 0
NVL = 10
L_VL = 65536
VLS = NVL * 1024
L_ML = L_VL + 8 * VLS
L_QL = L_ML + 256
L_VEC = L_QL + 1024
L_ST = L_VEC + 4096
L_AV = L_ST + 64
L_CNT = L_AV + 64
L_MX = L_CNT + 64
LDS_SIZE = L_MX + 64
assert LDS_SIZE <= 163840

LOG2E = 1.4426950408889634
def f2u(x): return struct.unpack('<I', struct.pack('<f', x))[0]
def hexf(x): return '0x%08x' % f2u(x)
DPPF = 'row_mask:0xf bank_mask:0xf'
POLL_LIMIT = 400000
FAST_TRIES = 64

DESIGN = """; ---------------------------------------------------------------------------------------------------------------
; One persistent launch, one workgroup per CU (generated by my own script, gen/gen2.py).  id -> g = id & 7 (kv head), s = id >> 3.
;   waves 8..11 helpers, role by s: wq (q GEMV), wo (output projection), mod (adaLN GEMV), ffn (gate/up/down), fin (final sum)
;   hand-offs between workgroups go through d_ws: tagged granules (tag derived from an epoch word of d_ws that the launch bumps at
;   its end) or cleared words whose low bit marks them valid; write-through (sc1) stores/loads across XCDs; when the hardware
;   XCC id shows that a whole group sits on one XCD its two inner hand-offs go through that XCD's L2 instead.
; ---------------------------------------------------------------------------------------------------------------"""

class Gen:
    def __init__(self, thr=2, stamps=False, thr_deep=3, ffn_nt=False, qk_extra=True, deep_roles=('ffn',), x_notile=False, x_nopoll=False,
                 qsleep=4, x_nokv=False, depth=None, kthr=None, late_k=(), vthr=None, zfirst=(), ngroups=None, psleep=None, ext=None):
        self.a = Asm(); self.thr = thr; self.stamps = stamps; self.thr_deep = thr_deep; self.ffn_nt = ffn_nt
        self.qk_extra = qk_extra; self.deep_roles = deep_roles; self.x_notile = x_notile; self.x_nopoll = x_nopoll
        self.ext = ext or {}; self.psleep = psleep or {}; self.ngroups = ngroups or {}; self.vthr = vthr; self.zfirst = zfirst; self.depth = depth or {}; self.kthr = kthr or {}; self.late_k = late_k; self.qsleep = qsleep; self.x_nokv = x_nokv
        self.slow = 0; self.slow_thr = 0; self.tilelate = (); self.aflate = False; self.csent = False; self.csent_off = 448; self.bsent = 0; self.edelay = 0; self.finsent = False; self.asleep = 0; self.h0only = False; self.msleep = 4; self.ssleep = 8; self.qsent = 0; self.asent = 0; self.asent_thr = 24; self.msent = 0; self.zshort = False; self.x_noslow = False; self.force_slow = False; self.mc = 8; self.cc = 8; self.x_noafz = False; self.cbf = False; self.cfull = False; self.boost = 0; self.latef = False; self.trig_ahead = 2; self.nw = False; self.wide = True; self.pipe = True; self.cpf = True; self.light = None; self.nlab = 0; self.dbgmode = False; self.remap = False; self.fast = True
    def lab(self, p='L'):
        self.nlab += 1
        return f'{p}_{self.nlab}'
    def srd(self, sd, sp, size):
        a = self.a
        a(f's_mov_b32 s{sd}, s{sp}'); a(f's_and_b32 s{sd+1}, s{sp+1}, 0xffff')
        a(f's_mov_b32 s{sd+2}, {size}'); a(f's_mov_b32 s{sd+3}, 0x00020000')
    def stamp(self, k):
        if not self.stamps: return
        if self.light is not None and k not in self.light: return
        a = self.a
        if self.nw:
            j = sorted(self.light).index(k)
            a(f's_memrealtime s[{84+2*j}:{85+2*j}]')
            return
        a('s_memrealtime s[70:71]'); a('s_waitcnt lgkmcnt(0)'); a(f's_mov_b32 s{84+k}, s70')
    def stamp_init(self):
        if not self.stamps: return
        for k in range(18 if self.nw else 16): self.a(f's_mov_b32 s{84+k}, 0')
    def stamp_flush(self, helper=False):
        if not self.stamps: return
        a = self.a
        if self.dbgmode:
            L = self.lab('L_nodbg')
            self.srd(44, 32, 256)
            a('s_mov_b64 exec, 1'); a('v_mov_b32 v1, 0')
            if helper:
                a('s_cmp_lg_u32 s2, 232'); a(f's_cbranch_scc1 {L}'); a('s_cmp_lg_u32 s3, 8'); a(f's_cbranch_scc1 {L}')
                lst = [(k, 8 + i) for i, k in enumerate((0, 2, 3, 6, 7, 8, 9, 11))]
            else:
                a('s_cmp_lg_u32 s2, 0'); a(f's_cbranch_scc1 {L}'); a('s_cmp_lg_u32 s3, 0'); a(f's_cbranch_scc1 {L}')
                lst = [(k, k) for k in range(8)]
            for k, slot in lst:
                a(f'v_mov_b32 v2, s{84+k}')
                a(f'buffer_store_dword v2, v1, s[44:47], 0 offen offset:{4*slot}')
            a('s_waitcnt vmcnt(0)')
            a.label(L)
            return
        a('s_mov_b64 exec, 1')
        a('s_mul_i32 s70, s2, 12'); a('s_add_u32 s70, s70, s3'); a('s_lshl_b32 s70, s70, 6')
        a(f's_add_u32 s70, s70, {WS_STAMP}')
        a('v_mov_b32 v1, 0')
        if self.nw:
            a('s_waitcnt lgkmcnt(0)')
            lst = sorted(self.light)
            for k in range(16):
                if k in lst: a(f'v_mov_b32 v2, s{84+2*lst.index(k)}')
                else: a('v_mov_b32 v2, 0')
                a(f'buffer_store_dword v2, v1, s[40:43], s70 offen offset:{4*k}')
        else:
            for k in range(16):
                a(f'v_mov_b32 v2, s{84+k}')
                a(f'buffer_store_dword v2, v1, s[40:43], s70 offen offset:{4*k}')
        a('s_waitcnt vmcnt(0)')
    def round_pair(self, x, y, t):
        a = self.a
        a(f'v_cvt_pk_bf16_f32 v{t}, v{x}, v{y}')
        a(f'v_lshlrev_b32 v{x}, 16, v{t}')
        a(f'v_and_b32 v{y}, 0xffff0000, v{t}')
    def round_list(self, regs, t):
        for i in range(0, len(regs), 2):
            self.round_pair(regs[i], regs[i+1], t + (i // 2) % 2)
    def round1(self, x, t):
        a = self.a
        a(f'v_cvt_pk_bf16_f32 v{t}, v{x}, v{x}')
        a(f'v_lshlrev_b32 v{x}, 16, v{t}')
    def allreduce(self, regs, op, t, rows_only=False, quad=True, row=True):
        a = self.a
        if not rows_only:
            steps = []
            if quad: steps += ['quad_perm:[1,0,3,2]', 'quad_perm:[2,3,0,1]']
            if row: steps += ['row_half_mirror', 'row_mirror']
            for st in steps:
                for r in regs: a(f'{op}_dpp v{r}, v{r}, v{r} {st} {DPPF}')
        for sw in ('v_permlane16_swap_b32', 'v_permlane32_swap_b32'):
            for k, r in enumerate(regs): a(f'v_mov_b32 v{t+k}, v{r}')
            for k, r in enumerate(regs): a(f'{sw} v{r}, v{t+k}')
            for k, r in enumerate(regs): a(f'{op} v{r}, v{r}, v{t+k}')
    def poll_tail(self, loop_label, sleep=0):
        a = self.a
        if self.x_nopoll: return
        a('s_add_u32 s80, s80, 1'); a(f's_cmp_gt_u32 s80, {POLL_LIMIT}'); a('s_cbranch_scc1 L_abort')
        a('s_cmp_eq_u64 vcc, exec')
        if sleep:
            L = self.lab('L_pk')
            a(f's_cbranch_scc1 {L}'); a(f's_sleep {sleep}'); a(f's_branch {loop_label}'); a.label(L)
        else:
            a(f's_cbranch_scc0 {loop_label}')
    def valid_check(self, regs, t, loop_label, sleep=0):
        a = self.a
        regs = list(regs); cur = regs[0]; i = 1
        while i < len(regs):
            if i + 1 < len(regs):
                a(f'v_min3_u32 v{t}, v{cur}, v{regs[i]}, v{regs[i+1]}'); i += 2
            else:
                a(f'v_min_u32 v{t}, v{cur}, v{regs[i]}'); i += 1
            cur = t
        a(f'v_cmp_ne_u32 vcc, 0, v{cur}')
        self.poll_tail(loop_label, sleep)
    def tag_check(self, regs, t, loop_label, sleep=0, zregs=(), keep=None):
        a = self.a
        regs = list(regs)
        for r in regs: a(f'v_xor_b32 v{r}, s81, v{r}')
        if keep is not None: a(f'v_mov_b32 v{keep[1]}, v{keep[0]}')
        for r in zregs: a(f'v_lshrrev_b32 v{r}, 4, v{r}')
        cur = regs[0]; i = 1
        while i < len(regs):
            if i + 1 < len(regs):
                a(f'v_or3_b32 v{t}, v{cur}, v{regs[i]}, v{regs[i+1]}'); i += 2
            else:
                a(f'v_or_b32 v{t}, v{cur}, v{regs[i]}'); i += 1
            cur = t
        a(f'v_cmp_eq_u32 vcc, 0, v{cur}')
        self.poll_tail(loop_label, sleep)
    def sentinel(self, soff, t, sleep=6):
        a = self.a
        if self.x_nopoll: return
        L = self.lab('L_sn'); L2 = self.lab('L_sn2')
        a(f'v_mov_b32 v{t}, 0'); a(f's_branch {L2}')
        a.label(L); a(f's_sleep {sleep}'); a.label(L2)
        a(f'buffer_load_dword v{t+1}, v{t}, s[40:43], s{soff} offen sc1')
        a('s_waitcnt vmcnt(0)')
        a(f'v_readfirstlane_b32 s82, v{t+1}')
        a('s_add_u32 s80, s80, 1'); a(f's_cmp_gt_u32 s80, {POLL_LIMIT}'); a('s_cbranch_scc1 L_abort')
        a('s_cmp_eq_u32 s82, s81'); a(f's_cbranch_scc0 {L}')
    def poll2(self, issue, nld, regsA, regsB, t, useA, useB, stagger=8):
        a = self.a
        L = self.lab('L_p2'); LA = self.lab('L_p2a'); LB = self.lab('L_p2b'); LD = self.lab('L_p2d')
        def check(regs, ok_label):
            regs = list(regs); cur = regs[0]; i = 1
            while i < len(regs):
                if i + 1 < len(regs):
                    a(f'v_min3_u32 v{t}, v{cur}, v{regs[i]}, v{regs[i+1]}'); i += 2
                else:
                    a(f'v_min_u32 v{t}, v{cur}, v{regs[i]}'); i += 1
                cur = t
            a(f'v_cmp_ne_u32 vcc, 0, v{cur}')
            if self.x_nopoll:
                a(f's_branch {ok_label}'); return
            a('s_add_u32 s80, s80, 1'); a(f's_cmp_gt_u32 s80, {POLL_LIMIT}'); a('s_cbranch_scc1 L_abort')
            a('s_cmp_eq_u64 vcc, exec'); a(f's_cbranch_scc1 {ok_label}')
        issue(regsA[0]); a(f's_sleep {stagger}'); issue(regsB[0])
        a.label(L)
        a(f's_waitcnt vmcnt({nld})'); check(regsA, LA); issue(regsA[0])
        a(f's_waitcnt vmcnt({nld})'); check(regsB, LB); issue(regsB[0])
        a(f's_branch {L}')
        a.label(LA); useA(); a(f's_branch {LD}')
        a.label(LB); useB()
        a.label(LD)
    def quad4(self, src, dst):
        for j in range(4): self.a(f'v_mov_b32_dpp v{dst+j}, v{src} quad_perm:[{j},{j},{j},{j}] {DPPF}')
    def copy_off(self, sreg, n):
        if n == 8: self.a(f's_lshl_b32 s{sreg}, s36, 14')
        elif n == 1: self.a(f's_mov_b32 s{sreg}, 0')
        else:
            self.a(f's_and_b32 s{sreg}, s36, {n-1}'); self.a(f's_lshl_b32 s{sreg}, s{sreg}, 14')
    def rows_exec(self, pat, n):
        r = min(n, 4)
        lo = pat | ((pat << 16) if r >= 2 else 0)
        hi = (pat | (pat << 16)) if r >= 4 else 0
        self.a(f's_mov_b32 exec_lo, {hex(lo)}'); self.a(f's_mov_b32 exec_hi, {hex(hi)}')
    def unpack8(self, src, dst):
        for k in range(4):
            self.a(f'v_lshlrev_b32 v{dst+2*k}, 16, v{src+k}')
            self.a(f'v_and_b32 v{dst+2*k+1}, 0xffff0000, v{src+k}')
    def pack8(self, src, dst):
        for k in range(4): self.a(f'v_cvt_pk_bf16_f32 v{dst+k}, v{src+2*k}, v{src+2*k+1}')
    def dma(self, srd, voff, soff, step, n, lds_s, nt=True, depth=64, first=True):
        a = self.a
        if self.x_notile: return
        ntf = ' nt' if nt else ''
        for i in range(n):
            if (i >= depth) or (not first): a(f's_waitcnt vmcnt({depth - 1})')
            a(f's_add_u32 m0, s{lds_s}, {i*1024}')
            a(f'buffer_load_dwordx4 v{voff}, s[{srd}:{srd+3}], s{soff} offen{ntf} lds')
            if i + 1 < n: a(f's_add_u32 s{soff}, s{soff}, {step}')
    def lds_sync(self, phase, sleep=0):
        a = self.a
        L = self.lab('L_ls')
        a(f'v_mov_b32 v38, {L_CNT}'); a('v_mov_b32 v39, 1')
        a('s_mov_b64 exec, 1'); a('ds_add_u32 v38, v39'); a('s_mov_b64 exec, -1')
        L2 = self.lab('L_ls2')
        if sleep: a(f's_branch {L2}')
        a.label(L)
        if sleep:
            a(f's_sleep {sleep}'); a.label(L2)
        a('ds_read_b32 v39, v38'); a('s_waitcnt lgkmcnt(0)'); a('v_readfirstlane_b32 s82, v39')
        a('s_add_u32 s80, s80, 1'); a(f's_cmp_gt_u32 s80, {POLL_LIMIT}'); a('s_cbranch_scc1 L_abort')
        a(f's_cmp_lt_u32 s82, {4*phase}'); a(f's_cbranch_scc1 {L}')
    def tr_read(self, vaddr, W, n, step, half):
        a = self.a
        for i in range(n):
            a(f'ds_read_b64_tr_b16 v[{W+4*i}:{W+4*i+1}], v{vaddr} offset:{i*step}')
            a(f'ds_read_b64_tr_b16 v[{W+4*i+2}:{W+4*i+3}], v{vaddr} offset:{i*step+half}')
            if (i % 5) == 4: a('s_waitcnt lgkmcnt(4)')
        a('s_waitcnt lgkmcnt(0)')
    def gemv(self, vaddr, W, n, acc, Areg=8, nsets=8):
        a = self.a
        issued = 0
        for i in range(min(nsets, n)):
            a(f'ds_read_b128 v[{Areg+4*i}:{Areg+4*i+3}], v{vaddr} offset:{i*64}'); issued += 1
        for i in range(n):
            a(f's_waitcnt lgkmcnt({issued - i - 1})')
            A = Areg + 4 * (i % nsets); c = acc + 4 * (i % 2)
            src = f'v[{c}:{c+3}]' if i >= 2 else '0'
            a(f'v_mfma_f32_16x16x32_bf16 v[{c}:{c+3}], v[{A}:{A+3}], v[{W+4*i}:{W+4*i+3}], {src}')
            if issued < n:
                a(f'ds_read_b128 v[{A}:{A+3}], v{vaddr} offset:{issued*64}'); issued += 1
        a(f'v_add_f32 v{acc}, v{acc}, v{acc+4}')

    ROLES = {'wq': (0, 8), 'wo': (8, 16), 'mod': (16, 22), 'ffn': (22, 29), 'fin': (29, 32)}
    def attention(self):
        a = self.a; thr = self.thr
        BUF = 40; Q = 8; D = 12; M0 = 3; M1 = 4; TMP = 36
        TREG = [28, 29, 30, 31, 32, 33, 34, 35, 7, 5]
        ng = {r: self.ngroups.get(r, 32) for r in self.ROLES}
        assert sum(ng[r] * (hi - lo) for r, (lo, hi) in self.ROLES.items()) == 1024, ng
        self.stamp(0)
        self.srd(48, 10, 0x4000000); self.srd(52, 12, 0x4000000)
        a('v_bfe_u32 v5, v0, 2, 2'); a('v_lshlrev_b32 v1, 8, v5')
        a('v_lshrrev_b32 v5, 4, v0'); a('v_lshl_add_u32 v1, v5, 6, v1')
        a('v_and_b32 v5, 3, v0'); a('v_lshl_add_u32 v1, v5, 4, v1')
        a('v_lshlrev_b32 v2, 4, v0')
        a(f'v_mov_b32 v{M0}, 0'); a(f'v_mov_b32 v{M1}, 0')
        a('v_mov_b32 v6, 0xffff'); a('v_mov_b32 v7, 0xffff0000')
        a('v_cmp_eq_u32 vcc, 0, v5'); a(f'v_cndmask_b32 v{M0}, v{M0}, v6, vcc')
        a('v_cmp_eq_u32 vcc, 1, v5'); a(f'v_cndmask_b32 v{M0}, v{M0}, v7, vcc')
        a('v_cmp_eq_u32 vcc, 2, v5'); a(f'v_cndmask_b32 v{M1}, v{M1}, v6, vcc')
        a('v_cmp_eq_u32 vcc, 3, v5'); a(f'v_cndmask_b32 v{M1}, v{M1}, v7, vcc')
        a('s_mov_b32 s56, 0xaaaaaaaa'); a('s_mov_b32 s57, 0xaaaaaaaa')
        a('s_mov_b32 s58, 0xcccccccc'); a('s_mov_b32 s59, 0xcccccccc')
        a(f'v_add_u32 v6, {L_QL}, v1')
        a(f's_mul_i32 s63, s3, {VLS}'); a(f's_add_u32 s63, s63, {L_VL}')
        a('s_mov_b32 s80, 0')
        a(f's_add_u32 s78, s34, {WS_EPOCH}'); a('s_addc_u32 s79, s35, 0'); a('s_load_dword s83, s[78:79], 0')
        Li = self.lab('L_noinit')
        a('s_cmp_lg_u32 s3, 0'); a(f's_cbranch_scc1 {Li}')
        for k in range(4): a(f'v_mov_b32 v{8+k}, 0')
        a('v_lshlrev_b32 v12, 2, v0'); a(f'v_add_u32 v12, {L_MX}, v12'); a('v_mov_b32 v13, 0xff800000')
        a('v_cmp_gt_u32 vcc, 4, v0'); a('v_cndmask_b32 v13, v8, v13, vcc')
        a('s_mov_b64 exec, 0x3ff'); a('ds_write_b32 v12, v13'); a('s_mov_b64 exec, -1')
        a('s_waitcnt lgkmcnt(0)')
        a.label(Li)
        variants = {}
        base = 0
        for r, (lo, hi) in self.ROLES.items():
            ext = self.ext.get(r, 0)
            key = (ng[r], self.kthr.get(r, thr), ext, int(ext > 0 and r != 'fin'), int(self.latef and r == 'ffn'))
            variants.setdefault(key, []).append((lo, hi, base))
            base += ng[r] * (hi - lo)
        keys = list(variants)
        nm = lambda key: 'L_att_' + '_'.join(str(x) for x in key)
        for key in keys:
            for (lo, hi, b0) in variants[key]:
                L = self.lab('L_nx')
                a(f's_sub_u32 s62, s37, {lo}'); a(f's_cmp_lt_u32 s62, {hi-lo}'); a(f's_cbranch_scc0 {L}')
                a(f's_mul_i32 s62, s62, {key[0]}'); a(f's_add_u32 s62, s62, {b0}')
                a(f's_branch {nm(key)}')
                a.label(L)
        a('s_branch L_abort')
        for key in keys:
            a.label(nm(key))
            self.att_body(key[0], key[1], BUF, Q, D, TREG, M0, M1, TMP, ext=key[2], chk=key[3], trig=key[4])
            if key != keys[-1]: a('s_branch L_att_done')
        a.label('L_att_done')
        ACC = 12
        self.stamp(5)
        for k in range(8): a(f'v_mul_f32 v{ACC+k}, v160, v{ACC+k}')
        a(f'ds_write_b128 v152, v[{ACC}:{ACC+3}]'); a(f'ds_write_b128 v152, v[{ACC+4}:{ACC+7}] offset:16')
        a('s_waitcnt lgkmcnt(0)')
        a('s_barrier')
        self.stamp(6)
        for i in range(4): a(f'ds_read_b64 v[{24+2*i}:{25+2*i}], v158 offset:{i*VLS}')
        a('ds_read_b32 v14, v159'); a('ds_read_b32 v15, v159 offset:16')
        a('s_waitcnt lgkmcnt(2)')
        a('v_add_f32 v24, v24, v26'); a('v_add_f32 v25, v25, v27'); a('v_add_f32 v28, v28, v30'); a('v_add_f32 v29, v29, v31')
        a('v_add_f32 v12, v24, v28'); a('v_add_f32 v13, v25, v29')
        a('v_mov_b32 v24, v12'); a('v_mov_b32 v25, v13')
        a('s_waitcnt lgkmcnt(0)')
        a('v_rcp_f32 v16, v15'); a('v_log_f32 v17, v15')
        a('v_permlane32_swap_b32 v12, v24'); a('v_permlane32_swap_b32 v13, v25')
        a('v_add_f32 v12, v12, v24'); a('v_add_f32 v13, v13, v25')
        a('s_mov_b32 exec_hi, 0')
        a('v_add_f32 v21, v17, v14'); a('v_mul_f32 v20, v12, v16'); a('v_mul_f32 v22, v13, v16')
        a('v_or_b32 v21, 1, v21'); a('v_or_b32 v20, 1, v20'); a('v_or_b32 v22, 1, v22'); a('v_mov_b32 v23, v21')
        Le = self.lab('L_eslow'); Le2 = self.lab('L_edone')
        a('s_cmp_eq_u32 s75, 0'); a(f's_cbranch_scc1 {Le}')
        a('buffer_store_dwordx4 v[20:23], v157, s[40:43], s67 offen')
        a(f's_branch {Le2}')
        a.label(Le)
        a('buffer_store_dwordx4 v[20:23], v157, s[40:43], s66 offen sc1')
        a('s_mul_i32 s81, s83, 0x9E3779B1'); a('s_add_u32 s81, s81, 0x7F4A7C15')
        a('s_lshl_b32 s62, s36, 3'); a('s_add_u32 s62, s62, s3'); a('s_lshl_b32 s62, s62, 7'); a('s_lshl_b32 s64, s37, 2'); a('s_add_u32 s62, s62, s64')
        a(f's_add_u32 s62, s62, {WS_FA}')
        a('s_waitcnt vmcnt(0)')
        a('s_mov_b64 exec, 1'); a('v_mov_b32 v24, 0'); a('v_mov_b32 v25, s81')
        a('buffer_store_dword v25, v24, s[40:43], s62 offen sc1')
        a.label(Le2)
        self.stamp(7)
        self.stamp_flush()
        a('s_endpgm')

    def att_body(self, n, kth, BUF, Q, D, TREG, M0, M1, TMP, ext=0, chk=0, trig=0):
        a = self.a; thr = self.thr
        nov = max(0, n - 32)
        NV = NVL - nov
        nt = (n + 3) // 4
        NL = NV + ext
        assert n - NL <= 28 and n <= 36 and NL <= n, 'V registers would run into the epilogue registers v152..'
        T = TREG[:nt]
        a('s_lshl_b32 s60, s36, 23'); a('s_lshl_b32 s61, s62, 13'); a('s_add_u32 s60, s60, s61')
        a('s_lshl_b32 s61, s3, 10'); a('s_add_u32 s60, s60, s61'); a('s_mov_b32 s61, s60')
        out = []
        def issue(tag, text):
            if not self.x_nokv: a(text)
            out.append(tag)
        def wait(tag):
            if tag in out:
                k = out.index(tag); m = len(out) - k - 1
                a(f's_waitcnt vmcnt({m})'); del out[:k+1]
        def waitn(m):
            if len(out) > m:
                a(f's_waitcnt vmcnt({m})'); del out[:len(out)-m]
        a('s_barrier')
        for i in range(n):
            if i < 32:
                issue(('K', i), f'buffer_load_dwordx4 v[{BUF+4*i}:{BUF+4*i+3}], v1, s[48:51], s60 offen nt')
            else:
                a(f's_add_u32 m0, s63, {(i-32)*1024}')
                issue(('K', i), f'buffer_load_dwordx4 v1, s[48:51], s60 offen nt lds')
            if i < n - 1: a('s_add_u32 s60, s60, 8192')
            waitn(self.slow_thr if i < self.slow else kth)
        for j in range(NV):
            a(f's_add_u32 m0, s63, {(nov+j)*1024}')
            issue(('V', j), f'buffer_load_dwordx4 v2, s[52:55], s61 offen nt lds')
            a('s_add_u32 s61, s61, 8192')
            waitn(thr if j >= NL - 2 else kth)
        if ext:
            if chk:
                Lc = self.lab('L_tf')
                a(f'v_mov_b32 v12, {L_CNT}')
                a.label(Lc)
                a('ds_read_b32 v13, v12'); a('s_waitcnt lgkmcnt(0)'); a('v_readfirstlane_b32 s62, v13')
                a('s_add_u32 s80, s80, 1'); a(f's_cmp_gt_u32 s80, {POLL_LIMIT}'); a('s_cbranch_scc1 L_abort')
                a('s_cmp_lt_u32 s62, 8'); a(f's_cbranch_scc1 {Lc}')
            a('s_lshl_b32 s65, s3, 13'); a(f's_add_u32 s65, s65, {L_TILE}')
            for e in range(ext):
                a(f's_add_u32 m0, s65, {e*1024}')
                issue(('V', NV + e), f'buffer_load_dwordx4 v2, s[52:55], s61 offen nt lds')
                a('s_add_u32 s61, s61, 8192')
                waitn(thr if NV + e >= NL - 2 else kth)
            a('v_add_u32 v11, s65, v2') if False else None
            a('s_mov_b32 s74, s65')
        self.stamp(1)
        a('s_barrier')
        self.stamp(2)
        a(f'ds_read_b128 v[{Q}:{Q+3}], v6')
        a(f'v_mov_b32 v12, {L_MX + 40}'); a('ds_read_b32 v13, v12')
        if nov:
            a('v_add_u32 v6, s63, v2')
            for k in range(nov): a(f'ds_read_b128 v[{D+4*k}:{D+4*k+3}], v6 offset:{k*1024}') if False else None
        a('s_waitcnt lgkmcnt(0)')
        a('v_readfirstlane_b32 s75, v13')
        nv = [NL]
        vreg = lambda j: BUF + 4 * (j - NL)
        def issueV():
            j = nv[0]
            if j >= n: return
            issue(('V', j), f'buffer_load_dwordx4 v[{vreg(j)}:{vreg(j)+3}], v2, s[52:55], s61 offen nt')
            if j < n - 1: a('s_add_u32 s61, s61, 8192')
            if trig and j == n - 1 - self.trig_ahead:
                Lt = self.lab('L_tg')
                a('s_cmp_lg_u32 s3, 0'); a(f's_cbranch_scc1 {Lt}')
                a('s_mov_b64 exec, 1'); a('ds_write_b32 v162, v163 offset:4'); a('s_mov_b64 exec, -1')
                a.label(Lt)
            nv[0] += 1
        vth = self.vthr if self.vthr is not None else thr
        boosted = [0]
        for t in range(nt):
            us = [u for u in range(4) if 4 * t + u < n]
            if t == 7 and nov:
                pass
            if t == 8:
                for u in us: a(f'ds_read_b128 v[{BUF+4*(28+u)}:{BUF+4*(28+u)+3}], v6 offset:{u*1024}')
                a('s_waitcnt lgkmcnt(0)')
            for u in us:
                i = 4 * t + u
                kr = BUF + 4 * i if i < 32 else BUF + 4 * (28 + u)
                a(f'v_mfma_f32_16x16x32_bf16 v[{D+4*u}:{D+4*u+3}], v[{kr}:{kr+3}], v[{Q}:{Q+3}], 0')
            if t == 0:
                for _ in range(min(4, vth + 1)): issueV()
            elif nv[0] - NL < vth + 1 + (1 if (t >= 4 and self.qk_extra) else 0): issueV()
            elif t in (2, 4, 6)[:self.boost]: issueV(); boosted[0] += 1
            Tt = T[t]
            for x in range(4):
                d = lambda v: D + 4 * (v ^ x) + v
                a(f'v_cndmask_b32 v{TMP+0}, v{d(0)}, v{d(1)}, s[56:57]')
                a(f'v_cndmask_b32 v{TMP+1}, v{d(2)}, v{d(3)}, s[56:57]')
                if x == 0:
                    a(f'v_cndmask_b32 v{Tt}, v{TMP+0}, v{TMP+1}, s[58:59]')
                else:
                    a(f'v_cndmask_b32 v{TMP+2+(x&1)}, v{TMP+0}, v{TMP+1}, s[58:59]')
                    qp = {1: '[1,0,3,2]', 2: '[2,3,0,1]', 3: '[3,2,1,0]'}[x]
                    a(f'v_add_f32_dpp v{Tt}, v{TMP+2+(x&1)}, v{Tt} quad_perm:{qp} {DPPF}')
            if len(us) < 4:
                m = {1: 0xeeeeeeee, 2: 0xcccccccc, 3: 0x88888888}[len(us)]
                a(f's_mov_b32 s64, {hex(m)}'); a(f's_mov_b32 s65, {hex(m)}')
                a(f'v_mov_b32 v{TMP}, 0xfe000000')
                a(f'v_cndmask_b32 v{Tt}, v{Tt}, v{TMP}, s[64:65]')
        self.stamp(3)
        def rnd(regs):
            for i in range(0, len(regs) - 1, 2): self.round_pair(regs[i], regs[i+1], TMP + (i // 2) % 2)
            if len(regs) % 2: self.round1(regs[-1], TMP)
        rnd(T)
        a(f's_mov_b32 s62, {hexf(128 ** -0.5)}')
        for r in T: a(f'v_mul_f32 v{r}, s62, v{r}')
        rnd(T)
        MX = 8; SUM = 9
        a(f'v_max_f32 v{MX}, v{T[0]}, v{T[1]}')
        rest = T[2:]
        for i in range(0, len(rest) - 1, 2): a(f'v_max3_f32 v{MX}, v{MX}, v{rest[i]}, v{rest[i+1]}')
        if len(rest) % 2: a(f'v_max_f32 v{MX}, v{MX}, v{rest[-1]}')
        self.allreduce([MX], 'v_max_f32', TMP, row=False)
        a(f's_mov_b32 s62, {hexf(LOG2E)}')
        a(f'v_mul_f32 v{MX}, s62, v{MX}')
        for r in T: a(f'v_fma_f32 v{r}, v{r}, s62, -v{MX}')
        for r in T: a(f'v_exp_f32 v{r}, v{r}')
        a(f'v_add_f32 v{SUM}, v{T[0]}, v{T[1]}')
        for r in T[2:]: a(f'v_add_f32 v{SUM}, v{SUM}, v{r}')
        for r in T: a(f'v_cvt_pk_bf16_f32 v{r}, v{r}, v{r}')
        self.allreduce([SUM], 'v_add_f32', TMP, row=False)
        a('v_lshlrev_b32 v152, 5, v0'); a('v_add_u32 v152, s63, v152')
        a('v_bfe_u32 v165, v0, 2, 2')
        a('s_lshl_b32 s62, s3, 2'); a(f's_add_u32 s62, s62, {L_ML}')
        a('v_lshlrev_b32 v153, 5, v165'); a('v_add_u32 v153, s62, v153')
        a('v_lshlrev_b32 v154, 2, v165'); a(f'v_add_u32 v154, {L_MX}, v154')
        a('v_lshrrev_b32 v165, 4, v0')
        a('v_lshlrev_b32 v155, 5, v165'); a('v_add_u32 v155, s62, v155')
        a('v_lshlrev_b32 v156, 2, v165'); a(f'v_add_u32 v156, {L_MX}, v156')
        a('v_and_b32 v166, 0x33, v0'); a('v_cmp_eq_u32 s[68:69], 0, v166')
        a(f'v_mov_b32 v162, {L_MX + 32}'); a('v_mov_b32 v163, 1')
        a('s_mov_b64 exec, s[68:69]')
        a(f'ds_write_b32 v153, v{MX}'); a(f'ds_max_f32 v154, v{MX}')
        a('s_mov_b64 exec, 1'); a('ds_add_u32 v162, v163'); a('s_mov_b64 exec, -1')
        a('v_and_b32 v166, 15, v0')
        a('v_lshrrev_b32 v157, 2, v166'); a('v_lshlrev_b32 v157, 12, v157')
        a('v_and_b32 v167, 3, v166'); a('v_lshl_add_u32 v157, v167, 5, v157'); a('v_and_b32 v164, 1, v165'); a('v_lshl_add_u32 v157, v164, 4, v157')
        a('v_and_b32 v158, 1, v166'); a('v_lshlrev_b32 v158, 4, v158'); a('v_lshl_add_u32 v158, v164, 3, v158')
        a('v_lshrrev_b32 v159, 2, v166'); a('v_lshl_add_u32 v158, v159, 6, v158')
        a('v_lshrrev_b32 v159, 1, v167'); a('v_lshl_add_u32 v158, v159, 5, v158')
        a('v_lshrrev_b32 v159, 5, v0'); a(f's_mov_b32 s62, {4*VLS}'); a('v_mul_lo_u32 v159, v159, s62'); a('v_add_u32 v158, v158, v159')
        a('s_lshr_b32 s62, s3, 1'); a('s_lshl_b32 s62, s62, 9'); a('s_and_b32 s64, s3, 1'); a('s_lshl_b32 s64, s64, 8'); a('s_add_u32 s62, s62, s64')
        a(f's_add_u32 s62, s62, {L_VL}'); a('v_add_u32 v158, s62, v158')
        a('s_lshr_b32 s62, s3, 1'); a('s_lshl_b32 s62, s62, 2'); a(f's_add_u32 s62, s62, {L_MX}'); a('v_mov_b32 v159, s62')
        a('s_lshl_b32 s66, s36, 5'); a('s_lshl_b32 s62, s3, 2'); a('s_add_u32 s66, s66, s62')
        a('s_lshl_b32 s66, s66, 5'); a('s_add_u32 s66, s66, s37'); a('s_lshl_b32 s66, s66, 7'); a(f's_add_u32 s67, s66, {WS_AF}')
        self.stamp(4)
        ACC = 12; AOP = 20; VT = [24, 36]; VA = 10
        a(f'v_add_u32 v{VA}, s63, v2')
        if ext: a('v_add_u32 v11, s74, v2')
        for j in range(NL): wait(('V', j))
        def lds_v(i, dst):
            if i < NV: a(f'ds_read_b128 v[{dst}:{dst+3}], v{VA} offset:{(nov+i)*1024}')
            else: a(f'ds_read_b128 v[{dst}:{dst+3}], v11 offset:{(i-NV)*1024}')
        lds_v(0, VT[0])
        istep = max(NL, n - 6)
        for i in range(n):
            t = i >> 2; u = i & 3
            A = AOP + 2 * (i & 1)
            if i == istep:
                Ls = self.lab('L_cm')
                a.label(Ls)
                a('ds_read_b32 v161, v162'); a('s_waitcnt lgkmcnt(0)'); a('v_readfirstlane_b32 s62, v161')
                a('s_add_u32 s80, s80, 1'); a(f's_cmp_gt_u32 s80, {POLL_LIMIT}'); a('s_cbranch_scc1 L_abort')
                a('s_cmp_lt_u32 s62, 8'); a(f's_cbranch_scc1 {Ls}')
                a('ds_read_b32 v160, v155'); a('ds_read_b32 v161, v156'); a('ds_read_b32 v164, v154'); a('s_waitcnt lgkmcnt(0)')
                a('v_sub_f32 v160, v160, v161'); a(f'v_sub_f32 v164, v{MX}, v164')
                a('v_exp_f32 v160, v160'); a('v_exp_f32 v164, v164')
                a(f'v_mul_f32 v164, v{SUM}, v164')
                a('s_mov_b64 exec, s[68:69]'); a('ds_add_f32 v154, v164 offset:16'); a('s_mov_b64 exec, -1')
            a(f'v_and_b32_dpp v{A}, v{T[t]}, v{M0} quad_perm:[{u},{u},{u},{u}] {DPPF}')
            a(f'v_and_b32_dpp v{A+1}, v{T[t]}, v{M1} quad_perm:[{u},{u},{u},{u}] {DPPF}')
            if i < NL:
                vb = VT[i & 1]
                if i + 1 < NL:
                    lds_v(i + 1, VT[(i + 1) & 1]); a('s_waitcnt lgkmcnt(1)')
                else:
                    a('s_waitcnt lgkmcnt(0)')
            else:
                wait(('V', i))
                if boosted[0] > 0: boosted[0] -= 1
                else: issueV()
                vb = vreg(i)
            c1 = f'v[{ACC}:{ACC+3}]' if i else '0'
            c2 = f'v[{ACC+4}:{ACC+7}]' if i else '0'
            a(f'v_mfma_f32_16x16x16_bf16 v[{ACC}:{ACC+3}], v[{A}:{A+1}], v[{vb}:{vb+1}], {c1}')
            a(f'v_mfma_f32_16x16x16_bf16 v[{ACC+4}:{ACC+7}], v[{A}:{A+1}], v[{vb+2}:{vb+3}], {c2}')

    def helper(self):
        a = self.a
        W1 = 40; W2 = 104; ACC = 104
        a('s_sub_u32 s38, s3, 8')
        self.stamp(0)
        a('s_mov_b32 s80, 0')
        a(f's_add_u32 s78, s34, {WS_EPOCH}'); a('s_addc_u32 s79, s35, 0')
        a('s_load_dword s83, s[78:79], 0')
        a('s_getreg_b32 s57, hwreg(HW_REG_XCC_ID)'); a('s_and_b32 s57, s57, 15')
        a('v_and_b32 v1, 15, v0'); a('v_lshrrev_b32 v2, 4, v0')
        Lz = self.lab('L_noinit')
        a('s_cmp_lg_u32 s38, 0'); a(f's_cbranch_scc1 {Lz}')
        a(f'v_mov_b32 v38, {L_CNT}'); a('v_mov_b32 v39, 0'); a('ds_write_b32 v38, v39')
        a.label(Lz)
        a('s_lshl_b32 s67, s38, 10'); a(f's_add_u32 s67, s67, {L_VEC}')
        a('v_lshlrev_b32 v4, 4, v2'); a('v_add_u32 v4, s67, v4')
        a('v_lshlrev_b32 v5, 4, v0'); a('v_add_u32 v5, s67, v5')
        a('s_cmp_lt_u32 s37, 8'); a('s_cbranch_scc1 L_role_wq')
        a('s_cmp_lt_u32 s37, 16'); a('s_cbranch_scc1 L_role_wo')
        a('s_cmp_lt_u32 s37, 22'); a('s_cbranch_scc1 L_role_mod')
        a('s_cmp_lt_u32 s37, 29'); a('s_cbranch_scc1 L_role_ffn')
        a('s_branch L_role_fin')

        def h0_begin():
            L = self.lab('L_h0e')
            a('s_cmp_lg_u32 s38, 0'); a(f's_cbranch_scc1 {L}')
            return L
        def barrier0():
            a('s_waitcnt lgkmcnt(0)')
            a('s_barrier')
        def get_tag():
            a('s_waitcnt lgkmcnt(0)')
            a('s_mul_i32 s81, s83, 0x9E3779B1'); a('s_add_u32 s81, s81, 0x7F4A7C15')
        def zero_stores(role):
            L = h0_begin()
            for k in range(4): a(f'v_mov_b32 v{8+k}, 0')
            a('v_lshlrev_b32 v6, 4, v0')
            def zero_inbox(add):
                a('s_lshl_b32 s60, s36, 5'); a('s_add_u32 s60, s60, s37')
                if add: a(f's_add_u32 s60, s60, {add}')
                a('s_lshl_b32 s60, s60, 12')
                a(f's_add_u32 s60, s60, {WS_AF}')
                if not self.x_noafz:
                    for k in range(4): a(f'buffer_store_dwordx4 v[8:11], v6, s[40:43], s60 offen offset:{1024*k}')
            if not (self.latef and role == 'ffn'): zero_inbox(0)
            if self.latef and role == 'wq':
                Lz2 = self.lab('L_z2')
                a('s_cmp_ge_u32 s37, 7'); a(f's_cbranch_scc1 {Lz2}')
                zero_inbox(22)
                a.label(Lz2)
            if role == 'ffn':
                a('s_mul_i32 s60, s36, 7'); a('s_add_u32 s60, s60, s37'); a('s_sub_u32 s60, s60, 22'); a('s_lshl_b32 s60, s60, 11')
                a(f's_add_u32 s60, s60, {WS_E}')
                a('buffer_store_dwordx4 v[8:11], v6, s[40:43], s60 offen sc1')
                a('buffer_store_dwordx4 v[8:11], v6, s[40:43], s60 offen offset:1024 sc1')
            if role == 'wo':
                a('s_lshl_b32 s60, s36, 11'); a('s_sub_u32 s61, s37, 8'); a(f's_lshl_b32 s61, s61, {7 if self.cbf else 8}'); a('s_add_u32 s60, s60, s61')
                a(f's_add_u32 s60, s60, {WS_C}'); a('s_add_u32 s61, s60, 65536')
                a('v_lshlrev_b32 v6, 14, v2'); a('v_lshl_add_u32 v6, v1, 4, v6')
                self.rows_exec(0x00ff if self.cbf else 0xffff, self.cc)
                a('buffer_store_dwordx4 v[8:11], v6, s[40:43], s60 offen sc1')
                if self.cc == 8: a('buffer_store_dwordx4 v[8:11], v6, s[40:43], s61 offen sc1')
            a('s_mov_b64 exec, -1')
            a.label(L)
        def zsignal():
            L = h0_begin()
            a('s_waitcnt vmcnt(0)')
            a('s_lshl_b32 s60, s36, 7'); a('s_lshl_b32 s61, s37, 2'); a('s_add_u32 s60, s60, s61'); a(f's_add_u32 s60, s60, {WS_ZF}')
            a('s_mov_b64 exec, 1')
            a('s_xor_b32 s61, s81, s57')
            a('v_mov_b32 v38, 0'); a('v_mov_b32 v39, s61')
            a('buffer_store_dword v39, v38, s[40:43], s60 offen sc1')
            a('s_mov_b64 exec, -1')
            a.label(L)
        def line_setup(ptr, size, rs, col_s):
            self.srd(48, ptr, size)
            a('v_lshrrev_b32 v158, 3, v0'); a(f's_mov_b32 s61, {rs}'); a('v_mul_lo_u32 v158, v158, s61')
            a('v_and_b32 v7, 7, v0'); a('v_lshl_add_u32 v158, v7, 4, v158')
            a(f's_mul_i32 s61, s38, {128*rs}'); a(f's_add_u32 s72, s{col_s}, s61')
            a('s_lshl_b32 s66, s38, 14'); a(f's_add_u32 s66, s66, {L_TILE}')
            def iss(role):
                if role in self.zfirst:
                    zero_stores(role); get_tag()
                    if not self.zshort: zsignal()
                if role not in self.late_k: barrier0()
                if role in self.zfirst and self.zshort: zsignal()
                self.dma(48, 158, 72, 8 * rs, 16, 66, depth=self.depth.get(role, 64))
                if role in self.late_k: barrier0()
            return iss
        def line_finish():
            self.stamp(1)
            a('s_waitcnt vmcnt(0)')
            self.stamp(12)
            self.lds_sync(1)
            a('v_lshrrev_b32 v3, 2, v1'); a('v_lshl_add_u32 v3, v2, 3, v3'); a('v_lshlrev_b32 v3, 7, v3')
            a('v_and_b32 v7, 3, v0'); a('v_lshl_add_u32 v3, v7, 3, v3')
            a('s_lshl_b32 s61, s38, 5'); a(f's_add_u32 s61, s61, {L_TILE}'); a('v_add_u32 v3, s61, v3')
            self.tr_read(3, W1, 16, 4096, 512)
            a(f'v_mov_b32 v38, {L_CNT}'); a('v_mov_b32 v39, 1')
            a('s_mov_b64 exec, 1'); a('ds_add_u32 v38, v39'); a('s_mov_b64 exec, -1')
            self.stamp(14)
        def publish16(base_s, val, nl=0xffff):
            a(f'v_or_b32 v{val}, 1, v{val}')
            a('v_lshlrev_b32 v6, 2, v1')
            a(f's_mov_b64 exec, {nl}')
            a(f'buffer_store_dword v{val}, v6, s[40:43], s{base_s} offen sc1')
            a('s_mov_b64 exec, -1')
        def publish_tag(base_s, val):
            a(f'v_mov_b32_dpp v{val+1}, v{val} quad_perm:[1,1,3,3] {DPPF}')
            a(f'v_cvt_pk_bf16_f32 v{val}, v{val}, v{val+1}')
            a(f'v_mov_b32 v{val+1}, s81')
            a('v_lshlrev_b32 v6, 2, v1')
            a('s_mov_b64 exec, 0x5555')
            a(f'buffer_store_dwordx2 v[{val}:{val+1}], v6, s[40:43], s{base_s} offen sc1')
            a('s_mov_b64 exec, -1')
        def qgather_and_barrier1():
            L = h0_begin()
            a('s_lshl_b32 s61, s37, 7'); self.copy_off(60, self.mc); a('s_add_u32 s61, s61, s60'); a(f's_add_u32 s61, s61, {WS_M + 4}')
            if self.ssleep: self.sentinel(61, 8, sleep=self.ssleep)
            if self.qsent:
                a('s_and_b32 s61, s37, 15'); a('s_lshl_b32 s61, s61, 7'); a('s_lshl_b32 s60, s36, 11'); a('s_add_u32 s61, s61, s60'); a(f's_add_u32 s61, s61, {WS_Q + 4}')
                self.sentinel(61, 8, sleep=self.qsent)
            self.stamp(2)
            a('s_lshl_b32 s60, s36, 11'); a(f's_add_u32 s60, s60, {WS_Q}')
            Lp = self.lab('L_qp')
            a('v_lshlrev_b32 v6, 5, v0'); a('v_and_b32 v7, 31, v0'); a('v_lshlrev_b32 v7, 2, v7')
            a('s_lshl_b32 s61, s36, 7'); a(f's_add_u32 s61, s61, {WS_ZF}')
            a.label(Lp)
            a('buffer_load_dwordx4 v[8:11], v6, s[40:43], s60 offen sc1')
            a('buffer_load_dwordx4 v[12:15], v6, s[40:43], s60 offen offset:16 sc1')
            a('buffer_load_dword v17, v7, s[40:43], s61 offen sc1')
            a('s_waitcnt vmcnt(0)')
            self.tag_check([9, 11, 13, 15, 17], 16, Lp, sleep=self.qsleep, zregs=(17,), keep=(17, 18))
            a('v_cmp_eq_u32 vcc, s57, v18'); a('s_cmp_eq_u64 vcc, exec'); a('s_cselect_b32 s58, 1, 0')
            if self.force_slow: a('s_mov_b32 s58, 0')
            a('v_mov_b32 v9, v10'); a('v_mov_b32 v10, v12'); a('v_mov_b32 v11, v14')
            a('v_lshlrev_b32 v6, 4, v0'); a(f'v_add_u32 v6, {L_QL}, v6')
            a('ds_write_b128 v6, v[8:11]')
            a(f'v_mov_b32 v12, {L_MX + 40}'); a('v_mov_b32 v13, s58'); a('s_mov_b64 exec, 1'); a('ds_write_b32 v12, v13'); a('s_mov_b64 exec, -1')
            a('s_waitcnt lgkmcnt(0)')
            self.stamp(3)
            a.label(L)
            a('s_barrier')
            a(f'v_mov_b32 v38, {L_MX + 40}'); a('ds_read_b32 v39, v38'); a('s_waitcnt lgkmcnt(0)'); a('v_readfirstlane_b32 s58, v39')
        def two_path(issue, check, fsleep=0, pre_slow=None):
            Ld = self.lab('L_tpd'); Lf = self.lab('L_tpf'); Ls = self.lab('L_tps'); Ls2 = self.lab('L_tps2')
            a('s_cmp_eq_u32 s58, 0'); a(f's_cbranch_scc1 {Ls}')
            a.label(Lf)
            issue(65, 'nt'); a('s_waitcnt vmcnt(0)'); check()
            if not self.x_nopoll:
                a('s_add_u32 s80, s80, 1'); a(f's_cmp_gt_u32 s80, {POLL_LIMIT}'); a('s_cbranch_scc1 L_abort')
                a('s_cmp_eq_u64 vcc, exec'); a(f's_cbranch_scc0 {Lf}')
            a(f's_branch {Ld}')
            a.label(Ls)
            if pre_slow: pre_slow()
            a.label(Ls2)
            issue(64, 'sc1'); a('s_waitcnt vmcnt(0)'); check()
            if not self.x_nopoll:
                a('s_add_u32 s80, s80, 1'); a(f's_cmp_gt_u32 s80, {POLL_LIMIT}'); a('s_cbranch_scc1 L_abort')
                a('s_cmp_eq_u64 vcc, exec'); a(f's_cbranch_scc0 {Ls2}')
            a.label(Ld)
        def b_sentinel():
            if not (self.bsent and not self.x_nopoll and self.fast): return
            Lb = self.lab('L_bs'); Lb2 = self.lab('L_bs2'); Lbd = self.lab('L_bsd')
            a('s_cmp_eq_u32 s58, 0'); a(f's_cbranch_scc1 {Lbd}')
            a('v_and_b32 v28, 31, v0'); a('v_lshlrev_b32 v28, 7, v28'); a('v_add_u32 v28, 4, v28')
            a('s_lshl_b32 s76, s36, 12'); a(f's_add_u32 s76, s76, {WS_BF}'); a('s_mov_b32 s77, 0')
            a(f's_branch {Lb2}')
            a.label(Lb); a(f's_sleep {self.bsent}'); a.label(Lb2)
            a('buffer_load_dword v29, v28, s[40:43], s76 offen nt')
            a('s_waitcnt vmcnt(0)')
            a('v_cmp_eq_u32 vcc, s81, v29')
            a('s_cmp_eq_u64 vcc, exec'); a(f's_cbranch_scc1 {Lbd}')
            a('s_add_u32 s77, s77, 1'); a(f's_cmp_lt_u32 s77, {FAST_TRIES}'); a(f's_cbranch_scc1 {Lb}')
            a.label(Lbd)
        def t1_combine(own=True):
            if own: a('s_mov_b32 s78, s37')
            a('v_lshlrev_b32 v6, 7, v2'); a('v_lshl_add_u32 v6, v1, 3, v6')
            a('s_lshl_b32 s64, s36, 5'); a('s_add_u32 s64, s64, s78'); a('s_lshl_b32 s64, s64, 12'); a(f's_add_u32 s65, s64, {WS_AF}')
            a('s_lshl_b32 s62, s36, 12'); a('s_lshl_b32 s61, s78, 7'); a('s_add_u32 s62, s62, s61')
            a(f's_add_u32 s63, s62, {WS_BF}'); a(f's_add_u32 s62, s62, {WS_B}')
            def a_issue(sb, fl):
                for i in range(8): a(f'buffer_load_dwordx2 v[{8+2*i}:{9+2*i}], v6, s[40:43], s{sb} offen offset:{512*i} {fl}')
            def a_check():
                a('v_min3_u32 v24, v8, v9, v10')
                for r in range(11, 23, 2): a(f'v_min3_u32 v24, v24, v{r}, v{r+1}')
                a('v_min_u32 v24, v24, v23'); a('v_cmp_ne_u32 vcc, 0, v24')
            if self.asent and self.fast and not self.x_nopoll:
                La = self.lab('L_as'); Lad = self.lab('L_asd'); Lal = self.lab('L_asl')
                a('s_cmp_eq_u32 s58, 0'); a(f's_cbranch_scc1 {Lad}')
                a('v_lshlrev_b32 v28, 7, v0'); a('v_add_u32 v28, 4, v28'); a('s_mov_b32 s77, 0')
                a('s_mov_b32 exec_hi, 0')
                a.label(La)
                a('buffer_load_dword v29, v28, s[40:43], s65 offen nt')
                a('s_waitcnt vmcnt(0)')
                a('v_cmp_ne_u32 vcc, 0, v29')
                a('s_add_u32 s77, s77, 1')
                a('s_bcnt1_i32_b64 s76, vcc')
                a(f's_cmp_ge_u32 s76, {self.asent_thr}'); a(f's_cbranch_scc1 {Lad}')
                a(f's_cmp_gt_u32 s77, {POLL_LIMIT}'); a('s_cbranch_scc1 L_abort')
                a(f's_sleep {self.asent}'); a(f's_branch {La}')
                a.label(Lad)
                a('s_mov_b64 exec, -1')
            def a_flags():
                Lq = self.lab('L_fa')
                a('s_lshl_b32 s76, s36, 3'); a('s_lshr_b32 s77, s78, 2'); a('s_add_u32 s76, s76, s77'); a('s_lshl_b32 s76, s76, 7'); a(f's_add_u32 s76, s76, {WS_FA}')
                a('v_and_b32 v28, 31, v0'); a('v_lshlrev_b32 v28, 2, v28')
                a.label(Lq)
                a('buffer_load_dword v29, v28, s[40:43], s76 offen sc1'); a('s_waitcnt vmcnt(0)')
                a('v_cmp_eq_u32 vcc, s81, v29')
                if not self.x_nopoll:
                    a('s_add_u32 s80, s80, 1'); a(f's_cmp_gt_u32 s80, {POLL_LIMIT}'); a('s_cbranch_scc1 L_abort')
                    a('s_cmp_eq_u64 vcc, exec'); a(f's_cbranch_scc0 {Lq}')
            two_path(a_issue, a_check, pre_slow=a_flags)
            self.stamp(6)
            a('v_max3_f32 v24, v9, v11, v13'); a('v_max3_f32 v24, v24, v15, v17'); a('v_max3_f32 v24, v24, v19, v21')
            a('v_max_f32 v24, v24, v23')
            self.allreduce([24], 'v_max_f32', 26, rows_only=True)
            for i in range(8): a(f'v_sub_f32 v{9+2*i}, v{9+2*i}, v24')
            for i in range(8): a(f'v_exp_f32 v{9+2*i}, v{9+2*i}')
            a('v_mul_f32 v24, v9, v8'); a('v_mov_b32 v25, v9')
            for i in range(1, 8):
                a(f'v_fmac_f32 v24, v{9+2*i}, v{8+2*i}'); a(f'v_add_f32 v25, v25, v{9+2*i}')
            self.allreduce([24, 25], 'v_add_f32', 26, rows_only=True)
            a('v_rcp_f32 v25, v25'); a('v_lshlrev_b32 v6, 3, v1'); a('v_mul_f32 v24, v24, v25'); a('v_mov_b32 v25, s81')
            a('s_mov_b64 exec, 0xffff')
            Lp1 = self.lab('L_tb'); Lp2 = self.lab('L_tb2')
            a('s_cmp_eq_u32 s58, 0'); a(f's_cbranch_scc1 {Lp1}')
            a('buffer_store_dwordx2 v[24:25], v6, s[40:43], s63 offen'); a(f's_branch {Lp2}')
            a.label(Lp1)
            a('buffer_store_dwordx2 v[24:25], v6, s[40:43], s62 offen sc1')
            a.label(Lp2)
            a('s_mov_b64 exec, -1')
            self.stamp(7)

        a.label('L_role_wq')
        a('s_lshl_b32 s62, s36, 10'); a('s_lshl_b32 s61, s37, 7'); a('s_add_u32 s62, s62, s61')
        iss = line_setup(14, 512 * 4096 * 2, 8192, 62)
        self.srd(52, 8, 1024); a('v_lshlrev_b32 v7, 4, v0')
        a('buffer_load_dwordx4 v[12:15], v7, s[52:55], 0 offen')
        iss('wq'); line_finish(); zero_stores('wq'); get_tag()
        X = 16
        if self.h0only: Lh = h0_begin()
        self.unpack8(12, X)
        a(f'v_add_f32 v24, v{X}, v{X+1}')
        for k in range(2, 8): a(f'v_add_f32 v24, v24, v{X+k}')
        self.allreduce([24], 'v_add_f32', 26)
        a(f'v_mul_f32 v24, {hexf(1/512)}, v24')
        for k in range(8): a(f'v_sub_f32 v{28+k}, v{X+k}, v24')
        a('v_mul_f32 v25, v28, v28')
        for k in range(1, 8): a(f'v_fmac_f32 v25, v{28+k}, v{28+k}')
        self.allreduce([25], 'v_add_f32', 26)
        a(f'v_mul_f32 v25, {hexf(1/512)}, v25')
        self.round_pair(24, 25, 26)
        a(f'v_add_f32 v25, {hexf(1e-5)}, v25'); self.round1(25, 26)
        a('v_sqrt_f32 v25, v25'); self.round1(25, 26)
        a('v_rcp_f32 v27, v25')
        for k in range(8): a(f'v_sub_f32 v{X+k}, v{X+k}, v24')
        self.round_list(list(range(X, X+8)), 28)
        for k in range(8): a(f'v_mul_f32 v{28+k}, v{X+k}, v27')
        for k in range(8): a(f'v_fma_f32 v{X+k}, -v{28+k}, v25, v{X+k}')
        for k in range(8): a(f'v_fma_f32 v{X+k}, v{X+k}, v27, v{28+k}')
        self.round_list(list(range(X, X+8)), 26)
        zsignal()
        self.stamp(4)
        if self.msent:
            a('s_lshl_b32 s61, s37, 2'); a('s_add_u32 s61, s61, 3'); a('s_lshl_b32 s61, s61, 7'); self.copy_off(60, self.mc); a('s_add_u32 s61, s61, s60'); a(f's_add_u32 s61, s61, {WS_M + 4}')
            self.sentinel(61, 8, sleep=self.msent)
        Lp = self.lab('L_mp')
        a('v_lshlrev_b32 v6, 5, v0'); self.copy_off(60, self.mc); a(f's_add_u32 s60, s60, {WS_M}')
        a.label(Lp)
        a('buffer_load_dwordx4 v[104:107], v6, s[40:43], s60 offen sc1')
        a('buffer_load_dwordx4 v[108:111], v6, s[40:43], s60 offen offset:16 sc1')
        a('buffer_load_dwordx4 v[112:115], v6, s[40:43], s60 offen offset:2048 sc1')
        a('buffer_load_dwordx4 v[116:119], v6, s[40:43], s60 offen offset:2064 sc1')
        a('s_waitcnt vmcnt(0)')
        self.tag_check([105, 107, 109, 111, 113, 115, 117, 119], 8, Lp, sleep=self.msleep)
        self.stamp(5)
        for k in range(8):
            a(f'v_lshlrev_b32 v{24+2*k}, 16, v{104+2*k}'); a(f'v_and_b32 v{25+2*k}, 0xffff0000, v{104+2*k}')
        for k in range(8): a(f'v_add_f32 v{32+k}, 1.0, v{32+k}')
        self.round_list(list(range(32, 40)), 8)
        for k in range(8): a(f'v_mul_f32 v{X+k}, v{X+k}, v{32+k}')
        self.round_list(list(range(X, X+8)), 8)
        for k in range(8): a(f'v_add_f32 v{X+k}, v{X+k}, v{24+k}')
        self.pack8(X, 8)
        a('ds_write_b128 v5, v[8:11]'); a('s_waitcnt lgkmcnt(0)')
        if self.h0only:
            a.label(Lh)
            self.lds_sync(3, sleep=2)
            a('v_lshlrev_b32 v4, 4, v2'); a(f'v_add_u32 v4, {L_VEC}, v4')
        self.gemv(4, W1, 16, ACC)
        a('s_lshl_b32 s60, s36, 11'); a('s_lshl_b32 s61, s37, 8'); a('s_add_u32 s60, s60, s61')
        a('s_lshl_b32 s61, s38, 6'); a('s_add_u32 s60, s60, s61'); a(f's_add_u32 s60, s60, {WS_Q}')
        publish_tag(60, ACC)
        self.stamp(8)
        qgather_and_barrier1()
        a('s_branch L_tail_plain')

        a.label('L_role_wo')
        a('s_lshl_b32 s62, s36, 19'); a('s_sub_u32 s61, s37, 8'); a('s_lshl_b32 s61, s61, 7'); a('s_add_u32 s62, s62, s61')
        iss = line_setup(16, 4096 * 512 * 2, 1024, 62)
        if 'wo' in self.tilelate:
            barrier0(); zero_stores('wo'); get_tag(); zsignal()
            qgather_and_barrier1()
            self.dma(48, 158, 72, 8 * 1024, 16, 66, depth=self.depth.get('wo', 64))
            line_finish()
        else:
            iss('wo')
            if 'wo' not in self.zfirst: zero_stores('wo'); get_tag()
            line_finish()
            if 'wo' not in self.zfirst: zsignal()
            qgather_and_barrier1()
        a('s_barrier')
        L = h0_begin()
        t1_combine()
        a('v_lshlrev_b32 v6, 6, v0'); a('s_lshl_b32 s64, s36, 12'); a(f's_add_u32 s65, s64, {WS_BF}'); a(f's_add_u32 s64, s64, {WS_B}')
        def b_issue(sb, fl):
            for i in range(4): a(f'buffer_load_dwordx4 v[{8+4*i}:{11+4*i}], v6, s[40:43], s{sb} offen offset:{16*i} {fl}')
        def b_check():
            for r in range(9, 24, 2): a(f'v_xor_b32 v{r}, s81, v{r}')
            a('v_or3_b32 v24, v9, v11, v13'); a('v_or3_b32 v24, v24, v15, v17'); a('v_or3_b32 v24, v24, v19, v21'); a('v_or_b32 v24, v24, v23')
            a('v_cmp_eq_u32 vcc, 0, v24')
        two_path(b_issue, b_check)
        self.stamp(8)
        a('v_cvt_pk_bf16_f32 v16, v8, v10') if False else None
        a('v_cvt_pk_bf16_f32 v24, v8, v10'); a('v_cvt_pk_bf16_f32 v25, v12, v14'); a('v_cvt_pk_bf16_f32 v26, v16, v18'); a('v_cvt_pk_bf16_f32 v27, v20, v22')
        a('v_lshlrev_b32 v6, 4, v0'); a(f'v_add_u32 v6, {L_VEC}, v6')
        a('ds_write_b128 v6, v[24:27]'); a('s_waitcnt lgkmcnt(0)')
        a.label(L)
        a('v_lshlrev_b32 v4, 4, v2'); a(f'v_add_u32 v4, {L_VEC}, v4')
        sh = 1 if self.cbf else 0
        a('s_lshl_b32 s60, s36, 11'); a('s_sub_u32 s61, s37, 8'); a(f's_lshl_b32 s61, s61, {8-sh}'); a('s_add_u32 s60, s60, s61')
        a(f's_lshl_b32 s61, s38, {6-sh}'); a('s_add_u32 s60, s60, s61'); a(f's_add_u32 s60, s60, {WS_C}')
        a('s_add_u32 s61, s60, 65536'); a('v_lshlrev_b32 v7, 14, v2'); a(f'v_lshl_add_u32 v7, v1, {2-sh}, v7')
        a('s_barrier')
        self.gemv(4, W1, 16, ACC)
        if self.cbf:
            a(f'v_mov_b32_dpp v{ACC+1}, v{ACC} quad_perm:[1,1,3,3] {DPPF}')
            a(f'v_cvt_pk_bf16_f32 v{ACC}, v{ACC}, v{ACC+1}')
            a(f'v_max_u32 v{ACC}, 1, v{ACC}')
            a(f'v_mov_b32_dpp v8, v{ACC} quad_perm:[0,0,0,0] {DPPF}'); a(f'v_mov_b32_dpp v9, v{ACC} quad_perm:[2,2,2,2] {DPPF}')
            self.rows_exec(0x1111, self.cc)
            a('buffer_store_dwordx2 v[8:9], v7, s[40:43], s60 offen sc1')
            if self.cc == 8: a('buffer_store_dwordx2 v[8:9], v7, s[40:43], s61 offen sc1')
        elif self.cfull:
            a(f'v_or_b32 v{ACC}, 1, v{ACC}')
            a('s_lshl_b32 s62, s38, 6'); a(f's_add_u32 s62, s62, {L_AV}x') if False else None
            a('v_lshlrev_b32 v8, 2, v1'); a('s_lshl_b32 s62, s38, 6'); a(f's_add_u32 s62, s62, {L_VEC + 2048}'); a('v_add_u32 v8, s62, v8')
            a('s_mov_b64 exec, 0xffff'); a(f'ds_write_b32 v8, v{ACC}'); a('s_mov_b64 exec, -1')
            a('s_waitcnt lgkmcnt(0)')
            a('s_barrier')
            a('s_cmp_lg_u32 s38, 0'); a('s_cbranch_scc1 L_hend')
            a('v_lshlrev_b32 v8, 4, v1'); a(f'v_add_u32 v8, {L_VEC + 2048}, v8')
            a('ds_read_b128 v[12:15], v8')
            a('v_lshlrev_b32 v7, 14, v2'); a('v_lshl_add_u32 v7, v1, 4, v7')
            self.rows_exec(0xffff, self.cc)
            a('s_waitcnt lgkmcnt(0)')
            a('buffer_store_dwordx4 v[12:15], v7, s[40:43], s60 offen sc1')
            if self.cc == 8: a('buffer_store_dwordx4 v[12:15], v7, s[40:43], s61 offen sc1')
        else:
            a(f'v_or_b32 v{ACC}, 1, v{ACC}')
            self.quad4(ACC, 8)
            self.rows_exec(0x1111, self.cc)
            a('buffer_store_dwordx4 v[8:11], v7, s[40:43], s60 offen sc1')
            if self.cc == 8: a('buffer_store_dwordx4 v[8:11], v7, s[40:43], s61 offen sc1')
        self.stamp(9)
        a('s_branch L_hend')

        a.label('L_role_mod')
        a('s_mul_i32 s62, s36, 768'); a('s_sub_u32 s61, s37, 16'); a('s_lshl_b32 s61, s61, 7'); a('s_add_u32 s62, s62, s61')
        a('s_lshr_b32 s68, s62, 1'); a('s_lshl_b32 s61, s38, 4'); a('s_add_u32 s68, s68, s61')
        iss = line_setup(28, 512 * 3072 * 2, 6144, 62)
        self.srd(52, 26, 1024); a('v_lshlrev_b32 v7, 4, v0')
        a('buffer_load_dwordx4 v[12:15], v7, s[52:55], 0 offen')
        iss('mod'); line_finish(); zero_stores('mod'); get_tag()
        X = 16
        self.unpack8(12, X)
        a(f's_mov_b32 s61, {hexf(-LOG2E)}')
        for k in range(8): a(f'v_mul_f32 v{24+k}, s61, v{X+k}')
        a(f's_mov_b32 s62, {hexf(126.0)}')
        for k in range(8): a(f'v_min_f32 v{24+k}, s62, v{24+k}')
        for k in range(8): a(f'v_exp_f32 v{24+k}, v{24+k}')
        for k in range(8): a(f'v_add_f32 v{24+k}, 1.0, v{24+k}')
        for k in range(8): a(f'v_rcp_f32 v{32+k}, v{24+k}')
        for k in range(8): a(f'v_fma_f32 v{24+k}, -v{24+k}, v{32+k}, 1.0')
        for k in range(8): a(f'v_fma_f32 v{24+k}, v{24+k}, v{32+k}, v{32+k}')
        for k in range(8): a(f'v_mul_f32 v{X+k}, v{X+k}, v{24+k}')
        self.pack8(X, 8)
        a('ds_write_b128 v5, v[8:11]'); a('s_waitcnt lgkmcnt(0)')
        self.gemv(4, W1, 16, ACC)
        a('s_lshl_b32 s60, s68, 2'); a(f's_add_u32 s60, s60, {WS_M}'); a('s_add_u32 s61, s60, 65536')
        a(f'v_mov_b32_dpp v{ACC+1}, v{ACC} quad_perm:[1,1,3,3] {DPPF}')
        a(f'v_cvt_pk_bf16_f32 v{ACC}, v{ACC}, v{ACC+1}')
        a(f'v_mov_b32 v{ACC+1}, s81')
        a('v_lshlrev_b32 v6, 14, v2'); a('v_lshl_add_u32 v6, v1, 2, v6')
        self.rows_exec(0x5555, self.mc)
        a(f'buffer_store_dwordx2 v[{ACC}:{ACC+1}], v6, s[40:43], s60 offen sc1')
        if self.mc == 8: a(f'buffer_store_dwordx2 v[{ACC}:{ACC+1}], v6, s[40:43], s61 offen sc1')
        a('s_mov_b64 exec, -1')
        self.stamp(8)
        zsignal()
        qgather_and_barrier1()
        a('s_mov_b32 s75, 3')
        a('s_cmp_eq_u32 s37, 21'); a('s_cbranch_scc1 L_fin_common')
        a('s_branch L_tail_plain')

        a.label('L_role_fin')
        if self.cpf:
            Lc = self.lab('L_nocpf'); Ll = self.lab('L_cpf')
            a('s_cmp_eq_u32 s38, 0'); a(f's_cbranch_scc1 {Lc}')
            a('s_getpc_b64 s[60:61]')
            a.label('L_pc_here')
            a(f's_sub_u32 s60, s60, L_pc_here-{KNAME}'); a('s_subb_u32 s61, s61, 0')
            a('s_sub_u32 s62, s38, 1'); a('s_lshl_b32 s62, s62, 12')
            a('v_lshlrev_b32 v6, 6, v0')
            a.label(Ll)
            a('v_add_u32 v7, s62, v6'); a(f'v_min_u32 v7, L_code_end-{KNAME}-4, v7')
            a('global_load_dword v8, v7, s[60:61]')
            a('s_add_u32 s62, s62, 12288'); a(f's_cmp_lt_u32 s62, L_code_end-{KNAME}'); a(f's_cbranch_scc1 {Ll}')
            a.label(Lc)
        if 'fin' in self.zfirst and self.zshort:
            zero_stores('fin'); get_tag(); barrier0(); zsignal()
        elif 'fin' in self.zfirst:
            zero_stores('fin'); get_tag(); zsignal(); barrier0()
        else:
            barrier0(); zero_stores('fin'); get_tag(); zsignal()
        qgather_and_barrier1()
        a('s_sub_u32 s75, s37, 29')
        a.label('L_fin_common')
        L = h0_begin()
        a('s_lshl_b32 s69, s36, 6'); a('s_lshl_b32 s61, s75, 4'); a('s_add_u32 s69, s69, s61')
        self.srd(52, 8, 1024)
        a('v_lshlrev_b32 v6, 1, v1'); a('s_lshl_b32 s60, s69, 1')
        a('buffer_load_ushort v160, v6, s[52:55], s60 offen')
        Lp = self.lab('L_gp')
        a('v_and_b32 v6, 14, v1'); a('v_lshlrev_b32 v6, 2, v6'); a('s_lshl_b32 s60, s69, 2'); self.copy_off(61, self.mc); a('s_add_u32 s60, s60, s61'); a(f's_add_u32 s60, s60, {WS_M}')
        a(f's_add_u32 s61, s60, {1024*4}'); a(f's_add_u32 s60, s60, {2560*4}')
        a('v_lshrrev_b32 v7, 3, v0'); a('v_lshlrev_b32 v7, 7, v7'); a('v_and_b32 v8, 7, v0')
        a('v_min_u32 v9, 6, v8'); a('v_lshl_add_u32 v15, v9, 2, v7'); a('v_lshl_add_u32 v7, v8, 2, v7')
        a(f's_mov_b32 s62, {WS_ZF + 32}')
        a.label(Lp)
        a('buffer_load_dwordx2 v[8:9], v6, s[40:43], s61 offen sc1')
        a('buffer_load_dwordx2 v[10:11], v6, s[40:43], s60 offen sc1')
        a('buffer_load_dword v13, v7, s[40:43], s62 offen sc1')
        a('buffer_load_dword v14, v15, s[40:43], s62 offen offset:56 sc1')
        a('s_waitcnt vmcnt(0)')
        self.tag_check([9, 11, 13, 14], 12, Lp, sleep=8, zregs=(13, 14))
        a('v_lshlrev_b32 v160, 16, v160')
        a('v_and_b32 v12, 1, v0'); a('v_cmp_eq_u32 vcc, 1, v12')
        a('v_lshlrev_b32 v161, 16, v8'); a('v_and_b32 v8, 0xffff0000, v8'); a('v_cndmask_b32 v161, v161, v8, vcc')
        a('v_lshlrev_b32 v162, 16, v10'); a('v_and_b32 v10, 0xffff0000, v10'); a('v_cndmask_b32 v162, v162, v10, vcc')
        a.label(L)
        a('s_barrier')
        a('s_cmp_lg_u32 s38, 0'); a('s_cbranch_scc1 L_hend')
        t1_combine()
        if self.finsent: b_sentinel()
        Lp = self.lab('L_cp')
        if self.cbf:
            a('v_and_b32 v6, 14, v1'); a('v_lshlrev_b32 v6, 1, v6'); a('s_lshl_b32 s60, s69, 1')
        else:
            a('v_lshlrev_b32 v6, 2, v1'); a('s_lshl_b32 s60, s69, 2')
        self.copy_off(61, self.cc); a('s_add_u32 s60, s60, s61'); a(f's_add_u32 s60, s60, {WS_C}')
        a(f's_add_u32 s61, s60, 4096'); a(f's_add_u32 s62, s60, 8192'); a(f's_add_u32 s63, s60, 12288')
        a.label(Lp)
        for gp in range(8): a(f'buffer_load_dword v{8+gp}, v6, s[40:43], s{60+gp//2} offen offset:{2048*(gp&1)} sc1')
        a('s_waitcnt vmcnt(0)')
        self.valid_check(range(8, 16), 16, Lp, sleep=2)
        if self.cbf:
            a('v_and_b32 v16, 1, v0'); a('v_lshlrev_b32 v16, 4, v16'); a('v_sub_u32 v16, 16, v16')
            for gp in range(8):
                a(f'v_lshlrev_b32 v{8+gp}, v16, v{8+gp}'); a(f'v_and_b32 v{8+gp}, 0xffff0000, v{8+gp}')
        a('v_add_f32 v8, v8, v9'); a('v_add_f32 v10, v10, v11'); a('v_add_f32 v12, v12, v13'); a('v_add_f32 v14, v14, v15')
        a('v_add_f32 v8, v8, v10'); a('v_add_f32 v12, v12, v14'); a('v_add_f32 v8, v8, v12')
        a('v_fmac_f32 v160, v161, v8')
        self.stamp(8)
        self.srd(52, 30, 1024)
        a('v_lshlrev_b32 v6, 11, v2'); a('v_lshl_add_u32 v6, v1, 2, v6')
        a('s_lshl_b32 s76, s69, 1')
        a('s_lshl_b32 s60, s69, 2'); a(f's_add_u32 s60, s60, {WS_E}')
        soffs = [60 + i if i < 10 else 72 + (i - 10) for i in range(14)]
        for i in range(1, 14): a(f's_add_u32 s{soffs[i]}, s60, {8192*i}')
        def e_issue(b):
            for i in range(14): a(f'buffer_load_dword v{b+i}, v6, s[40:43], s{soffs[i]} offen sc1')
        def e_use(b):
            def f():
                for st in ((0, 1), (2, 3), (4, 5), (6, 7), (8, 9), (10, 11), (12, 13), (0, 2), (4, 6), (8, 10), (0, 4), (8, 12)):
                    a(f'v_add_f32 v{b+st[0]}, v{b+st[0]}, v{b+st[1]}')
                a(f'v_add_f32 v148, v{b}, v{b+8}')
            return f
        if self.edelay: a(f's_sleep {self.edelay}')
        if self.pipe:
            self.poll2(e_issue, 14, list(range(8, 22)), list(range(24, 38)), 150, e_use(8), e_use(24))
        else:
            Lp = self.lab('L_ep')
            a.label(Lp)
            e_issue(8)
            a('s_waitcnt vmcnt(0)')
            self.valid_check(range(8, 22), 24, Lp, sleep=self.psleep.get('E', 0))
            e_use(8)()
        self.stamp(9)
        self.allreduce([148], 'v_add_f32', 150, rows_only=True)
        self.round1(148, 149)
        a('v_fmac_f32 v160, v162, v148')
        a('v_cvt_pk_bf16_f32 v148, v160, v160')
        a('v_lshlrev_b32 v149, 1, v1')
        a('s_mov_b64 exec, 0xffff')
        a('buffer_store_short v148, v149, s[52:55], s76 offen')
        a('s_lshl_b32 s60, s37, 3'); a('s_add_u32 s60, s60, s36'); a('s_cmp_lg_u32 s60, 232'); a('s_cbranch_scc1 L_hend')
        a('s_add_u32 s83, s83, 1'); a('v_mov_b32 v151, s83'); a('v_mov_b32 v150, 0'); a(f's_mov_b32 s60, {WS_EPOCH}')
        a('s_mov_b64 exec, 1')
        a('buffer_store_dword v151, v150, s[40:43], s60 offen')
        self.stamp(10)
        a('s_branch L_hend')

        WD = 104
        a.label('L_role_ffn')
        if self.latef:
            zero_stores('ffn'); get_tag(); zsignal(); barrier0()
            qgather_and_barrier1()
            a('s_mul_i32 s56, s36, 448'); a('s_sub_u32 s61, s37, 22'); a('s_lshl_b32 s61, s61, 6'); a('s_add_u32 s56, s56, s61')
            a('s_lshr_b32 s68, s56, 1')
            a(f's_mul_i32 s61, s38, {128*3584}'); a('s_add_u32 s56, s56, s61'); a('s_mov_b32 s57, s56')
            a('s_lshl_b32 s58, s38, 13'); a(f's_add_u32 s58, s58, {L_TILE}'); a('s_add_u32 s59, s58, 32768')
            a('v_lshrrev_b32 v158, 2, v0'); a(f's_mov_b32 s61, 3584'); a('v_mul_lo_u32 v158, v158, s61')
            a('v_and_b32 v7, 3, v0'); a('v_lshl_add_u32 v158, v7, 4, v158')
            self.srd(52, 8, 1024)
            a('v_lshlrev_b32 v7, 2, v0'); a('s_lshl_b32 s60, s38, 8')
            a('buffer_load_dword v142, v7, s[52:55], s60 offen')
            Lp = self.lab('L_gp2')
            a('v_lshlrev_b32 v6, 3, v0'); a('s_lshl_b32 s60, s38, 9'); self.copy_off(61, self.mc); a('s_add_u32 s60, s60, s61'); a(f's_add_u32 s60, s60, {WS_M + 1024*4}'); a('s_add_u32 s61, s60, 4096')
            a('v_lshrrev_b32 v7, 3, v0'); a('v_lshlrev_b32 v7, 7, v7'); a('v_and_b32 v8, 7, v0'); a('v_lshl_add_u32 v7, v8, 2, v7')
            a(f's_mov_b32 s62, {WS_ZF + 32}')
            a.label(Lp)
            a('buffer_load_dwordx2 v[8:9], v6, s[40:43], s60 offen sc1')
            a('buffer_load_dwordx2 v[10:11], v6, s[40:43], s60 offen offset:2048 sc1')
            a('buffer_load_dwordx2 v[12:13], v6, s[40:43], s61 offen sc1')
            a('buffer_load_dword v14, v7, s[40:43], s62 offen sc1')
            a('s_waitcnt vmcnt(0)')
            self.tag_check([9, 11, 13, 14], 16, Lp, sleep=8, zregs=(14,))
            for k, r in enumerate((8, 10, 12, 142)):
                a(f'v_and_b32 v{137+2*k}, 0xffff0000, v{r}'); a(f'v_lshlrev_b32 v{136+2*k}, 16, v{r}')
            a('v_add_f32 v140, 1.0, v140'); a('v_add_f32 v141, 1.0, v141'); self.round_pair(140, 141, 16)
            a(f'v_lshlrev_b32 v144, {2 if self.cbf else 3}, v0'); a(f's_lshl_b32 s72, s38, {8 if self.cbf else 9}'); self.copy_off(61, self.cc); a('s_add_u32 s72, s72, s61'); a(f's_add_u32 s72, s72, {WS_C}')
            a('s_add_u32 s73, s72, 4096'); a('s_add_u32 s74, s72, 8192'); a('s_add_u32 s75, s72, 12288')
            a('v_lshlrev_b32 v145, 2, v0'); a('s_lshl_b32 s61, s38, 8'); a(f's_add_u32 s61, s61, {L_VEC}'); a('v_add_u32 v145, s61, v145')
            a('v_lshlrev_b32 v4, 4, v2'); a(f'v_add_u32 v4, {L_VEC}, v4')
            a(f'v_mov_b32 v146, {L_ST}'); a('s_lshl_b32 s61, s38, 3'); a('v_add_u32 v147, s61, v146')
            self.srd(48, 20, 512 * 1792 * 2); self.srd(52, 22, 512 * 1792 * 2)
            Lw = self.lab('L_tw'); Lw2 = self.lab('L_tw2')
            a(f'v_mov_b32 v38, {L_MX + 36}'); a(f's_branch {Lw2}')
            a.label(Lw); a('s_sleep 2'); a.label(Lw2)
            a('ds_read_b32 v39, v38'); a('s_waitcnt lgkmcnt(0)'); a('v_readfirstlane_b32 s82, v39')
            a('s_add_u32 s80, s80, 1'); a(f's_cmp_gt_u32 s80, {POLL_LIMIT}'); a('s_cbranch_scc1 L_abort')
            a('s_cmp_eq_u32 s82, 0'); a(f's_cbranch_scc1 {Lw}')
            self.stamp(1)
            self.dma(48, 158, 56, 16 * 3584, 8, 58, nt=self.ffn_nt)
            self.dma(52, 158, 57, 16 * 3584, 8, 59, nt=self.ffn_nt)
            a('s_barrier')
            a('s_waitcnt vmcnt(0)')
            self.stamp(12)
            self.lds_sync(1)
            a('v_lshrrev_b32 v6, 2, v1'); a('v_lshl_add_u32 v6, v2, 3, v6'); a('v_lshlrev_b32 v6, 6, v6')
            a('v_and_b32 v7, 1, v0'); a('v_lshl_add_u32 v6, v7, 3, v6')
            a('v_bfe_u32 v7, v0, 1, 1'); a('v_lshl_add_u32 v6, v7, 15, v6')
            a('s_lshl_b32 s61, s38, 4'); a(f's_add_u32 s61, s61, {L_TILE}'); a('v_add_u32 v6, s61, v6')
            self.tr_read(6, W1, 16, 2048, 256)
            self.lds_sync(2)
            self.srd(48, 24, 1792 * 512 * 2)
            a('v_lshlrev_b32 v158, 4, v0')
            a('s_lshl_b32 s61, s38, 3'); a('s_add_u32 s56, s68, s61'); a('s_lshl_b32 s56, s56, 10')
            self.dma(48, 158, 56, 1024, 8, 58)
            a('v_lshrrev_b32 v6, 2, v1'); a('v_lshl_add_u32 v6, v2, 3, v6'); a('v_lshlrev_b32 v6, 10, v6')
            a('v_and_b32 v7, 3, v0'); a('v_lshl_add_u32 v6, v7, 3, v6')
            a('s_lshl_b32 s61, s38, 8'); a(f's_add_u32 s61, s61, {L_TILE}'); a('v_add_u32 v159, s61, v6')
            a('s_waitcnt vmcnt(0)')
            self.lds_sync(3)
            self.tr_read(159, WD, 8, 32, 4096)
            self.stamp(14)
        else:
            self.srd(48, 20, 512 * 1792 * 2); self.srd(52, 22, 512 * 1792 * 2)
            a('v_lshrrev_b32 v158, 2, v0'); a(f's_mov_b32 s61, 3584'); a('v_mul_lo_u32 v158, v158, s61')
            a('v_and_b32 v7, 3, v0'); a('v_lshl_add_u32 v158, v7, 4, v158')
            a('s_mul_i32 s72, s36, 448'); a('s_sub_u32 s61, s37, 22'); a('s_lshl_b32 s61, s61, 6'); a('s_add_u32 s72, s72, s61')
            a('s_lshr_b32 s68, s72, 1')
            a(f's_mul_i32 s61, s38, {128*3584}'); a('s_add_u32 s72, s72, s61'); a('s_mov_b32 s73, s72')
            a('s_lshl_b32 s66, s38, 13'); a(f's_add_u32 s66, s66, {L_TILE}'); a('s_add_u32 s74, s66, 32768')
            if 'ffn' in self.zfirst and self.zshort:
                zero_stores('ffn'); get_tag(); barrier0(); zsignal()
            elif 'ffn' in self.zfirst:
                zero_stores('ffn'); get_tag(); zsignal(); barrier0()
            else:
                barrier0(); zero_stores('ffn'); get_tag(); zsignal()
            dff = self.depth.get('ffn', 64)
            def ffn_issue(depth):
                self.dma(48, 158, 72, 16 * 3584, 8, 66, nt=self.ffn_nt, depth=depth)
                self.dma(52, 158, 73, 16 * 3584, 8, 74, nt=self.ffn_nt, depth=depth, first=(depth >= 16))
            if 'ffn' in self.tilelate:
                qgather_and_barrier1()
                ffn_issue(dff)
            else:
                L1 = self.lab('L_f1'); L2 = self.lab('L_f2')
                a('s_cmp_eq_u32 s38, 0'); a(f's_cbranch_scc1 {L1}')
                ffn_issue(dff)
                a(f's_branch {L2}')
                a.label(L1)
                ffn_issue(self.depth.get('ffn0', 8))
                a.label(L2)
                qgather_and_barrier1()
            self.stamp(1)
            a('s_waitcnt vmcnt(0)')
            self.stamp(12)
            self.lds_sync(1)
            a('v_lshrrev_b32 v6, 2, v1'); a('v_lshl_add_u32 v6, v2, 3, v6'); a('v_lshlrev_b32 v6, 6, v6')
            a('v_and_b32 v7, 1, v0'); a('v_lshl_add_u32 v6, v7, 3, v6')
            a('v_bfe_u32 v7, v0, 1, 1'); a('v_lshl_add_u32 v6, v7, 15, v6')
            a('s_lshl_b32 s61, s38, 4'); a(f's_add_u32 s61, s61, {L_TILE}'); a('v_add_u32 v6, s61, v6')
            self.tr_read(6, W1, 16, 2048, 256)
            self.stamp(14)
            self.lds_sync(2)
            self.srd(48, 24, 1792 * 512 * 2)
            a('v_lshlrev_b32 v158, 4, v0')
            a('s_lshl_b32 s61, s38, 3'); a('s_add_u32 s72, s68, s61'); a('s_lshl_b32 s72, s72, 10')
            a('s_lshl_b32 s66, s38, 13'); a(f's_add_u32 s66, s66, {L_TILE}')
            self.dma(48, 158, 72, 1024, 8, 66, depth=8)
            a('s_waitcnt vmcnt(0)')
            self.lds_sync(3)
            a('v_lshrrev_b32 v6, 2, v1'); a('v_lshl_add_u32 v6, v2, 3, v6'); a('v_lshlrev_b32 v6, 10, v6')
            a('v_and_b32 v7, 3, v0'); a('v_lshl_add_u32 v6, v7, 3, v6')
            a('s_lshl_b32 s61, s38, 8'); a(f's_add_u32 s61, s61, {L_TILE}'); a('v_add_u32 v6, s61, v6')
            self.tr_read(6, WD, 8, 32, 4096)
            self.srd(52, 8, 1024)
            a('v_lshlrev_b32 v7, 2, v0'); a('s_lshl_b32 s60, s38, 8')
            a('buffer_load_dword v142, v7, s[52:55], s60 offen')
            Lp = self.lab('L_gp2')
            a('v_lshlrev_b32 v6, 3, v0'); a('s_lshl_b32 s60, s38, 9'); self.copy_off(61, self.mc); a('s_add_u32 s60, s60, s61'); a(f's_add_u32 s60, s60, {WS_M + 1024*4}'); a('s_add_u32 s61, s60, 4096')
            a('v_lshrrev_b32 v7, 3, v0'); a('v_lshlrev_b32 v7, 7, v7'); a('v_and_b32 v8, 7, v0'); a('v_lshl_add_u32 v7, v8, 2, v7')
            a(f's_mov_b32 s62, {WS_ZF + 32}')
            a.label(Lp)
            a('buffer_load_dwordx2 v[8:9], v6, s[40:43], s60 offen sc1')
            a('buffer_load_dwordx2 v[10:11], v6, s[40:43], s60 offen offset:2048 sc1')
            a('buffer_load_dwordx2 v[12:13], v6, s[40:43], s61 offen sc1')
            a('buffer_load_dword v14, v7, s[40:43], s62 offen sc1')
            a('s_waitcnt vmcnt(0)')
            self.tag_check([9, 11, 13, 14], 16, Lp, sleep=8, zregs=(14,))
            for k, r in enumerate((8, 10, 12, 142)):
                a(f'v_and_b32 v{137+2*k}, 0xffff0000, v{r}'); a(f'v_lshlrev_b32 v{136+2*k}, 16, v{r}')
            a('v_add_f32 v140, 1.0, v140'); a('v_add_f32 v141, 1.0, v141'); self.round_pair(140, 141, 16)
            a(f'v_lshlrev_b32 v144, {2 if self.cbf else 3}, v0'); a(f's_lshl_b32 s72, s38, {8 if self.cbf else 9}'); self.copy_off(61, self.cc); a('s_add_u32 s72, s72, s61'); a(f's_add_u32 s72, s72, {WS_C}')
            a('s_add_u32 s73, s72, 4096'); a('s_add_u32 s74, s72, 8192'); a('s_add_u32 s75, s72, 12288')
            a('v_lshlrev_b32 v145, 2, v0'); a('s_lshl_b32 s61, s38, 8'); a(f's_add_u32 s61, s61, {L_VEC}'); a('v_add_u32 v145, s61, v145')
            a('v_lshlrev_b32 v4, 4, v2'); a(f'v_add_u32 v4, {L_VEC}, v4')
            a(f'v_mov_b32 v146, {L_ST}'); a('s_lshl_b32 s61, s38, 3'); a('v_add_u32 v147, s61, v146')
            a('s_barrier')

        if not self.latef:
            L = h0_begin()
            t1_combine()
            a.label(L)
        def c_issue(b):
            if self.cbf:
                for gp in range(8): a(f'buffer_load_dword v{b+gp}, v144, s[40:43], s{72+gp//2} offen offset:{2048*(gp&1)} sc1')
                return
            for gp in range(8): a(f'buffer_load_dwordx2 v[{b+2*gp}:{b+1+2*gp}], v144, s[40:43], s{72+gp//2} offen offset:{2048*(gp&1)} sc1')
        def c_use(b):
            def f():
                for (x_, y_) in ((0, 2), (4, 6), (8, 10), (12, 14), (0, 4), (8, 12)):
                    a(f'v_add_f32 v{b+x_}, v{b+x_}, v{b+y_}'); a(f'v_add_f32 v{b+x_+1}, v{b+x_+1}, v{b+y_+1}')
                a(f'v_add_f32 v148, v{b}, v{b+8}'); a(f'v_add_f32 v149, v{b+1}, v{b+9}')
            return f
        if self.pipe:
            self.poll2(c_issue, 8, list(range(8, 24)), list(range(24, 40)), 150, c_use(8), c_use(24))
        else:
            b_sentinel()
            if self.csent and not self.x_nopoll:
                Ls = self.lab('L_cs')
                a('v_and_b32 v28, 7, v0'); a('v_lshlrev_b32 v28, 11, v28'); a(f'v_add_u32 v28, {self.csent_off}, v28')
                a('s_mov_b64 exec, 0xff')
                a.label(Ls)
                a('buffer_load_dword v29, v28, s[40:43], s72 offen sc1')
                a('s_waitcnt vmcnt(0)')
                a('v_cmp_ne_u32 vcc, 0, v29')
                a('s_add_u32 s80, s80, 1'); a(f's_cmp_gt_u32 s80, {POLL_LIMIT}'); a('s_cbranch_scc1 L_abort')
                a('s_cmp_eq_u64 vcc, exec'); a(f's_cbranch_scc0 {Ls}')
                a('s_mov_b64 exec, -1')
            Lp = self.lab('L_cp2')
            a.label(Lp)
            c_issue(8)
            a('s_waitcnt vmcnt(0)')
            if self.cbf:
                self.valid_check(range(8, 16), 24, Lp, sleep=self.psleep.get('C', 0))
                for gp in range(7, -1, -1):
                    a(f'v_and_b32 v{9+2*gp}, 0xffff0000, v{8+gp}'); a(f'v_lshlrev_b32 v{8+2*gp}, 16, v{8+gp}')
            else:
                self.valid_check(range(8, 24), 24, Lp, sleep=self.psleep.get('C', 0))
            c_use(8)()
        self.stamp(8)
        a('v_fmac_f32 v142, v136, v148'); a('v_fmac_f32 v143, v137, v149')
        a('v_add_f32 v150, v142, v143'); a('v_mul_f32 v151, v142, v142'); a('v_fmac_f32 v151, v143, v143')
        self.allreduce([150, 151], 'v_add_f32', 152)
        a('s_mov_b64 exec, 1'); a('ds_write_b64 v147, v[150:151]'); a('s_mov_b64 exec, -1')
        a('s_waitcnt lgkmcnt(0)')
        a('s_barrier')
        a('ds_read_b128 v[152:155], v146'); a('ds_read_b128 v[156:159], v146 offset:16')
        a('s_waitcnt lgkmcnt(0)')
        a('v_add_f32 v152, v152, v154'); a('v_add_f32 v153, v153, v155'); a('v_add_f32 v156, v156, v158'); a('v_add_f32 v157, v157, v159')
        a('v_add_f32 v152, v152, v156'); a('v_add_f32 v153, v153, v157')
        a(f'v_mul_f32 v152, {hexf(1/512)}, v152'); a(f'v_mul_f32 v153, {hexf(1/512)}, v153')
        a('v_fma_f32 v153, -v152, v152, v153'); a(f'v_add_f32 v153, {hexf(1e-5)}, v153'); a('v_rsq_f32 v153, v153')
        a('v_sub_f32 v142, v142, v152'); a('v_sub_f32 v143, v143, v152')
        a('v_mul_f32 v142, v142, v153'); a('v_mul_f32 v143, v143, v153')
        a('v_fma_f32 v142, v142, v140, v138'); a('v_fma_f32 v143, v143, v141, v139')
        a('v_cvt_pk_bf16_f32 v150, v142, v143')
        a('ds_write_b32 v145, v150'); a('s_waitcnt vmcnt(0) lgkmcnt(0)')
        a('s_barrier')
        self.stamp(9)
        ACC2 = 136
        self.gemv(4, W1, 16, ACC2)
        self.round1(ACC2, ACC2 + 1)
        a(f's_mov_b32 s61, {hexf(-LOG2E)}')
        a(f'v_mul_f32 v8, s61, v{ACC2}'); a(f'v_min_f32 v8, {hexf(126.0)}, v8'); a('v_exp_f32 v8, v8'); a('v_add_f32 v8, 1.0, v8'); a('v_rcp_f32 v9, v8')
        a('v_fma_f32 v8, -v8, v9, 1.0'); a('v_fma_f32 v8, v8, v9, v9')
        a(f'v_mul_f32 v8, v{ACC2}, v8'); self.round1(8, 9)
        a(f'v_mov_b32_dpp v9, v{ACC2} row_ror:8 {DPPF}')
        a('v_mul_f32 v8, v8, v9')
        a('v_cvt_pk_bf16_f32 v8, v8, v8')
        a('v_lshlrev_b32 v6, 1, v1'); a('s_lshl_b32 s61, s38, 4'); a(f's_add_u32 s61, s61, {L_AV}'); a('v_add_u32 v6, s61, v6')
        a('s_mov_b64 exec, 0xff'); a('ds_write_b16 v6, v8'); a('s_mov_b64 exec, -1')
        a('v_lshlrev_b32 v7, 4, v2'); a(f'v_add_u32 v7, {L_AV}, v7')
        a('s_mul_i32 s60, s36, 7'); a('s_add_u32 s60, s60, s37'); a('s_sub_u32 s60, s60, 22'); a('s_lshl_b32 s60, s60, 11')
        a('s_lshl_b32 s61, s38, 9'); a('s_add_u32 s60, s60, s61'); a(f's_add_u32 s60, s60, {WS_E}')
        a('s_mov_b32 s62, 0xffff0000'); a('s_mov_b32 s63, 0xffff0000'); a('s_mov_b32 s64, 0'); a('s_mov_b32 s65, -1')
        a('s_waitcnt lgkmcnt(0)')
        a('s_barrier')
        a('ds_read_b128 v[136:139], v7'); a('s_waitcnt lgkmcnt(0)')
        for jj in range(8):
            a(f'v_mfma_f32_16x16x32_bf16 v[{8+4*jj}:{11+4*jj}], v[136:139], v[{WD+4*jj}:{WD+4*jj+3}], 0')
        self.stamp(10)
        for half in range(2):
            b = 8 + 16 * half
            a(f'v_cndmask_b32 v{140+2*half}, v{b}, v{b+4}, s[62:63]'); a(f'v_cndmask_b32 v{141+2*half}, v{b+8}, v{b+12}, s[62:63]')
            a(f'v_cndmask_b32 v{140+2*half}, v{140+2*half}, v{141+2*half}, s[64:65]')
            a(f'v_or_b32 v{140+2*half}, 1, v{140+2*half}')
        a('v_lshlrev_b32 v6, 2, v0')
        if self.wide:
            self.quad4(140, 144); self.quad4(142, 148)
            a('s_mov_b32 exec_lo, 0x11111111'); a('s_mov_b32 exec_hi, 0x11111111')
            a('buffer_store_dwordx4 v[144:147], v6, s[40:43], s60 offen sc1')
            a('buffer_store_dwordx4 v[148:151], v6, s[40:43], s60 offen offset:256 sc1')
        else:
            a('buffer_store_dword v140, v6, s[40:43], s60 offen sc1')
            a('buffer_store_dword v142, v6, s[40:43], s60 offen offset:256 sc1')
        a('s_branch L_hend')

        a.label('L_tail_plain')
        a('s_mov_b32 s78, s37')
        if self.latef:
            Lq = self.lab('L_t1b')
            a('s_cmp_eq_u32 s38, 0'); a(f's_cbranch_scc1 {Lq}')
            a('s_add_u32 s78, s37, 22')
            a.label(Lq)
            a('s_barrier')
            Lg = self.lab('L_t1go')
            a('s_cmp_eq_u32 s38, 0'); a(f's_cbranch_scc1 {Lg}')
            a('s_cmp_lg_u32 s38, 1'); a('s_cbranch_scc1 L_hend')
            a('s_cmp_ge_u32 s37, 7'); a('s_cbranch_scc1 L_hend')
            a.label(Lg)
        else:
            a('s_barrier')
            a('s_cmp_lg_u32 s38, 0'); a('s_cbranch_scc1 L_hend')
        t1_combine(own=False)
        a.label('L_hend')
        self.stamp(11)
        self.stamp_flush(helper=True)
        a('s_endpgm')

    def build(self):
        a = self.a
        hdr = open('cdna_kernels/' + KNAME.replace('_kernel', '') + '.s.ref').read().split('\n')
        head = [l for l in hdr if l.startswith(';') and '@launch' not in l and 'Override' not in l and 'grid=ceil' not in l]
        a.raw('\n'.join(head))
        a.raw(f'; @launch grid=(256,1,1) block=(768,1,1) lds={LDS_SIZE}')
        a.raw(DESIGN)
        a.raw('.amdgcn_target "amdgcn-amd-amdhsa--gfx950"\n.text')
        a.raw(f'.globl {KNAME}\n.p2align 8\n.type {KNAME},@function\n{KNAME}:')
        a('s_cmp_ge_u32 s2, 256'); a('s_cbranch_scc1 L_abort')
        a('s_load_dwordx16 s[8:23], s[0:1], 0'); a('s_load_dwordx8 s[24:31], s[0:1], 64'); a('s_load_dwordx4 s[32:35], s[0:1], 96')
        a('v_lshrrev_b32 v1, 6, v0'); a('v_readfirstlane_b32 s3, v1'); a('v_and_b32 v0, 63, v0')
        if self.remap:
            a('s_lshr_b32 s36, s2, 5'); a('s_and_b32 s37, s2, 31')
        else:
            a('s_and_b32 s36, s2, 7'); a('s_lshr_b32 s37, s2, 3')
        self.stamp_init()
        a('s_waitcnt lgkmcnt(0)')
        self.srd(40, 34, WS_SIZE)
        a('s_cmp_ge_u32 s3, 8'); a('s_cbranch_scc1 L_helper')
        self.attention()
        a.label('L_helper')
        self.helper()
        a.label('L_abort')
        a('s_endpgm')
        a.label('L_code_end')
        n = a.pad()
        a.raw('.section .rodata,"a"\n.p2align 6')
        a.raw(f'.amdhsa_kernel {KNAME}\n  .amdhsa_next_free_vgpr 168\n  .amdhsa_next_free_sgpr 102\n  .amdhsa_accum_offset 168\n'
              '  .amdhsa_group_segment_fixed_size 0\n  .amdhsa_kernarg_size 112\n  .amdhsa_user_sgpr_count 2\n'
              '  .amdhsa_user_sgpr_kernarg_segment_ptr 1\n  .amdhsa_system_sgpr_workgroup_id_x 1\n'
              '  .amdhsa_float_denorm_mode_32 3\n.end_amdhsa_kernel')
        return a.text(), n

if __name__ == '__main__':
    import argparse
    p = argparse.ArgumentParser()
    p.add_argument('-o', default='cdna_kernels/' + KNAME.replace('_kernel', '') + '.s')
    p.add_argument('--thr', type=int, default=2); p.add_argument('--thr-deep', type=int, default=3)
    p.add_argument('--stamps', action='store_true'); p.add_argument('--ffn-nt', action='store_true')
    p.add_argument('--deep', default='ffn'); p.add_argument('--x-notile', action='store_true'); p.add_argument('--x-nopoll', action='store_true')
    p.add_argument('--qsleep', type=int, default=4); p.add_argument('--x-nokv', action='store_true')
    p.add_argument('--depth', default=''); p.add_argument('--kthr', default=''); p.add_argument('--late', default=''); p.add_argument('--light', default=''); p.add_argument('--slow', type=int, default=0); p.add_argument('--slow-thr', type=int, default=0); p.add_argument('--tilelate', default=''); p.add_argument('--aflate', action='store_true'); p.add_argument('--csent', action='store_true'); p.add_argument('--bsent', type=int, default=0); p.add_argument('--edelay', type=int, default=0); p.add_argument('--finsent', action='store_true'); p.add_argument('--asleep', type=int, default=0); p.add_argument('--h0only', action='store_true'); p.add_argument('--msleep', type=int, default=4); p.add_argument('--ssleep', type=int, default=8); p.add_argument('--qsent', type=int, default=0); p.add_argument('--asent', type=int, default=0); p.add_argument('--asent-thr', type=int, default=24); p.add_argument('--msent', type=int, default=0); p.add_argument('--zshort', action='store_true'); p.add_argument('--x-noslow', action='store_true'); p.add_argument('--force-slow', action='store_true'); p.add_argument('--mc', type=int, default=8); p.add_argument('--cc', type=int, default=8); p.add_argument('--x-noafz', action='store_true'); p.add_argument('--cbf', action='store_true'); p.add_argument('--cfull', action='store_true'); p.add_argument('--boost', type=int, default=0); p.add_argument('--latef', action='store_true'); p.add_argument('--trig', type=int, default=2); p.add_argument('--nw', action='store_true'); p.add_argument('--nowide', action='store_true'); p.add_argument('--nopipe', action='store_true'); p.add_argument('--nocpf', action='store_true'); p.add_argument('--remap', action='store_true'); p.add_argument('--nofast', action='store_true'); p.add_argument('--ext', default=''); p.add_argument('--ng', default=''); p.add_argument('--psleep', default=''); p.add_argument('--dbgmode', action='store_true'); p.add_argument('--vthr', type=int, default=None); p.add_argument('--zfirst', default='')
    args = p.parse_args()
    kv = lambda t: {x.split('=')[0]: int(x.split('=')[1]) for x in t.split(',') if x}
    g = Gen(thr=args.thr, stamps=args.stamps, thr_deep=args.thr_deep, ffn_nt=args.ffn_nt, deep_roles=tuple(x for x in args.deep.split(',') if x),
            x_notile=args.x_notile, x_nopoll=args.x_nopoll, qsleep=args.qsleep, x_nokv=args.x_nokv, depth=kv(args.depth), kthr=kv(args.kthr), late_k=tuple(x for x in args.late.split(',') if x), vthr=args.vthr, zfirst=tuple(x for x in args.zfirst.split(',') if x), ngroups=kv(args.ng), psleep=kv(args.psleep), ext=kv(args.ext))
    g.light = (set(int(x) for x in args.light.split(',')) if args.light else None)
    g.slow = args.slow; g.slow_thr = args.slow_thr
    g.tilelate = tuple(x for x in args.tilelate.split(',') if x)
    g.aflate = args.aflate
    g.csent = args.csent
    g.bsent = args.bsent; g.edelay = args.edelay
    g.finsent = args.finsent
    g.asleep = args.asleep
    g.h0only = args.h0only; g.msleep = args.msleep
    g.ssleep = args.ssleep; g.qsent = args.qsent
    g.asent = args.asent; g.asent_thr = args.asent_thr; g.msent = args.msent
    g.zshort = args.zshort
    g.x_noslow = args.x_noslow
    g.force_slow = args.force_slow
    g.mc = args.mc; g.cc = args.cc
    g.x_noafz = args.x_noafz
    g.cbf = args.cbf
    g.cfull = args.cfull
    g.boost = args.boost
    g.latef = args.latef; g.trig_ahead = args.trig
    g.nw = args.nw
    g.wide = not args.nowide
    g.pipe = not args.nopipe
    g.cpf = not args.nocpf
    g.dbgmode = args.dbgmode; g.remap = args.remap; g.fast = not args.nofast
    t, n = g.build()
    open(args.o, 'w').write(t)
    print('wrote', args.o, 'lines', t.count('\n'), 'nops inserted', n)
```
